```python
import torch

def _softmax(x, axis=-1):
    return torch.softmax(x, dim=axis)
def _gelu(x):
    return torch.nn.functional.gelu(x, approximate="tanh")
def _silu(x):
    return torch.nn.functional.silu(x)
def _sigmoid(x):
    return torch.sigmoid(x)
def _layernorm(x, axis=-1, eps=1e-5):
    m = x.mean(dim=axis, keepdim=True)
    v = x.var(dim=axis, keepdim=True, unbiased=False)
    return (x - m) / torch.sqrt(v + eps)
def _scatter_add(tgt, idx, src, axis=0):
    return tgt.clone().index_add_(axis, idx, src)
def _segment_sum(src, seg, n):
    out = torch.zeros((n,) + src.shape[1:], dtype=src.dtype)
    return out.index_add_(0, seg, src)
def _pad(x, pw):
    flat = tuple(v for pair in reversed(pw) for v in pair)
    return torch.nn.functional.pad(x, flat)

kernel_name = 'recurrent_scan__spectral_gfnet__dense_activation_relu__prompt'

def setup_inputs():

    _w = (lambda a: (lambda t: t.to(torch.bfloat16) if t.is_floating_point() else t)(torch.as_tensor(a)))
    def _A_setup():
        B, S, D = 1, 2048, 512
        Df = D // 2 + 1
        return {
            "x": _w((lambda *s: torch.randn(*s, dtype=torch.bfloat16) * 0.05)(B, S, D)),
            "w_r": _w((lambda *s: torch.randn(*s, dtype=torch.bfloat16) * 0.1)(S, Df) * 0.02),
            "w_i": _w((lambda *s: torch.randn(*s, dtype=torch.bfloat16) * 0.1)(S, Df) * 0.02),
        }
    _A_in = _A_setup()

    def _B_setup():
        B, S, D, Dff = 1, 2048, 512, 1792
        return {
            "x": _w((lambda *s: torch.randn(*s, dtype=torch.bfloat16) * 0.05)(B, S, D)),
            "w1": _w((lambda *s: torch.randn(*s, dtype=torch.bfloat16) * 0.05)(D, Dff)),
            "w2": _w((lambda *s: torch.randn(*s, dtype=torch.bfloat16) * 0.05)(Dff, D)),
        }
    _B_in = _B_setup()

    return {
        "A_x": _A_in["x"],
        "A_w_r": _A_in["w_r"],
        "A_w_i": _A_in["w_i"],
        "B_x": _B_in["x"],
        "B_w1": _B_in["w1"],
        "B_w2": _B_in["w2"],
    }

def reference(A_x, A_w_r, A_w_i, B_x, B_w1, B_w2):
    def _A_ref(x, w_r, w_i):
        B, S, D = x.shape
        X = (lambda x, axes=(-2,-1): torch.fft.rfft2(x.float(), dim=axes))(x, axes=(-2, -1))
        W = w_r + 1j * w_i
        X = X * W
        y = (lambda x, s, axes=(-2,-1): torch.fft.irfft2(x, s=s, dim=axes).to(torch.bfloat16))(X, (S, D), axes=(-2, -1))
        return y

    def _B_ref(x, w1, w2):
        h = torch.einsum("bsd,df->bsf", x, w1)
        zero = torch.zeros_like(h)
        h = torch.maximum(h, zero)
        return torch.einsum("bsf,fd->bsd", h, w2)

    x = A_x
    xn = _layernorm(x, axis=-1)
    s = _A_ref(xn, A_w_r, A_w_i)
    g = _silu(_B_ref(xn, B_w1, B_w2))
    return x + s * g
```

```python
import re

TRANS = ("v_exp_f32", "v_log_f32", "v_rcp_f32", "v_rsq_f32", "v_sqrt_f32", "v_sin_f32", "v_cos_f32", "v_rcp_iflag_f32")
REG_RE = re.compile(r"(?<![\w.])([vas])(?:\[(\d+):(\d+)\]|(\d+))(?![\w])|\b(vcc|exec|m0|scc)\b")

def regs_of(tok):
    out = []
    for m in REG_RE.finditer(tok):
        if m.group(5):
            out.append((m.group(5), 0))
        else:
            k = m.group(1)
            if m.group(2) is not None:
                out += [(k, i) for i in range(int(m.group(2)), int(m.group(3)) + 1)]
            else:
                out.append((k, int(m.group(4))))
    return out

def split_ops(s):
    ops, depth, cur = [], 0, ""
    for ch in s:
        if ch in "[(": depth += 1
        if ch in "])": depth -= 1
        if ch == "," and depth == 0:
            ops.append(cur.strip()); cur = ""
        else:
            cur += ch
    if cur.strip(): ops.append(cur.strip())
    return ops

class Ins:
    __slots__ = ("text", "mn", "kind", "defs", "uses", "srcC", "passes", "tag", "counted", "lds_dma", "wide_store", "dpp", "store_data")

def parse(text):
    i = Ins(); i.text = text
    t = text.strip()
    sp = t.split(None, 1)
    mn = sp[0]; rest = sp[1] if len(sp) > 1 else ""
    i.mn = mn; i.tag = None; i.counted = True; i.srcC = []; i.passes = 0; i.lds_dma = False; i.wide_store = False
    i.store_data = []
    i.dpp = "_dpp" in mn
    ops = split_ops(rest)
    opr = [regs_of(o.split(" ")[0]) if not o.startswith("abs") else regs_of(o) for o in ops]
    opr = [regs_of(re.split(r"\s+(?=[a-z_]+[:\s]|[a-z_0-9]+$)", o)[0]) for o in ops]
    defs, uses = [], []
    if mn.startswith("v_mfma"):
        i.kind = "mfma"
        defs = opr[0]; uses = opr[1] + opr[2] + opr[3]; i.srcC = opr[3]
        i.passes = 8 if "32x32" in mn else 4
    elif mn.startswith("v_"):
        i.kind = "trans" if mn.split("_e32")[0].split("_e64")[0] in TRANS else "valu"
        if mn.startswith("v_cmp"):
            defs = opr[0]; uses = sum(opr[1:], [])
        elif mn.startswith(("v_add_co", "v_sub_co", "v_addc_co", "v_subb_co", "v_subrev_co")):
            defs = opr[0] + opr[1]; uses = sum(opr[2:], [])
        elif mn.startswith("v_permlane") and "swap" in mn:
            defs = opr[0] + opr[1]; uses = opr[0] + opr[1]
        else:
            defs = opr[0]; uses = sum(opr[1:], [])
            if mn.startswith(("v_fmac", "v_dot2c", "v_writelane", "v_pk_fmac")) or i.dpp:
                uses = uses + opr[0]
            if mn.startswith("v_cndmask") and len(ops) == 3:
                uses = uses + [("vcc", 0)]
    elif mn.startswith("ds_"):
        i.kind = "ds"
        if mn.startswith(("ds_write", "ds_add")):
            uses = sum(opr, [])
        else:
            defs = opr[0]; uses = sum(opr[1:], [])
    elif mn.startswith(("buffer_", "global_")):
        i.kind = "vmem"
        if re.search(r"\blds\b", rest):
            i.lds_dma = True; uses = sum(opr, []) + [("m0", 0)]
        elif "store" in mn or "atomic" in mn:
            uses = sum(opr, [])
            dat = opr[0] if mn.startswith("buffer_") else opr[1]
            i.store_data = dat
            i.wide_store = mn.endswith(("x3", "x4"))
        else:
            defs = opr[0]; uses = sum(opr[1:], [])
    elif mn.startswith(("s_load", "s_buffer_load", "s_memtime", "s_memrealtime")):
        i.kind = "smem"; defs = opr[0]; uses = sum(opr[1:], [])
    elif mn.startswith("s_"):
        i.kind = "salu"
        if mn.startswith(("s_cmp", "s_waitcnt", "s_barrier", "s_nop", "s_branch", "s_cbranch", "s_endpgm", "s_sleep", "s_setprio", "s_bitcmp")):
            uses = sum(opr, [])
        else:
            defs = opr[0] if opr else []; uses = sum(opr[1:], [])
            if "saveexec" in mn: defs = defs + [("exec", 0)]
    else:
        raise ValueError("unknown instr " + text)
    i.defs = defs; i.uses = uses
    return i

class Stream:
    def __init__(self):
        self.lines = []
        self.hist = []
        self.pos = 0
        self.vm = []
        self.lg = []
        self.smem_out = []
        self.ninstr = 0

    def raw(self, text):
        self.lines.append(text)

    def comment(self, t):
        self.lines.append("  ; " + t)

    def label(self, name):
        self.lines.append(name + ":")

    def _put(self, ins, slots=1):
        self.lines.append("  " + ins.text)
        self.hist.append((self.pos, ins))
        self.pos += slots
        self.ninstr += 1
        if len(self.hist) > 40: self.hist = self.hist[-32:]

    def nop(self, n):
        while n > 0:
            k = min(n, 16)
            self._put(parse("s_nop %d" % (k - 1)), k)
            n -= k

    def _wait(self, vm=None, lg=None):
        parts = []
        if vm is not None:
            vm = min(vm, 63)
            if vm < len(self.vm):
                parts.append("vmcnt(%d)" % vm); self.vm = self.vm[len(self.vm) - vm:] if vm else []
        if lg is not None:
            lg = min(lg, 15)
            if lg < len(self.lg) or (lg == 0 and self.smem_out):
                parts.append("lgkmcnt(%d)" % lg); self.lg = self.lg[len(self.lg) - lg:] if lg else []
                if lg == 0: self.smem_out = []
        if parts:
            self._put(parse("s_waitcnt " + " ".join(parts)))

    def wait_all(self, vm=True, lg=True, force=False):
        if force:
            self._put(parse("s_waitcnt " + " ".join((["vmcnt(0)"] if vm else []) + (["lgkmcnt(0)"] if lg else []))))
            if vm: self.vm = []
            if lg: self.lg = []; self.smem_out = []
        else:
            self._wait(0 if vm else None, 0 if lg else None)

    def wait_tag(self, *tags):
        vm = lg = None
        for k in range(len(self.vm) - 1, -1, -1):
            if self.vm[k].tag in tags:
                vm = len(self.vm) - 1 - k; break
        for k in range(len(self.lg) - 1, -1, -1):
            if self.lg[k].tag in tags:
                lg = len(self.lg) - 1 - k; break
        self._wait(vm, lg)

    def _hazard(self, ins):
        need = 0
        U = set(ins.uses); Dn = set(ins.defs); UD = U | Dn
        isvalu = ins.kind in ("valu", "trans")
        for pos, p in reversed(self.hist):
            dist = self.pos - pos - 1
            if dist >= 20: break
            req = 0
            pd = set(p.defs)
            if p.kind in ("valu", "trans"):
                vd = {r for r in pd if r[0] in "va"}
                sd = {r for r in pd if r[0] == "s" or r[0] == "vcc"}
                if ins.kind == "mfma" and vd & U: req = max(req, 2)
                if p.kind == "trans" and ins.kind != "trans" and vd & U and ins.kind in ("valu", "mfma"): req = max(req, 1)
                if p.kind == "trans" and vd & U and ins.kind in ("ds", "vmem"): req = max(req, 1)
                if isvalu and ins.mn.startswith(("v_readlane", "v_readfirstlane")) and vd & U: req = max(req, 1)
                if isvalu and ins.dpp and vd & U: req = max(req, 2)
                if isvalu and ins.mn.startswith("v_permlane") and vd & U: req = max(req, 2)
                if sd & U:
                    if isvalu:
                        req = max(req, 4 if ins.mn.startswith(("v_readlane", "v_writelane")) else 2)
                    elif ins.kind == "vmem": req = max(req, 5)
                    elif ins.kind in ("salu", "smem"): req = max(req, 1)
                if ("exec", 0) in pd: req = max(req, 5)
                if p.mn.startswith("v_pk_") and False: pass
            elif p.kind == "mfma":
                big = 12 if p.passes == 8 else 8
                if pd & UD:
                    if ins.kind == "mfma":
                        ab = set(ins.uses[:len(ins.uses) - len(ins.srcC)])
                        if pd & ab: req = max(req, big)
                        c = set(ins.srcC)
                        if pd & c:
                            if c == pd and ins.passes == p.passes: pass
                            else: req = max(req, 10 if p.passes == 8 else 6)
                        if pd & Dn and not (pd & c):
                            req = max(req, big)
                    else:
                        req = max(req, big)
                if isvalu and set(p.srcC) & Dn: req = max(req, 7 if p.passes == 8 else 3)
            elif p.kind == "salu":
                if ("m0", 0) in pd and ins.lds_dma: req = max(req, 1)
            elif p.kind == "vmem":
                if p.wide_store and set(p.store_data) & Dn: req = max(req, 2)
            need = max(need, req - dist)
        return need

    def I(self, text, tag=None, counted=True):
        ins = parse(text); ins.tag = tag; ins.counted = counted
        UD = set(ins.uses) | set(ins.defs)
        vm = lg = None
        for k in range(len(self.vm) - 1, -1, -1):
            if set(self.vm[k].defs) & UD:
                vm = len(self.vm) - 1 - k; break
        for k in range(len(self.lg) - 1, -1, -1):
            if set(self.lg[k].defs) & UD:
                lg = len(self.lg) - 1 - k; break
        for p in self.smem_out:
            if set(p.defs) & UD: lg = 0
        if lg is not None and lg > 0 and any(p.counted for p in self.smem_out): lg = 0
        self._wait(vm, lg)
        n = self._hazard(ins)
        if n > 0: self.nop(n)
        self._put(ins)
        if counted:
            if ins.kind == "vmem": self.vm.append(ins)
            elif ins.kind == "ds": self.lg.append(ins)
        if ins.kind == "smem": self.smem_out.append(ins)
        return ins

    def M(self, block, **kw):
        for l in block.strip().splitlines():
            l = l.split(";")[0].strip()
            if l: self.I(l, **kw)

    def fork(self):
        s = Stream()
        s.hist = list(self.hist); s.pos = self.pos
        s.vm = list(self.vm); s.lg = list(self.lg); s.smem_out = list(self.smem_out)
        return s

class Pool:
    def __init__(self, kind, lo, hi):
        self.kind = kind; self.free = set(range(lo, hi)); self.hw = lo
    def alloc(self, n=1, align=None):
        if align is None: align = 1 if n == 1 else (2 if n == 2 else 4)
        for b in sorted(self.free):
            if b % align == 0 and all((b + i) in self.free for i in range(n)):
                for i in range(n): self.free.discard(b + i)
                self.hw = max(self.hw, b + n)
                return R(self.kind, b, n)
        raise RuntimeError("out of %s regs (need %d, free %d)" % (self.kind, n, len(self.free)))
    def release(self, *rs):
        for r in rs:
            for i in range(r.n):
                assert (r.b + i) not in self.free
                self.free.add(r.b + i)

class R:
    def __init__(self, kind, b, n): self.kind = kind; self.b = b; self.n = n
    def __str__(self):
        return "%s%d" % (self.kind, self.b) if self.n == 1 else "%s[%d:%d]" % (self.kind, self.b, self.b + self.n - 1)
    __repr__ = __str__
    def __format__(self, spec): return str(self)
    def __getitem__(self, i):
        if isinstance(i, slice):
            a = i.start or 0; e = self.n if i.stop is None else i.stop
            assert 0 <= a < e <= self.n
            return R(self.kind, self.b + a, e - a)
        assert 0 <= i < self.n
        return R(self.kind, self.b + i, 1)
    def __len__(self): return self.n
```

```python
import sys, struct
sys.path.insert(0, "dev")
from fw import *

NAME = "recurrent_scan__spectral_gfnet__dense_activation_relu__prompt"
DIAG = "--diag" in sys.argv
STOP = None
for a in sys.argv:
    if a.startswith("--stop="): STOP = a.split("=")[1]

def f2u(x): return struct.unpack("<I", struct.pack("<f", x))[0]
def fl(x): return "0x%08x" % f2u(x)

WS_EPOCH = 0
WS_F1 = 0x4000
WS_FW = 0x8000
WS_F2 = 0x9000
WS_F3 = 0x10000
WS_ST = 0x18000
WS_DIAG = 0x20000
WS_X1 = 0x100000
WS_WT = 0x300000
WS_Y1 = 0x600000
WS_H = 0x800000
WS_SIZE = 0x1000000
S4 = 131072
L_XN = S4; L_GA = S4 + 8192; L_CS = S4 + 8192 + 9216
L_XC = S4; L_EX = S4 + 8192; L_SP = S4 + 16384
L_YB = 98304
LDS_TOTAL = 163840

SX, SWR, SWI, SW1, SW2, SOUT, SWS = ("s[%d:%d]" % (b, b + 3) for b in (8, 12, 16, 20, 24, 28, 32))
sXCD, sJ, sW, sTAG, sQ, sCB, sHQ, sSPIN = ("s%d" % i for i in range(36, 44))
sT = ["s%d" % i for i in range(44, 64)]

V = Pool("v", 1, 256)
A_ = Pool("a", 0, 256)
S = Stream()
tail = []
I = lambda *a, **k: S.I(*a, **k)
nstamp = [0]
def stamp(st=None):
    if DIAG:
        k = nstamp[0]; nstamp[0] += 1
        assert k < 16
        (st or S).I("s_memrealtime s[%d:%d]" % (100 - 2 * k, 101 - 2 * k), counted=False)
        return k

def srd(name, lo, hi, nbytes):
    b = int(name[2:name.index(":")])
    I(f"s_mov_b32 s{b}, s{lo}"); I(f"s_and_b32 s{b+1}, s{hi}, 0xffff")
    I(f"s_mov_b32 s{b+2}, {nbytes}"); I(f"s_mov_b32 s{b+3}, 0x20000")

npoll = [0]
def poll_simple(st, vaddr, width=1, tagreg=None):
    k = npoll[0]; npoll[0] += 1
    t = V.alloc(4)
    st.I(f"s_mov_b32 {sSPIN}, 0")
    st.wait_all(force=True)
    st.label(f"L_poll{k}")
    st.nop(1)
    suf = {1: "dword", 2: "dwordx2", 4: "dwordx4"}[width]
    st.I(f"buffer_load_{suf} {t[0:width]}, {vaddr}, {SWS}, 0 offen sc1")
    st.wait_all(force=True)
    if width == 4:
        for i in range(4): st.I(f"v_xor_b32 {t[i]}, {sTAG}, {t[i]}")
        st.I(f"v_or3_b32 {t[0]}, {t[0]}, {t[1]}, {t[2]}")
        st.I(f"v_or_b32 {t[0]}, {t[0]}, {t[3]}")
        st.I(f"v_cmp_ne_u32 vcc, 0, {t[0]}")
    else:
        st.I(f"v_cmp_ne_u32 vcc, {sTAG}, {t[0]}")
    st.nop(1)
    st.I(f"s_cbranch_vccz L_got{k}")
    st.I(f"s_add_u32 {sSPIN}, {sSPIN}, 1")
    st.I(f"s_cmp_lt_u32 {sSPIN}, 100000")
    st.I("s_sleep 1")
    st.I(f"s_cbranch_scc1 L_poll{k}")
    st.label(f"L_got{k}")
    V.release(t)

def flag(st, soff_expr_reg, vtmp):
    st.I(f"v_mov_b32 {vtmp[0]}, {sTAG}")
    st.I(f"v_mov_b32 {vtmp[1]}, 0")
    st.I("s_mov_b64 exec, 1")
    st.I(f"buffer_store_dword {vtmp[0]}, {vtmp[1]}, {SWS}, {soff_expr_reg} offen sc1")
    st.I("s_mov_b64 exec, -1")

def cmul_tw(st, re, im, c, s, t0, out):
    st.I(f"v_mul_f32 {t0[0]}, {re}, {c}")
    st.I(f"v_mul_f32 {t0[1]}, {im}, {c}")
    st.I(f"v_fmac_f32 {t0[0]}, {im}, {s}")
    st.I(f"v_fma_f32 {t0[1]}, -{re}, {s}, {t0[1]}")
    st.I(f"v_cvt_pk_bf16_f32 {out}, {t0[0]}, {t0[1]}")

I("s_cmp_ge_u32 s2, 256")
I("s_cbranch_scc1 L_end")
stamp()
I("s_load_dwordx16 s[64:79], s[0:1], 0")
I("s_load_dwordx2 s[80:81], s[0:1], 64")
vL = V.alloc(); vL15 = V.alloc(); vH = V.alloc(); vL16 = V.alloc()
t = V.alloc(8)
I(f"v_lshrrev_b32 {t[0]}, 6, v0")
I(f"v_and_b32 {vL}, 63, v0")
I(f"v_readfirstlane_b32 {sW}, {t[0]}")
I(f"v_and_b32 {vL15}, 15, v0")
I(f"v_lshrrev_b32 {vH}, 4, {vL}")
I(f"v_lshlrev_b32 {vL16}, 4, {vL}")
I(f"s_and_b32 {sXCD}, s2, 7")
I(f"s_lshr_b32 {sJ}, s2, 3")
I(f"s_add_u32 {sQ}, {sJ}, 4"); I(f"s_and_b32 {sQ}, {sQ}, 31")
I(f"s_lshl_b32 {sT[0]}, {sXCD}, 5"); I(f"s_add_u32 {sQ}, {sQ}, {sT[0]}")
I(f"s_lshr_b32 {sCB}, {sJ}, 2"); I(f"s_and_b32 {sHQ}, {sJ}, 3")
S.wait_all(vm=False, force=True)
srd(SX, 64, 65, 2048 * 1024); srd(SWS, 80, 81, WS_SIZE)
I(f"s_lshl_b32 {sT[0]}, {sXCD}, 3"); I(f"s_lshl_b32 {sT[1]}, {sW}, 1"); I(f"s_add_u32 {sT[0]}, {sT[0]}, {sT[1]}")
I(f"s_lshl_b32 {sT[0]}, {sT[0]}, 5"); I(f"s_add_u32 {sT[0]}, {sT[0]}, {sJ}")
sS0 = sT[19]
I(f"s_mov_b32 {sS0}, {sT[0]}")
I(f"s_lshl_b32 {sT[1]}, {sT[0]}, 10"); I(f"s_add_u32 {sT[2]}, {sT[1]}, 32768")
xa = [V.alloc(4), V.alloc(4)]
vE = V.alloc(); vZ = V.alloc()
I(f"v_mov_b32 {vZ}, 0")
I(f"buffer_load_dwordx4 {xa[0]}, {vL16}, {SX}, {sT[1]} offen")
I(f"buffer_load_dwordx4 {xa[1]}, {vL16}, {SX}, {sT[2]} offen")
I(f"buffer_load_dword {vE}, {vZ}, {SWS}, 0 offen sc1")
srd(SWR, 66, 67, 2048 * 514); srd(SWI, 68, 69, 2048 * 514)
srd(SW1, 72, 73, 512 * 3584); srd(SW2, 74, 75, 1792 * 1024); srd(SOUT, 76, 77, 2048 * 1024)

vXD = V.alloc(4); vW1D = V.alloc(4)
I(f"v_lshrrev_b32 {t[0]}, 5, {vL}"); I(f"v_lshlrev_b32 {t[0]}, 14, {t[0]}")
I(f"v_bfe_u32 {t[1]}, {vL}, 3, 2"); I(f"v_lshl_add_u32 {t[0]}, {t[1]}, 10, {t[0]}")
I(f"v_and_b32 {t[1]}, 7, {vL}"); I(f"v_xor_b32 {t[1]}, {t[1]}, {vH}")
I(f"v_lshl_add_u32 {vXD[0]}, {t[1]}, 4, {t[0]}")
I(f"v_xor_b32 {t[2]}, 64, {vXD[0]}")
I(f"v_add_u32 {vXD[1]}, {31744}, {t[2]}")
I(f"v_add_u32 {vXD[2]}, {2*31744}, {vXD[0]}")
I(f"v_add_u32 {vXD[3]}, {3*31744}, {t[2]}")
I(f"v_mul_u32_u24 {t[0]}, 3584, {vH}")
I(f"v_lshrrev_b32 {t[1]}, 2, {vL15}"); I(f"v_xor_b32 {t[1]}, {t[1]}, {vH}")
I(f"v_lshl_add_u32 {t[0]}, {t[1]}, 6, {t[0]}")
I(f"v_and_b32 {t[1]}, 3, {vL}"); I(f"v_lshl_add_u32 {vW1D[0]}, {t[1]}, 4, {t[0]}")
for m in range(1, 4): I(f"v_add_u32 {vW1D[m]}, {m*(4*3584-1024)}, {vW1D[0]}")
sO, sA, sFB, sXrow, sW1row, sM0 = sT[10], sT[11], sT[12], sT[13], sT[14], sT[15]
I(f"s_and_b32 {sO}, {sXCD}, 6"); I(f"s_bfe_u32 {sT[0]}, {sJ}, 0x10001"); I(f"s_add_u32 {sO}, {sO}, {sT[0]}")
I(f"s_and_b32 {sA}, {sJ}, 1")
I(f"s_and_b32 {sT[0]}, {sXCD}, 1"); I(f"s_mul_i32 {sFB}, {sT[0]}, 7"); I(f"s_add_u32 {sFB}, {sFB}, {sCB}")
I(f"s_lshl_b32 {sXrow}, {sO}, 8"); I(f"s_and_b32 {sT[0]}, {sW}, 1"); I(f"s_lshl_b32 {sT[0]}, {sT[0]}, 7"); I(f"s_add_u32 {sXrow}, {sXrow}, {sT[0]}")
I(f"s_lshl_b32 {sT[0]}, {sA}, 3"); I(f"s_add_u32 {sXrow}, {sXrow}, {sT[0]}")
I(f"s_lshr_b32 {sT[0]}, {sW}, 1"); I(f"s_lshl_b32 {sT[0]}, {sT[0]}, 2"); I(f"s_add_u32 {sXrow}, {sXrow}, {sT[0]}")
I(f"s_lshl_b32 {sXrow}, {sXrow}, 10")
I(f"s_mul_i32 {sW1row}, {sW}, {16*3584}"); I(f"s_lshl_b32 {sT[0]}, {sFB}, 8"); I(f"s_add_u32 {sW1row}, {sW1row}, {sT[0]}")
I(f"s_lshl_b32 {sM0}, {sW}, 12")

def g1_dma(st, c):
    sl = (c & 3) * 32768
    st.I(f"s_add_u32 m0, {sM0}, {sl}")
    st.I(f"s_add_u32 {sT[0]}, {sXrow}, {c*128}")
    for m in range(4):
        st.I(f"buffer_load_dwordx4 {vXD[m]}, {SX}, {sT[0]} offen offset:{m*1024} lds", tag=f"g1c{c}")
    st.I(f"s_add_u32 m0, {sM0}, {sl+16384}")
    st.I(f"s_add_u32 {sT[0]}, {sW1row}, {c*64*3584}")
    for m in range(4):
        st.I(f"buffer_load_dwordx4 {vW1D[m]}, {SW1}, {sT[0]} offen offset:{m*1024} lds", tag=f"g1c{c}")

I(f"s_cmp_ge_u32 {sJ}, 28")
I("s_cbranch_scc1 L_free_dma")
F = S.fork()
for c in range(4): g1_dma(S, c)
S.label("L_after_dma")
F.label("L_free_dma")
sWI = sT[16]
F.I(f"s_lshl_b32 {sWI}, {sXCD}, 2"); F.I(f"s_add_u32 {sWI}, {sWI}, {sJ}"); F.I(f"s_sub_u32 {sWI}, {sWI}, 28")
F.I(f"s_mul_i32 {sT[0]}, {sWI}, 32896")
F.I(f"s_mul_i32 {sT[1]}, {sW}, 9216")
F.I(f"s_add_u32 {sT[0]}, {sT[0]}, {sT[1]}")
WI_OFF = 36864
for which, sr in ((0, SWR), (1, SWI)):
    for g in range(3):
        F.I(f"s_add_u32 m0, {sT[1]}, {which*WI_OFF + g*4096}")
        F.I(f"s_add_u32 {sT[2]}, {sT[0]}, {g*4096}")
        for m in range(4 if g < 2 else 1):
            F.I(f"buffer_load_dwordx4 {vL16}, {sr}, {sT[2]} offen offset:{m*1024} lds")
F.I("s_branch L_after_dma")
tail.append(F)
S.vm = S.vm[:3] + S.vm[3 + 14:]
for k in range(3, len(S.vm)): pass

fq = V.alloc(); fh4 = V.alloc(); ang = V.alloc(4)
C1 = V.alloc(4)
TWc = V.alloc(8); TWs = V.alloc(8)
F32 = [[[V.alloc(4) for p in range(2)] for tt in range(2)] for tau in range(2)]
CN = V.alloc(4)
I(f"v_cvt_f32_u32 {fq}, {vL15}")
I(f"v_lshlrev_b32 {t[0]}, 2, {vH}"); I(f"v_cvt_f32_u32 {fh4}, {t[0]}")
I(f"v_mul_f32 {t[1]}, {fl(1/16)}, {fq}")
I(f"v_mul_f32 {ang[0]}, {t[1]}, {fh4}")
for e in range(1, 4): I(f"v_add_f32 {ang[e]}, {ang[e-1]}, {t[1]}")
cs = V.alloc(8)
for e in range(4):
    I(f"v_cos_f32 {cs[e]}, {ang[e]}"); I(f"v_sin_f32 {cs[4+e]}, {ang[e]}")
I(f"v_cvt_pk_bf16_f32 {C1[0]}, {cs[0]}, {cs[1]}"); I(f"v_cvt_pk_bf16_f32 {C1[1]}, {cs[2]}, {cs[3]}")
I(f"v_cvt_pk_bf16_f32 {C1[2]}, -{cs[4]}, -{cs[5]}"); I(f"v_cvt_pk_bf16_f32 {C1[3]}, -{cs[6]}, -{cs[7]}")
I(f"v_mul_f32 {t[2]}, {fl(1/32)}, {fq}")
for r in range(4):
    I(f"v_mul_f32 {t[3]}, {fl(1/32)}, {ang[r]}")
    I(f"v_add_f32 {t[4]}, {t[3]}, {t[2]}")
    I(f"v_cos_f32 {TWc[r]}, {t[3]}"); I(f"v_sin_f32 {TWs[r]}, {t[3]}")
    I(f"v_cos_f32 {TWc[4+r]}, {t[4]}"); I(f"v_sin_f32 {TWs[4+r]}, {t[4]}")
I(f"v_and_b32 {t[5]}, 1, {vL}"); I(f"v_mul_u32_u24 {t[5]}, 0x8000, {t[5]}"); I(f"v_lshl_or_b32 {t[5]}, {t[5]}, 16, {t[5]}")
for r in range(4):
    I(f"v_mul_f32 {t[3]}, 0.5, {ang[r]}")
    I(f"v_cos_f32 {cs[0]}, {t[3]}"); I(f"v_sin_f32 {cs[1]}, {t[3]}")
    I(f"v_cvt_pk_bf16_f32 {F32[0][0][0][r]}, {cs[0]}, {cs[1]}")
    I(f"v_cvt_pk_bf16_f32 {F32[0][0][1][r]}, -{cs[1]}, {cs[0]}")
    for p in range(2): I(f"v_xor_b32 {F32[0][1][p][r]}, {t[5]}, {F32[0][0][p][r]}")
for r in range(4): I(f"v_mov_b32 {CN[r]}, {'0x3f80' if r % 2 == 0 else '0xbf80'}")

xf = [V.alloc(8), V.alloc(8)]
red = V.alloc(2); kN = V.alloc()
I(f"v_mov_b32 {kN}, {fl(-1/512)}")
for p in range(2):
    for e in range(4):
        I(f"v_lshlrev_b32 {xf[p][2*e]}, 16, {xa[p][e]}")
        I(f"v_and_b32 {xf[p][2*e+1]}, 0xffff0000, {xa[p][e]}")
stamp()
def tree(dst, src, tmp):
    I(f"v_add_f32 {tmp[0]}, {src[0]}, {src[1]}"); I(f"v_add_f32 {tmp[1]}, {src[2]}, {src[3]}")
    I(f"v_add_f32 {tmp[2]}, {src[4]}, {src[5]}"); I(f"v_add_f32 {tmp[3]}, {src[6]}, {src[7]}")
    I(f"v_add_f32 {tmp[0]}, {tmp[0]}, {tmp[1]}"); I(f"v_add_f32 {tmp[2]}, {tmp[2]}, {tmp[3]}")
    I(f"v_add_f32 {dst}, {tmp[0]}, {tmp[2]}")
def wave_reduce(regs, sdst):
    for mod in ("row_shr:1 row_mask:0xf bank_mask:0xf bound_ctrl:0", "row_shr:2 row_mask:0xf bank_mask:0xf bound_ctrl:0",
                "row_shr:4 row_mask:0xf bank_mask:0xf bound_ctrl:0", "row_shr:8 row_mask:0xf bank_mask:0xf bound_ctrl:0",
                "row_bcast:15 row_mask:0xa bank_mask:0xf", "row_bcast:31 row_mask:0xc bank_mask:0xf"):
        for r in regs: I(f"v_add_f32_dpp {r}, {r}, {r} {mod}")
    for r, s in zip(regs, sdst): I(f"v_readlane_b32 {s}, {r}, 63")
tree(red[0], xf[0], t[0:4]); tree(red[1], xf[1], t[4:8])
wave_reduce([red[0], red[1]], [sT[0], sT[1]])
dv = V.alloc(8)
for p in range(2):
    for e in range(8): I(f"v_fma_f32 {dv[e]}, {sT[p]}, {kN}, {xf[p][e]}")
    I(f"v_mul_f32 {red[p]}, {dv[0]}, {dv[0]}")
    for e in range(1, 8): I(f"v_fmac_f32 {red[p]}, {dv[e]}, {dv[e]}")
wave_reduce([red[0], red[1]], [sT[2], sT[3]])
stt = V.alloc(2); rs = V.alloc(2); mo = V.alloc(2)
for p in range(2):
    I(f"v_mul_f32 {t[0]}, {sT[p]}, {kN}")
    I(f"v_mul_f32 {t[1]}, {sT[2+p]}, {kN}")
    I(f"v_cvt_pk_bf16_f32 {t[2]}, -{t[1]}, -{t[0]}")
    I(f"v_lshlrev_b32 {t[3]}, 16, {t[2]}")
    I(f"v_add_f32 {t[3]}, {fl(1e-5)}, {t[3]}")
    I(f"v_cvt_pk_bf16_f32 {t[3]}, {t[3]}, {t[3]}")
    I(f"v_lshlrev_b32 {t[3]}, 16, {t[3]}")
    I(f"v_sqrt_f32 {t[3]}, {t[3]}")
    I(f"v_cvt_pk_bf16_f32 {stt[p]}, {t[3]}, -{t[0]}")
    I(f"v_lshlrev_b32 {t[3]}, 16, {stt[p]}")
    I(f"v_rcp_f32 {rs[p]}, {t[3]}")
    I(f"v_and_b32 {t[4]}, 0xffff0000, {stt[p]}")
    I(f"v_mul_f32 {mo[p]}, {t[4]}, {rs[p]}")
I(f"v_readfirstlane_b32 {sT[4]}, {vE}")
I(f"s_mul_i32 {sTAG}, {sT[4]}, 0x9E3779B1"); I(f"s_add_u32 {sTAG}, {sTAG}, 0x7F4A7C15")
vXNW = V.alloc()
I(f"s_lshl_b32 {sT[5]}, {sW}, 11"); I(f"s_add_u32 {sT[5]}, {sT[5]}, {L_XN}")
I(f"v_add_u32 {vXNW}, {sT[5]}, {vL16}")
for p in range(2):
    for e in range(8): I(f"v_fma_f32 {xf[p][e]}, {xf[p][e]}, {rs[p]}, -{mo[p]}")
    for e in range(4): I(f"v_cvt_pk_bf16_f32 {xa[p][e]}, {xf[p][2*e]}, {xf[p][2*e+1]}")
    I(f"ds_write_b128 {vXNW}, {xa[p]} offset:{p*1024}", tag="xnw")
gr = V.alloc(2)
I(f"v_cmp_eq_u32 vcc, 0, {vL}")
I(f"v_cndmask_b32 {gr[0]}, {stt[1]}, {stt[0]}, vcc")
I(f"v_mov_b32 {gr[1]}, {sTAG}")
I(f"v_lshlrev_b32 {t[0]}, 8, {vL}")
I(f"s_lshl_b32 {sT[6]}, {sS0}, 3"); I(f"s_add_u32 {sT[6]}, {sT[6]}, {WS_ST}")
I("s_mov_b64 exec, 3")
I(f"buffer_store_dwordx2 {gr}, {t[0]}, {SWS}, {sT[6]} offen sc1")
I("s_mov_b64 exec, -1")
vTR = V.alloc()
I(f"v_lshrrev_b32 {t[1]}, 2, {vL}"); I(f"v_and_b32 {t[2]}, 3, {vL}"); I(f"v_lshlrev_b32 {t[2]}, 3, {t[2]}")
I(f"v_lshl_add_u32 {t[1]}, {t[1]}, 6, {t[2]}"); I(f"v_add_u32 {vTR}, {sT[5]}, {t[1]}")
S.wait_tag("xnw")
Aop = [[V.alloc(2) for tt in range(2)] for p in range(2)]
for p in range(2):
    for tt in range(2): I(f"ds_read_b64_tr_b16 {Aop[p][tt]}, {vTR} offset:{p*1024 + tt*32}")
D1 = [[[V.alloc(4) for c in range(2)] for tt in range(2)] for p in range(2)]
for p in range(2):
    for tt in range(2):
        for c in range(2): I(f"v_mfma_f32_16x16x16_bf16 {D1[p][tt][c]}, {Aop[p][tt]}, {C1[2*c:2*c+2]}, 0")
P = [[V.alloc(4) for tt in range(2)] for p in range(2)]
for p in range(2):
    for tt in range(2):
        for r in range(4):
            cmul_tw(S, D1[p][tt][0][r], D1[p][tt][1][r], TWc[4*tt+r], TWs[4*tt+r], t[2*(r&1):2*(r&1)+2], P[p][tt][r])
D2 = [[D1[p][0][0], D1[p][0][1], D1[p][1][0]] for p in range(2)]
for p in range(2):
    for c in range(3):
        for tt in range(2):
            B = F32[0][tt][c] if c < 2 else CN
            I(f"v_mfma_f32_16x16x32_bf16 {D2[p][c]}, {P[p][tt]}, {B}, {'0' if tt == 0 else D2[p][c]}")
O = V.alloc(8)
for p in range(2): I(f"v_cndmask_b32 {D2[p][1][0]}, {D2[p][1][0]}, {D2[p][2][0]}, vcc")
for r in range(4):
    for p in range(2): I(f"v_cvt_pk_bf16_f32 {O[2*r+p]}, {D2[p][0][r]}, {D2[p][1][r]}")
I(f"v_mul_u32_u24 {t[0]}, 144, {vL}")
I(f"s_lshl_b32 {sT[5]}, {sW}, 3"); I(f"s_add_u32 {sT[5]}, {sT[5]}, {L_GA}")
I(f"v_add_u32 {t[0]}, {sT[5]}, {t[0]}")
for r in range(4): I(f"ds_write_b64 {t[0]}, {O[2*r:2*r+2]} offset:{32*r}")
I(f"v_lshrrev_b32 {t[1]}, 3, v0"); I(f"v_and_b32 {t[2]}, 7, v0"); I(f"v_lshlrev_b32 {t[2]}, 4, {t[2]}")
I(f"v_mul_u32_u24 {t[3]}, 144, {t[1]}"); I(f"v_add_u32 {t[3]}, {t[3]}, {t[2]}"); I(f"v_add_u32 {t[3]}, {L_GA}, {t[3]}")
I(f"v_and_b32 {t[4]}, 15, {t[1]}"); I(f"v_lshrrev_b32 {t[5]}, 4, {t[1]}"); I(f"v_lshl_add_u32 {t[4]}, {t[4]}, 2, {t[5]}")
I(f"v_lshl_add_u32 {t[4]}, {t[4]}, 15, {t[2]}")
I(f"s_lshl_b32 {sT[5]}, {sJ}, 3"); I(f"s_add_u32 {sT[5]}, {sT[5]}, {sXCD}"); I(f"s_lshl_b32 {sT[5]}, {sT[5]}, 7")
I(f"s_add_u32 {sT[5]}, {sT[5]}, {WS_X1}"); I(f"s_add_u32 {sT[6]}, {sT[5]}, {2*32768}")
S.wait_all(vm=False)
I("s_barrier")
I(f"ds_read_b128 {O[0:4]}, {t[3]}"); I(f"ds_read_b128 {O[4:8]}, {t[3]} offset:{32*144}")
I(f"buffer_store_dwordx4 {O[0:4]}, {t[4]}, {SWS}, {sT[5]} offen sc1", tag="x1st")
I(f"buffer_store_dwordx4 {O[4:8]}, {t[4]}, {SWS}, {sT[6]} offen sc1", tag="x1st")
S.wait_tag("x1st")
I(f"s_lshl_b32 {sT[5]}, {sW}, 8"); I(f"s_lshl_b32 {sT[6]}, {sXCD}, 5"); I(f"s_add_u32 {sT[5]}, {sT[5]}, {sT[6]}"); I(f"s_add_u32 {sT[5]}, {sT[5]}, {sJ}")
I(f"s_lshl_b32 {sT[5]}, {sT[5]}, 4"); I(f"s_add_u32 {sT[5]}, {sT[5]}, {WS_F1}")
flag(S, sT[5], t[0:2])
stamp()
V.release(xa[0], xa[1], xf[0], xf[1], red, kN, dv, stt, rs, mo, vXNW, gr, vTR, O, C1, TWc, TWs, CN, vE, cs, ang)
for p in range(2):
    for tt in range(2):
        V.release(Aop[p][tt], P[p][tt], D1[p][tt][0], D1[p][tt][1])

I(f"s_cmp_ge_u32 {sJ}, 28")
I("s_cbranch_scc1 L_free_wprep")
F = S.fork(); tail.append(F)
F.label("L_free_wprep")
F.wait_all(force=True)
F.I("s_barrier")
wl = V.alloc(16); wo = V.alloc(8); wa = V.alloc(2)
F.I(f"v_mul_u32_u24 {wa[0]}, 2056, {vL15}"); F.I(f"v_lshl_add_u32 {wa[0]}, {vH}, 1, {wa[0]}")
F.I(f"s_lshl_b32 {sT[0]}, {sW}, 3"); F.I(f"v_add_u32 {wa[0]}, {sT[0]}, {wa[0]}")
F.I(f"v_lshlrev_b32 {wa[1]}, 13, {vH}"); F.I(f"v_lshl_add_u32 {wa[1]}, {vL15}, 4, {wa[1]}")
F.I(f"s_lshl_b32 {sT[1]}, {sWI}, 8"); F.I(f"s_lshl_b32 {sT[2]}, {sW}, 15"); F.I(f"s_add_u32 {sT[1]}, {sT[1]}, {sT[2]}"); F.I(f"s_add_u32 {sT[1]}, {sT[1]}, {WS_WT}")
def wprep_group(i, last=False):
    b = (i & 1) * 8
    for r in range(4):
        F.I(f"ds_read_u16 {wl[b+r]}, {wa[0]} offset:{r*514 + i*32}")
        F.I(f"ds_read_u16 {wl[b+4+r]}, {wa[0]} offset:{WI_OFF + r*514 + i*32}")
def wprep_store(i):
    b = (i & 1) * 8; o = wo[(i & 1) * 4:(i & 1) * 4 + 4]
    for r in range(4): F.I(f"v_lshl_or_b32 {o[r]}, {wl[b+4+r]}, 16, {wl[b+r]}")
    F.I(f"s_add_u32 {sT[2]}, {sT[1]}, {i*16*8192}")
    F.I(f"buffer_store_dwordx4 {o}, {wa[1]}, {SWS}, {sT[2]} offen sc1")
wprep_group(0)
for i in range(16):
    wprep_group(i + 1)
    wprep_store(i)
F.I(f"s_cmp_lg_u32 {sW}, 0")
F.I("s_cbranch_scc1 L_wprep_done")
F.I("s_mov_b64 exec, 0xffff")
wprep_store(16)
F.I("s_mov_b64 exec, -1")
F.label("L_wprep_done")
F.wait_all(force=True)
F.I(f"s_lshl_b32 {sT[5]}, {sWI}, 4"); F.I(f"s_lshl_b32 {sT[6]}, {sW}, 2"); F.I(f"s_add_u32 {sT[5]}, {sT[5]}, {sT[6]}"); F.I(f"s_add_u32 {sT[5]}, {sT[5]}, {WS_FW}")
flag(F, sT[5], t[0:2])
F.wait_all(force=True)
F.I("s_barrier")
F.nop(8)
F.I("s_branch L_join")
V.release(wl, wo, wa)

S.wait_all(force=True)
vXR = V.alloc(4); vWR = V.alloc(4)
sWRr, sWF = sT[17], sT[18]
I(f"s_and_b32 {sWRr}, {sW}, 1"); I(f"s_lshr_b32 {sWF}, {sW}, 1")
vHH = V.alloc(); vL31 = V.alloc(); vRp = V.alloc(); vTRL = V.alloc()
I(f"v_lshrrev_b32 {vHH}, 5, {vL}"); I(f"v_and_b32 {vL31}, 31, {vL}"); I(f"v_bfe_u32 {vRp}, {vL}, 2, 2")
I(f"v_and_b32 {t[0]}, 1, {vH}"); I(f"v_lshlrev_b32 {t[0]}, 5, {t[0]}"); I(f"v_and_b32 {t[1]}, 3, {vL}"); I(f"v_lshl_add_u32 {vTRL}, {t[1]}, 3, {t[0]}")
I(f"s_lshl_b32 {sT[0]}, {sWRr}, 13"); I(f"v_lshlrev_b32 {t[0]}, 7, {vL31}"); I(f"v_add_u32 {t[0]}, {sT[0]}, {t[0]}")
I(f"v_bfe_u32 {t[1]}, {vL}, 1, 3"); I(f"v_xor_b32 {t[1]}, {t[1]}, {vHH}")
I(f"s_lshl_b32 {sT[0]}, {sWRr}, 1"); I(f"v_xor_b32 {t[1]}, {sT[0]}, {t[1]}")
I(f"v_lshl_add_u32 {vXR[0]}, {t[1]}, 4, {t[0]}")
for k in range(1, 4): I(f"v_xor_b32 {vXR[k]}, {k*32}, {vXR[0]}")
I(f"v_lshl_add_u32 {t[0]}, {vHH}, 3, {vRp}"); I(f"v_lshl_add_u32 {t[0]}, {t[0]}, 8, {vTRL}")
I(f"s_lshl_b32 {sT[0]}, {sWF}, 1"); I(f"v_xor_b32 {t[1]}, {sT[0]}, {vRp}")
I(f"v_lshl_add_u32 {t[0]}, {t[1]}, 6, {t[0]}")
I(f"s_lshl_b32 {sT[0]}, {sWRr}, 12"); I(f"s_add_u32 {sT[1]}, {sT[0]}, 16384"); I(f"s_sub_u32 {sT[2]}, 16384, {sT[0]}")
I(f"v_add_u32 {vWR[0]}, {sT[1]}, {t[0]}"); I(f"v_add_u32 {vWR[2]}, {sT[2]}, {t[0]}")
I(f"v_xor_b32 {vWR[1]}, 64, {vWR[0]}"); I(f"v_xor_b32 {vWR[3]}, 64, {vWR[2]}")
ONES = V.alloc(4)
I(f"v_and_b32 {t[0]}, 1, {vH}"); I(f"v_cmp_eq_u32 vcc, {t[0]}, {vL15}")
I(f"v_mov_b32 {t[1]}, 0x3f803f80")
for r in range(4): I(f"v_cndmask_b32 {ONES[r]}, 0, {t[1]}, vcc")
acc = [[V.alloc(16) for b in range(2)] for a in range(2)]
csa = [V.alloc(4) for a in range(2)]
fx = [[V.alloc(4) for b in range(2)] for s in range(2)]
fw_ = [[V.alloc(4) for a in range(2)] for s in range(2)]
def g1_reads(step):
    c, k = divmod(step, 4); s = step & 1
    sl = (c & 1) * 32768
    for a in range(2):
        for j in range(2):
            I(f"ds_read_b64_tr_b16 {fw_[s][a][2*j:2*j+2]}, {vWR[2*(k&1)+a]} offset:{sl + k*4096 + j*1024}")
    for b in range(2):
        I(f"ds_read_b128 {fx[s][b]}, {vXR[k]} offset:{sl + b*4096}")
def g1_mfma(step):
    s = step & 1; k = step & 3
    for a in range(2):
        for b in range(2):
            I(f"v_mfma_f32_32x32x16_bf16 {acc[a][b]}, {fw_[s][a]}, {fx[s][b]}, {'0' if step == 0 else acc[a][b]}")
    if k % 2 == 0:
        for a in range(2):
            I(f"v_mfma_f32_16x16x32_bf16 {csa[a]}, {fw_[s][a]}, {ONES}, {'0' if step == 0 else csa[a]}")
I("s_barrier")
g1_reads(0)
for step in range(32):
    nxt = step + 1
    if nxt < 32:
        if nxt % 4 == 0:
            c = nxt // 4
            S.wait_tag(f"g1c{c}")
            S.wait_all(vm=False)
            I("s_barrier")
            if c + 3 < 8: g1_dma(S, c + 3)
            if c % 2 == 0:
                for r in list(vXR) if False else [vXR[i] for i in range(4)] + [vWR[i] for i in range(4)]:
                    I(f"v_xor_b32 {r}, 0x10000, {r}")
        g1_reads(nxt)
    g1_mfma(step)
stamp()
I(f"v_lshlrev_b32 {t[0]}, 6, {vL15}"); I(f"v_lshl_add_u32 {t[0]}, {vH}, 4, {t[0]}")
I(f"s_lshl_b32 {sT[0]}, {sW}, 8"); I(f"s_add_u32 {sT[0]}, {sT[0]}, {L_CS}"); I(f"v_add_u32 {t[0]}, {sT[0]}, {t[0]}")
I("s_mov_b32 exec_lo, 0x00030003"); I("s_mov_b32 exec_hi, 0x00030003")
for a in range(2): I(f"ds_write_b128 {t[0]}, {csa[a]} offset:{a*128}")
I("s_mov_b64 exec, -1")
vRowOff = V.alloc()
I(f"v_lshrrev_b32 {t[1]}, 3, {vL31}"); I(f"v_lshlrev_b32 {t[1]}, 5, {t[1]}")
I(f"v_bfe_u32 {t[2]}, {vL}, 2, 1"); I(f"v_lshl_add_u32 {t[1]}, {t[2]}, 4, {t[1]}")
I(f"v_and_b32 {t[2]}, 3, {vL}"); I(f"v_add_u32 {vRowOff}, {t[1]}, {t[2]}")
sTT = sT[9]
I(f"s_lshl_b32 {sT[0]}, {sA}, 1"); I(f"s_add_u32 {sT[0]}, {sT[0]}, {sWRr}")
I(f"s_lshl_b32 {sTT}, {sO}, 2"); I(f"s_add_u32 {sTT}, {sTT}, {sT[0]}")
I(f"s_lshl_b32 {sT[0]}, {sT[0]}, 2"); I(f"s_lshl_b32 {sT[1]}, {sO}, 8"); I(f"s_add_u32 {sT[0]}, {sT[0]}, {sT[1]}")
I(f"s_lshl_b32 {sT[0]}, {sT[0]}, 3"); I(f"s_add_u32 {sT[0]}, {sT[0]}, {WS_ST}")
I(f"v_lshlrev_b32 {t[3]}, 3, {vRowOff}"); I(f"v_add_u32 {t[3]}, {sT[0]}, {t[3]}")
I(f"v_add_u32 {t[4]}, 4, {t[3]}"); poll_simple(S, t[4])
I(f"v_add_u32 {t[4]}, {1024+4}, {t[3]}"); poll_simple(S, t[4])
mm = V.alloc(4)
I(f"buffer_load_dword {mm[0]}, {t[3]}, {SWS}, 0 offen sc1")
I(f"buffer_load_dword {mm[2]}, {t[3]}, {SWS}, 0 offen offset:1024 sc1")
S.wait_all(vm=False)
I("s_barrier")
csv = V.alloc(32); cst = V.alloc(32)
I(f"s_lshl_b32 {sT[0]}, {sWF}, 9"); I(f"s_add_u32 {sT[0]}, {sT[0]}, {L_CS}")
I(f"v_lshlrev_b32 {t[0]}, 4, {vHH}"); I(f"v_add_u32 {t[0]}, {sT[0]}, {t[0]}")
for a in range(2):
    for g in range(4):
        k = (a * 4 + g) * 4
        I(f"ds_read_b128 {csv[k:k+4]}, {t[0]} offset:{a*128 + g*32}")
        I(f"ds_read_b128 {cst[k:k+4]}, {t[0]} offset:{256 + a*128 + g*32}")
for k in range(0, 32, 2): I(f"v_pk_add_f32 {csv[k:k+2]}, {csv[k:k+2]}, {cst[k:k+2]}")
for b in range(2): I(f"v_and_b32 {mm[2*b]}, 0xffff0000, {mm[2*b]}")
I(f"s_mul_i32 {sT[0]}, {sTT}, 229376"); I(f"s_lshl_b32 {sT[1]}, {sFB}, 14"); I(f"s_add_u32 {sT[0]}, {sT[0]}, {sT[1]}")
I(f"s_lshl_b32 {sT[1]}, {sWF}, 13"); I(f"s_add_u32 {sT[0]}, {sT[0]}, {sT[1]}"); I(f"s_add_u32 {sT[0]}, {sT[0]}, {WS_H}")
I(f"s_add_u32 {sT[1]}, {sT[0]}, 4096")
for a in range(2):
    for kp in range(2):
        for b in range(2):
            o = cst[(kp * 2 + b) * 4 + a * 16:(kp * 2 + b) * 4 + a * 16 + 4]
            for e in range(4):
                rr = 8 * kp + 2 * e
                I(f"v_pk_fma_f32 {acc[a][b][rr:rr+2]}, {csv[a*16+rr:a*16+rr+2]}, {mm[2*b:2*b+2]}, {acc[a][b][rr:rr+2]} op_sel_hi:[1,0,1] neg_lo:[1,0,0] neg_hi:[1,0,0]")
            for e in range(4):
                rr = 8 * kp + 2 * e
                I(f"v_cvt_pk_bf16_f32 {o[e]}, {acc[a][b][rr]}, {acc[a][b][rr+1]}")
            for e in range(4): I(f"v_pk_max_i16 {o[e]}, {o[e]}, 0")
            I(f"buffer_store_dwordx4 {o}, {vL16}, {SWS}, {sT[a]} offen offset:{kp*2048 + b*1024} sc1", tag="hst")
S.wait_tag("hst")
I(f"s_lshl_b32 {sT[5]}, {sTT}, 9"); I(f"s_lshl_b32 {sT[6]}, {sFB}, 5"); I(f"s_add_u32 {sT[5]}, {sT[5]}, {sT[6]}")
I(f"s_lshl_b32 {sT[6]}, {sWF}, 4"); I(f"s_add_u32 {sT[5]}, {sT[5]}, {sT[6]}"); I(f"s_add_u32 {sT[5]}, {sT[5]}, {WS_F2}")
flag(S, sT[5], t[0:2])
S.wait_all(force=True)
S.nop(8)
V.release(vXR, vWR, ONES, csv, cst, mm, vXD, vW1D, vHH, vL31, vRp, vTRL, vRowOff)
for a in range(2):
    V.release(csa[a], acc[a][0], acc[a][1], fx[a][0], fx[a][1], fw_[a][0], fw_[a][1])
S.label("L_join")
stamp()

vHH = V.alloc(); vL31 = V.alloc(); vRp = V.alloc(); vTRL = V.alloc(); vRowOff = V.alloc()
I(f"v_lshrrev_b32 {vHH}, 5, {vL}"); I(f"v_and_b32 {vL31}, 31, {vL}"); I(f"v_bfe_u32 {vRp}, {vL}, 2, 2")
I(f"v_and_b32 {t[0]}, 1, {vH}"); I(f"v_lshlrev_b32 {t[0]}, 5, {t[0]}"); I(f"v_and_b32 {t[1]}, 3, {vL}"); I(f"v_lshl_add_u32 {vTRL}, {t[1]}, 3, {t[0]}")
I(f"v_lshrrev_b32 {t[1]}, 3, {vL31}"); I(f"v_lshlrev_b32 {t[1]}, 5, {t[1]}")
I(f"v_bfe_u32 {t[2]}, {vL}, 2, 1"); I(f"v_lshl_add_u32 {t[1]}, {t[2]}, 4, {t[1]}")
I(f"v_and_b32 {t[2]}, 3, {vL}"); I(f"v_add_u32 {vRowOff}, {t[1]}, {t[2]}")
for tt in range(2):
    for p in range(2):
        for r in range(4):
            if r % 2 == 0: I(f"v_mov_b32 {F32[1][tt][p][r]}, {F32[0][tt][p][r]}")
            else: I(f"v_xor_b32 {F32[1][tt][p][r]}, 0x80008000, {F32[0][tt][p][r]}")
F64 = [[V.alloc(4) for p in range(2)] for u in range(4)]
TFc = V.alloc(8); TFs = V.alloc(8); TIc = V.alloc(8); TIs = V.alloc(8)
fk = V.alloc(); a0 = V.alloc(); fw16 = V.alloc()
I(f"s_lshl_b32 {sT[0]}, {sW}, 4"); I(f"v_cvt_f32_u32 {fw16}, {sT[0]}")
I(f"v_add_f32 {fk}, {fw16}, {fq}"); I(f"v_mul_f32 {fk}, {fl(1/64)}, {fk}")
I(f"v_mul_f32 {a0}, {fk}, {fh4}")
for u in range(4):
    for r in range(4):
        I(f"v_fmamk_f32 {t[0]}, {fk}, {fl(16*u+r)}, {a0}")
        I(f"v_cos_f32 {t[1]}, {t[0]}"); I(f"v_sin_f32 {t[2]}, {t[0]}")
        if u < 2:
            I(f"v_mul_f32 {t[3]}, {fl(1/32)}, {t[0]}")
        I(f"v_cvt_pk_bf16_f32 {F64[u][0][r]}, {t[1]}, {t[2]}")
        I(f"v_cvt_pk_bf16_f32 {F64[u][1][r]}, -{t[2]}, {t[1]}")
        if u < 2:
            I(f"v_cos_f32 {TFc[4*u+r]}, {t[3]}"); I(f"v_sin_f32 {TFs[4*u+r]}, {t[3]}")
I(f"v_add_f32 {t[4]}, {fw16}, {fh4}")
for tt in range(2):
    I(f"v_add_f32 {t[5]}, {fl(16.0*tt)}, {fq}"); I(f"v_mul_f32 {t[5]}, {fl(1/2048)}, {t[5]}")
    I(f"v_mul_f32 {t[6]}, {t[5]}, {t[4]}")
    for r in range(4):
        I(f"v_fmamk_f32 {t[0]}, {t[5]}, {fl(r)}, {t[6]}")
        I(f"v_cos_f32 {TIc[4*tt+r]}, {t[0]}"); I(f"v_sin_f32 {TIs[4*tt+r]}, {t[0]}")
V.release(fk, a0, fw16)
I(f"s_lshr_b32 {sT[0]}, {sQ}, 4"); I(f"s_bfe_u32 {sT[1]}, {sQ}, 0x10002"); I(f"s_lshl_b32 {sT[1]}, {sT[1]}, 4")
I(f"s_add_u32 {sT[0]}, {sT[0]}, {sT[1]}"); I(f"s_lshr_b32 {sT[0]}, {sT[0]}, 3")
I(f"s_lshl_b32 {sT[0]}, {sT[0]}, 12"); I(f"s_lshl_b32 {sT[1]}, {sW}, 10"); I(f"s_add_u32 {sT[0]}, {sT[0]}, {sT[1]}"); I(f"s_add_u32 {sT[0]}, {sT[0]}, {WS_F1}")
I(f"v_add_u32 {t[7]}, {sT[0]}, {vL16}")
poll_simple(S, t[7])
I(f"v_lshlrev_b32 {t[0]}, 10, {vL15}"); I(f"v_lshl_add_u32 {t[0]}, {vHH}, 7, {t[0]}")
I(f"v_and_b32 {t[1]}, 1, {vH}"); I(f"v_lshl_add_u32 {t[0]}, {t[1]}, 4, {t[0]}")
I(f"s_lshr_b32 {sT[0]}, {sQ}, 2"); I(f"s_lshl_b32 {sT[0]}, {sT[0]}, 15"); I(f"s_and_b32 {sT[1]}, {sQ}, 3"); I(f"s_lshl_b32 {sT[1]}, {sT[1]}, 5")
I(f"s_add_u32 {sT[0]}, {sT[0]}, {sT[1]}"); I(f"s_lshl_b32 {sT[1]}, {sW}, 8"); I(f"s_add_u32 {sT[0]}, {sT[0]}, {sT[1]}"); I(f"s_add_u32 {sT[0]}, {sT[0]}, {WS_X1}")
I(f"s_add_u32 {sT[1]}, {sT[0]}, 16384")
I(f"s_lshl_b32 {sT[2]}, {sW}, 10")
for tt in range(2):
    I(f"s_add_u32 m0, {sT[2]}, {L_XC + tt*4096}")
    I(f"buffer_load_dwordx4 {t[0]}, {SWS}, {sT[tt]} offen sc1 lds", tag="xc")
I(f"v_lshlrev_b32 {t[7]}, 4, {vL31}"); I(f"v_add_u32 {t[7]}, {WS_FW}, {t[7]}")
poll_simple(S, t[7], width=4)
Wv = V.alloc(8); vKs = V.alloc()
I(f"v_lshl_add_u32 {vKs}, {vH}, 8, {vL15}"); I(f"s_lshl_b32 {sT[0]}, {sW}, 4"); I(f"v_add_u32 {vKs}, {sT[0]}, {vKs}")
I(f"v_lshlrev_b32 {t[0]}, 2, {vKs}")
I(f"s_lshl_b32 {sT[0]}, {sQ}, 13"); I(f"s_add_u32 {sT[0]}, {sT[0]}, {WS_WT}"); I(f"s_add_u32 {sT[1]}, {sT[0]}, 4096")
for tau in range(2):
    for r in range(4):
        I(f"buffer_load_dword {Wv[4*tau+r]}, {t[0]}, {SWS}, {sT[tau]} offen offset:{256*r} sc1")
S.wait_tag("xc")
I("s_barrier")
I(f"s_or_b32 {sT[0]}, s2, {sW}"); I(f"s_cmp_lg_u32 {sT[0]}, 0"); I("s_cbranch_scc1 L_noepoch")
I(f"v_mov_b32 {t[0]}, {sTAG}"); I(f"v_mov_b32 {t[1]}, 0"); I("s_mov_b64 exec, 1")
I(f"buffer_store_dword {t[0]}, {t[1]}, {SWS}, 0 offen sc1", counted=False)
I("s_mov_b64 exec, -1")
S.label("L_noepoch")
FR = [[V.alloc(4) for u in range(4)] for tt in range(2)]
DD = [[V.alloc(4) for p in range(2)] for tt in range(2)]
PP = [V.alloc(4) for tt in range(2)]
vLX = V.alloc()
I(f"v_add_u32 {vLX}, {S4}, {vL16}")
def big_step(base):
    for tt in range(2):
        for u in range(4): I(f"ds_read_b128 {FR[tt][u]}, {vLX} offset:{base - S4 + (tt*4+u)*1024}")
    for tt in range(2):
        for u in range(4):
            for p in range(2):
                I(f"v_mfma_f32_16x16x32_bf16 {DD[tt][p]}, {FR[tt][u]}, {F64[u][p]}, {'0' if u == 0 else DD[tt][p]}")
big_step(L_XC)
for tt in range(2):
    for r in range(4): cmul_tw(S, DD[tt][0][r], DD[tt][1][r], TFc[4*tt+r], TFs[4*tt+r], t[2*(r&1):2*(r&1)+2], PP[tt][r])
for tau in range(2):
    for p in range(2):
        for tt in range(2):
            I(f"v_mfma_f32_16x16x32_bf16 {DD[tau][p]}, {F32[tau][tt][p]}, {PP[tt]}, {'0' if tt == 0 else DD[tau][p]}")
I(f"s_cmp_eq_u32 {sQ}, 0")
I("s_cbranch_scc1 L_special")
F = S.fork(); tail.append(F)
for tau in range(2):
    for r in range(4):
        wr_, wi_ = t[4], t[5]; o = t[2*(r&1):2*(r&1)+2]
        ur, ui = DD[tau][0][r], DD[tau][1][r]
        I(f"v_lshlrev_b32 {wr_}, 16, {Wv[4*tau+r]}"); I(f"v_and_b32 {wi_}, 0xffff0000, {Wv[4*tau+r]}")
        I(f"v_mul_f32 {o[0]}, {ur}, {wr_}"); I(f"v_mul_f32 {o[1]}, {ur}, {wi_}")
        I(f"v_fma_f32 {o[0]}, -{ui}, {wi_}, {o[0]}"); I(f"v_fmac_f32 {o[1]}, {ui}, {wr_}")
        I(f"v_cvt_pk_bf16_f32 {PP[tau][r]}, {o[0]}, -{o[1]}")
S.nop(2)
S.label("L_special_done")
F.label("L_special")
F.nop(10)
sx = V.alloc(24); sv = V.alloc(16); sa = V.alloc(4)
F.I(f"v_lshlrev_b32 {sa[0]}, 3, {vKs}"); F.I(f"v_add_u32 {sa[0]}, {L_SP}, {sa[0]}")
for tau in range(2):
    for r in range(4):
        F.I(f"v_mov_b32 {sa[2]}, {DD[tau][0][r]}"); F.I(f"v_mov_b32 {sa[3]}, {DD[tau][1][r]}")
        F.I(f"ds_write_b64 {sa[0]}, {sa[2:4]} offset:{(16*tau + r)*512}")
F.I(f"v_lshlrev_b32 {sa[1]}, 2, {vKs}")
F.I(f"s_mov_b32 {sT[0]}, {WS_WT + 256*8192}"); F.I(f"s_mov_b32 {sT[1]}, {WS_WT + 256*8192 + 4096}"); F.I(f"s_mov_b32 {sT[2]}, {WS_WT}")
for tau in range(2):
    for r in range(4):
        F.I(f"buffer_load_dword {sx[4*tau+r]}, {sa[1]}, {SWS}, {sT[tau]} offen offset:{256*r} sc1")
F.wait_all(vm=False)
F.I("s_barrier")
for tau in range(2):
    for r in range(4):
        k = 4 * tau + r
        F.I(f"v_sub_u32 {sa[2]}, {2048 - 64*(16*tau+r)}, {vKs}"); F.I(f"v_and_b32 {sa[2]}, 2047, {sa[2]}")
        F.I(f"v_lshlrev_b32 {sa[3]}, 2, {sa[2]}")
        F.I(f"buffer_load_dword {sx[8+k]}, {sa[3]}, {SWS}, {sT[2]} offen sc1")
        F.I(f"buffer_load_dword {sx[16+k]}, {sa[3]}, {SWS}, {sT[0]} offen sc1")
        F.I(f"v_lshlrev_b32 {sa[2]}, 3, {sa[2]}"); F.I(f"v_add_u32 {sa[2]}, {L_SP}, {sa[2]}")
        F.I(f"ds_read_b64 {sv[2*k:2*k+2]}, {sa[2]}")
q8 = V.alloc(8)
for tau in range(2):
    for r in range(4):
        k = 4 * tau + r
        ur, ui = DD[tau][0][r], DD[tau][1][r]; vr, vi = sv[2*k], sv[2*k+1]
        def lo(d, s): F.I(f"v_lshlrev_b32 {d}, 16, {s}")
        def hi(d, s): F.I(f"v_and_b32 {d}, 0xffff0000, {s}")
        lo(q8[0], Wv[k]); hi(q8[1], Wv[k]); lo(q8[2], sx[8+k]); hi(q8[3], sx[8+k])
        F.I(f"v_add_f32 {q8[0]}, {q8[0]}, {q8[2]}"); F.I(f"v_sub_f32 {q8[1]}, {q8[1]}, {q8[3]}")
        lo(q8[2], sx[k]); hi(q8[3], sx[k]); lo(q8[4], sx[16+k]); hi(q8[5], sx[16+k])
        F.I(f"v_add_f32 {q8[2]}, {q8[2]}, {q8[4]}"); F.I(f"v_sub_f32 {q8[3]}, {q8[3]}, {q8[5]}")
        F.I(f"v_add_f32 {q8[4]}, {ur}, {vr}"); F.I(f"v_sub_f32 {q8[5]}, {ui}, {vi}")
        F.I(f"v_sub_f32 {q8[6]}, {ur}, {vr}"); F.I(f"v_add_f32 {q8[7]}, {ui}, {vi}")
        F.I(f"v_mul_f32 {t[0]}, {q8[0]}, {q8[4]}"); F.I(f"v_fma_f32 {t[0]}, -{q8[1]}, {q8[5]}, {t[0]}")
        F.I(f"v_fmac_f32 {t[0]}, {q8[2]}, {q8[6]}"); F.I(f"v_fma_f32 {t[0]}, -{q8[3]}, {q8[7]}, {t[0]}")
        F.I(f"v_mul_f32 {t[1]}, {q8[0]}, {q8[5]}"); F.I(f"v_fmac_f32 {t[1]}, {q8[1]}, {q8[4]}")
        F.I(f"v_fmac_f32 {t[1]}, {q8[2]}, {q8[7]}"); F.I(f"v_fmac_f32 {t[1]}, {q8[3]}, {q8[6]}")
        F.I(f"v_mul_f32 {t[0]}, {fl(0.125)}, {t[0]}"); F.I(f"v_mul_f32 {t[1]}, {fl(0.125)}, {t[1]}")
        F.I(f"v_cvt_pk_bf16_f32 {PP[tau][r]}, {t[0]}, -{t[1]}")
F.wait_all(force=True)
F.nop(2)
F.I("s_branch L_special_done")
V.release(sx, sv, sa, q8)
for tt in range(2):
    for p in range(2):
        for tau in range(2):
            I(f"v_mfma_f32_16x16x32_bf16 {DD[tt][p]}, {PP[tau]}, {F32[tt][tau][p]}, {'0' if tau == 0 else DD[tt][p]}")
P3 = [FR[0][0], FR[0][1]]
I(f"s_lshl_b32 {sT[0]}, {sW}, 10"); I(f"v_add_u32 {t[6]}, {sT[0]}, {vLX}")
for tt in range(2):
    for r in range(4): cmul_tw(S, DD[tt][0][r], DD[tt][1][r], TIc[4*tt+r], TIs[4*tt+r], t[2*(r&1):2*(r&1)+2], P3[tt][r])
    I(f"ds_write_b128 {t[6]}, {P3[tt]} offset:{L_EX - S4 + tt*4096}")
S.wait_all(vm=False)
I("s_barrier")
big_step(L_EX)
I(f"s_lshl_b32 {sT[0]}, {sQ}, 13"); I(f"s_lshl_b32 {sT[1]}, {sW}, 10"); I(f"s_add_u32 {sT[0]}, {sT[0]}, {sT[1]}"); I(f"s_add_u32 {sT[0]}, {sT[0]}, {WS_Y1}")
I(f"s_add_u32 {sT[1]}, {sT[0]}, 4096")
for p in range(2):
    for tt in range(2):
        for e in range(2): I(f"v_cvt_pk_bf16_f32 {PP[p][2*tt+e]}, {DD[tt][p][2*e]}, {DD[tt][p][2*e+1]}")
    I(f"buffer_store_dwordx4 {PP[p]}, {vL16}, {SWS}, {sT[p]} offen sc1", tag="y1st")
S.wait_tag("y1st")
I(f"s_lshl_b32 {sT[5]}, {sW}, 8"); I(f"s_add_u32 {sT[5]}, {sT[5]}, {sQ}"); I(f"s_lshl_b32 {sT[5]}, {sT[5]}, 4"); I(f"s_add_u32 {sT[5]}, {sT[5]}, {WS_F3}")
flag(S, sT[5], t[0:2])
stamp()
V.release(TFc, TFs, TIc, TIs, Wv, vKs, vLX, PP[0], PP[1], fq, fh4)
for u in range(4): V.release(F64[u][0], F64[u][1], FR[0][u], FR[1][u])
for a in range(2):
    for b in range(2): V.release(DD[a][b], F32[a][b][0], F32[a][b][1])

vD8 = V.alloc(); vW2D = V.alloc(4); vYD = V.alloc(4); vTRa = V.alloc(2); vW2R = V.alloc(4)
I(f"v_and_b32 {t[0]}, 1, {vH}"); I(f"v_lshlrev_b32 {t[0]}, 2, {t[0]}"); I(f"v_and_b32 {t[1]}, 7, {vL}"); I(f"v_xor_b32 {t[0]}, {t[0]}, {t[1]}")
I(f"v_lshlrev_b32 {vD8}, 4, {t[0]}"); I(f"v_lshrrev_b32 {t[1]}, 3, {vL}")
I(f"v_lshl_add_u32 {vW2D[0]}, {t[1]}, 10, {vD8}"); I(f"v_lshl_add_u32 {vYD[0]}, {t[1]}, 12, {vD8}")
for m in range(1, 4):
    I(f"v_add_u32 {vW2D[m]}, {m*(8192-1024)}, {vW2D[0]}"); I(f"v_add_u32 {vYD[m]}, {m*(32768-1024)}, {vYD[0]}")
I(f"v_lshl_add_u32 {t[0]}, {vHH}, 2, {vRp}"); I(f"v_lshl_add_u32 {t[0]}, {t[0]}, 7, {vTRL}")
I(f"v_lshrrev_b32 {t[1]}, 1, {vRp}"); I(f"v_lshl_add_u32 {vTRa[0]}, {t[1]}, 6, {t[0]}"); I(f"v_xor_b32 {vTRa[1]}, 64, {vTRa[0]}")
sW8 = sT[17]; sW2b = sT[18]
I(f"s_lshl_b32 {sW8}, {sW}, 13")
I(f"s_add_u32 {sT[0]}, {sW8}, 65536")
for a in range(2):
    I(f"v_add_u32 {vW2R[a]}, {sW8}, {vTRa[a]}"); I(f"v_add_u32 {vW2R[2+a]}, {sT[0]}, {vTRa[a]}")
I(f"s_mul_i32 {sW2b}, {sW}, {448*1024}"); I(f"s_lshl_b32 {sT[0]}, {sCB}, 7"); I(f"s_add_u32 {sW2b}, {sW2b}, {sT[0]}")
W2F = [[A_.alloc(4) for a in range(2)] for k in range(28)]
def w2_dma(st, p):
    sl = (p & 3) * 32768
    for g in range(2):
        st.I(f"s_add_u32 m0, {sW8}, {sl + g*4096}")
        st.I(f"s_add_u32 {sT[0]}, {sW2b}, {(64*p + 32*g)*1024}")
        for m in range(4):
            st.I(f"buffer_load_dwordx4 {vW2D[m]}, {SW2}, {sT[0]} offen offset:{m*1024} lds", tag=f"w2p{p}")
def w2_drain(p):
    sl = p & 3
    S.wait_tag(f"w2p{p}")
    for kl in range(4):
        for a in range(2):
            for j in range(2):
                I(f"ds_read_b64_tr_b16 {W2F[4*p+kl][a][2*j:2*j+2]}, {vW2R[2*(sl>>1)+a]} offset:{(sl&1)*32768 + kl*2048 + j*1024}", tag=f"w2d{p}")
for p in range(4): w2_dma(S, p)
for p in range(7):
    w2_drain(p)
    if p + 4 < 7:
        S.wait_tag(f"w2d{p}")
        w2_dma(S, p + 4)
stamp()
sT2 = sT[9]
I(f"s_lshl_b32 {sT2}, {sXCD}, 2"); I(f"s_add_u32 {sT2}, {sT2}, {sHQ}")
I(f"s_lshl_b32 {sT[0]}, {sT2}, 9"); I(f"s_mul_i32 {sT[1]}, {sW}, 112"); I(f"s_add_u32 {sT[0]}, {sT[0]}, {sT[1]}"); I(f"s_add_u32 {sT[0]}, {sT[0]}, {WS_F2}")
I(f"v_min_u32 {t[7]}, 6, {vL}"); I(f"v_lshlrev_b32 {t[7]}, 4, {t[7]}"); I(f"v_add_u32 {t[7]}, {sT[0]}, {t[7]}")
poll_simple(S, t[7])
stamp()
yac = [[V.alloc(16) for b in range(2)] for a in range(2)]
NB = 12
hb = [[V.alloc(4) for b in range(2)] for k in range(NB)]
sH = sT[8]
I(f"s_mul_i32 {sH}, {sT2}, 229376"); I(f"s_mul_i32 {sT[0]}, {sW}, 57344"); I(f"s_add_u32 {sH}, {sH}, {sT[0]}"); I(f"s_add_u32 {sH}, {sH}, {WS_H}")
def h_load(k):
    if k % 2 == 0 and k: I(f"s_add_u32 {sH}, {sH}, 4096")
    for b in range(2):
        I(f"buffer_load_dwordx4 {hb[k % NB][b]}, {vL16}, {SWS}, {sH} offen offset:{(k%2)*2048 + b*1024} sc1")
for k in range(NB): h_load(k)
for k in range(28):
    for a in range(2):
        for b in range(2):
            I(f"v_mfma_f32_32x32x16_bf16 {yac[a][b]}, {W2F[k][a]}, {hb[k % NB][b]}, {'0' if k == 0 else yac[a][b]}")
    if k + NB < 28: h_load(k + NB)
for k in range(NB): V.release(hb[k][0], hb[k][1])
stamp()
I(f"s_lshr_b32 {sT[0]}, {sXCD}, 1"); I(f"s_lshl_b32 {sT[0]}, {sT[0]}, 12"); I(f"s_lshl_b32 {sT[1]}, {sW}, 10"); I(f"s_add_u32 {sT[0]}, {sT[0]}, {sT[1]}"); I(f"s_add_u32 {sT[0]}, {sT[0]}, {WS_F3}")
I(f"v_add_u32 {t[7]}, {sT[0]}, {vL16}")
poll_simple(S, t[7])
I("s_barrier")
I(f"s_lshr_b32 {sT[1]}, {sXCD}, 1"); I(f"s_lshl_b32 {sT[1]}, {sT[1]}, 10"); I(f"s_lshl_b32 {sT[2]}, {sHQ}, 8"); I(f"s_add_u32 {sT[1]}, {sT[1]}, {sT[2]}")
I(f"s_and_b32 {sT[2]}, {sXCD}, 1"); I(f"s_lshl_b32 {sT[2]}, {sT[2]}, 7"); I(f"s_add_u32 {sT[1]}, {sT[1]}, {sT[2]}")
I(f"s_lshl_b32 {sT[2]}, {sW}, 19"); I(f"s_add_u32 {sT[1]}, {sT[1]}, {sT[2]}"); I(f"s_add_u32 {sT[1]}, {sT[1]}, {WS_Y1}")
I(f"s_lshl_b32 {sT[2]}, {sW}, 14")
for g in range(4):
    I(f"s_add_u32 m0, {sT[2]}, {L_YB + g*4096}")
    I(f"s_add_u32 {sT[0]}, {sT[1]}, {g*32*4096}")
    for m in range(4):
        I(f"buffer_load_dwordx4 {vYD[m]}, {SWS}, {sT[0]} offen offset:{m*1024} sc1 lds", tag="yb")
sAD, sKH = sT[10], sT[11]
I(f"s_and_b32 {sAD}, {sW}, 1"); I(f"s_lshr_b32 {sKH}, {sW}, 1")
vOA = V.alloc(2)
I(f"v_lshlrev_b32 {t[0]}, 5, {vHH}"); I(f"v_and_b32 {t[1]}, 1, {vH}"); I(f"v_lshl_add_u32 {t[0]}, {t[1]}, 4, {t[0]}"); I(f"v_add_u32 {t[0]}, {t[0]}, {vRp}")
I(f"v_and_b32 {t[1]}, 3, {vL}"); I(f"v_lshlrev_b32 {t[1]}, 4, {t[1]}"); I(f"v_lshl_add_u32 {vOA[0]}, {t[0]}, 10, {t[1]}")
I(f"v_add_u32 {vOA[1]}, {65536-1024}, {vOA[0]}")
sOB = sT[12]
I(f"s_lshl_b32 {sOB}, {sXCD}, 8"); I(f"s_lshl_b32 {sT[0]}, {sKH}, 7"); I(f"s_add_u32 {sOB}, {sOB}, {sT[0]}"); I(f"s_lshl_b32 {sT[0]}, {sHQ}, 2"); I(f"s_add_u32 {sOB}, {sOB}, {sT[0]}")
I(f"s_lshl_b32 {sT[3]}, {sOB}, 3"); I(f"s_add_u32 {sT[3]}, {sT[3]}, {WS_ST}")
I(f"s_lshl_b32 {sOB}, {sOB}, 10"); I(f"s_lshl_b32 {sT[0]}, {sCB}, 7"); I(f"s_add_u32 {sOB}, {sOB}, {sT[0]}"); I(f"s_lshl_b32 {sT[0]}, {sAD}, 6"); I(f"s_add_u32 {sOB}, {sOB}, {sT[0]}")
I(f"s_add_u32 m0, {sW8}, 65536")
for m in range(2): I(f"buffer_load_dwordx4 {vOA[m]}, {SX}, {sOB} offen offset:{m*1024} lds", tag="xt")
vRS = V.alloc()
I(f"v_lshlrev_b32 {t[0]}, 3, {vRowOff}")
I(f"buffer_load_dword {vRS}, {t[0]}, {SWS}, {sT[3]} offen sc1")
vYW = V.alloc()
I(f"v_add_u32 {vYW}, {sW8}, {vL16}")
for a in range(2):
    for b in range(2):
        for g in range(4):
            I(f"ds_write_b128 {vYW}, {yac[a][b][4*g:4*g+4]} offset:{b*32768 + a*4096 + g*1024}")
G = [V.alloc(4) for k in range(16)]
fd = V.alloc(); ab = V.alloc(); vSel = V.alloc(); vMsk = V.alloc()
I(f"s_lshl_b32 {sT[0]}, {sCB}, 6"); I(f"s_lshl_b32 {sT[1]}, {sAD}, 5"); I(f"s_add_u32 {sT[0]}, {sT[0]}, {sT[1]}")
I(f"v_add_u32 {t[0]}, {sT[0]}, {vL31}"); I(f"v_cvt_f32_u32 {fd}, {t[0]}"); I(f"v_mul_f32 {fd}, {fl(1/512)}, {fd}")
I(f"s_lshl_b32 {sT[0]}, {sKH}, 6"); I(f"v_lshl_add_u32 {t[1]}, {vHH}, 1, {sT[0]}"); I(f"v_cvt_f32_u32 {t[1]}, {t[1]}"); I(f"v_mul_f32 {ab}, {fd}, {t[1]}")
I(f"v_and_b32 {t[0]}, 1, {vL}"); I(f"v_cmp_eq_u32 vcc, 1, {t[0]}")
I(f"v_mov_b32 {t[1]}, 0x03020100"); I(f"v_mov_b32 {t[2]}, 0x01000302"); I(f"v_cndmask_b32 {vSel}, {t[1]}, {t[2]}, vcc")
I(f"v_bfe_u32 {t[1]}, {vL}, 1, 1"); I(f"v_xor_b32 {t[2]}, {t[1]}, {t[0]}"); I(f"v_lshlrev_b32 {t[1]}, 31, {t[1]}"); I(f"v_lshl_or_b32 {vMsk}, {t[2]}, 15, {t[1]}")
for kl in range(8):
    for rho in range(4):
        I(f"v_fmamk_f32 {t[0]}, {fd}, {fl(8*kl + 4*(rho>>1) + (rho&1))}, {ab}")
        I(f"v_cos_f32 {t[1]}, {t[0]}"); I(f"v_sin_f32 {t[2]}, {t[0]}")
        I(f"v_cvt_pk_bf16_f32 {G[kl][rho]}, {t[1]}, {t[2]}")
        I(f"v_perm_b32 {t[3]}, {G[kl][rho]}, {G[kl][rho]}, {vSel}")
        I(f"v_xor_b32 {G[8+kl][rho]}, {vMsk}, {t[3]}")
I(f"v_mov_b32 {t[1]}, 0xbf803f80"); I(f"v_mov_b32 {t[2]}, 0x3f803f80"); I(f"v_cndmask_b32 {t[1]}, {t[1]}, {t[2]}, vcc")
I(f"s_cmp_eq_u32 {sKH}, 0"); I(f"s_cselect_b32 s62, -1, 0"); I("s_mov_b32 s63, 0")
I(f"v_cndmask_b32 {G[0][0]}, {G[0][0]}, {t[1]}, s[62:63]")
V.release(fd, ab, vSel, vMsk)
S.wait_tag("yb"); S.wait_all(vm=False)
I("s_barrier")
yr = [yac[0][0], yac[0][1], yac[1][0], yac[1][1]]
I(f"s_lshl_b32 {sT[0]}, {sKH}, 15"); I(f"s_lshl_b32 {sT[1]}, {sAD}, 12"); I(f"s_add_u32 {sT[0]}, {sT[0]}, {sT[1]}")
I(f"v_add_u32 {t[7]}, {sT[0]}, {vL16}")
for w in range(4):
    for g in range(4): I(f"ds_read_b128 {yr[w][4*g:4*g+4]}, {t[7]} offset:{w*8192 + g*1024}")
for k in range(0, 16, 2):
    I(f"v_pk_add_f32 {yr[0][k:k+2]}, {yr[0][k:k+2]}, {yr[1][k:k+2]}"); I(f"v_pk_add_f32 {yr[2][k:k+2]}, {yr[2][k:k+2]}, {yr[3][k:k+2]}")
    I(f"v_pk_add_f32 {yr[0][k:k+2]}, {yr[0][k:k+2]}, {yr[2][k:k+2]}")
I(f"v_lshlrev_b32 {vRS}, 16, {vRS}"); I(f"v_rcp_f32 {vRS}, {vRS}")
gv = yr[0]
for k in range(16):
    I(f"v_mul_f32 {gv[k]}, {gv[k]}, {vRS}")
    I(f"v_mul_f32 {t[0]}, {fl(-1.4426950408889634)}, {gv[k]}")
    I(f"v_exp_f32 {t[0]}, {t[0]}")
    I(f"v_fmaak_f32 {t[0]}, {t[0]}, {t[0]}, 0" if False else f"v_add_f32 {t[0]}, 1.0, {t[0]}")
    I(f"v_rcp_f32 {t[0]}, {t[0]}")
    I(f"v_mul_f32 {gv[k]}, {fl(2.0**-19)}, {gv[k]}")
    I(f"v_mul_f32 {gv[k]}, {gv[k]}, {t[0]}")
sac = [yr[1], yr[2]]
yf = [[V.alloc(4) for b in range(2)] for s in range(2)]
vYR = V.alloc(2)
I(f"s_lshl_b32 {sT[0]}, {sKH}, 14"); I(f"s_add_u32 {sT[0]}, {sT[0]}, {L_YB}")
for b in range(2): I(f"v_add_u32 {vYR[b]}, {sT[0]}, {vTRa[b]}")
def y_reads(k):
    kk = k if k < 8 else k + 8
    for b in range(2):
        for j in range(2):
            I(f"ds_read_b64_tr_b16 {yf[k&1][b][2*j:2*j+2]}, {vYR[b]} offset:{kk*2048 + j*1024}")
y_reads(0)
for k in range(16):
    if k + 1 < 16: y_reads(k + 1)
    for b in range(2):
        I(f"v_mfma_f32_32x32x16_bf16 {sac[b]}, {G[k]}, {yf[k&1][b]}, {'0' if k == 0 else sac[b]}")
I("s_barrier")
for b in range(2):
    for g in range(4): I(f"ds_write_b128 {vYW}, {sac[b][4*g:4*g+4]} offset:{b*4096 + g*1024}")
S.wait_all(vm=False)
I("s_barrier")
I(f"s_lshl_b32 {sT[0]}, {sAD}, 13"); I(f"s_lshl_b32 {sT[1]}, {sKH}, 12"); I(f"s_add_u32 {sT[0]}, {sT[0]}, {sT[1]}")
I(f"v_add_u32 {t[7]}, {sT[0]}, {vL16}")
for hh in range(2):
    for g in range(4): I(f"ds_read_b128 {sac[hh][4*g:4*g+4]}, {t[7]} offset:{hh*16384 + g*1024}")
xv = yr[3]
I(f"v_lshlrev_b32 {t[6]}, 6, {vL31}"); I(f"v_lshl_add_u32 {t[6]}, {vHH}, 3, {t[6]}"); I(f"s_add_u32 {sT[0]}, {sW8}, 65536"); I(f"v_add_u32 {t[6]}, {sT[0]}, {t[6]}")
S.wait_tag("xt")
for g in range(4): I(f"ds_read_b64 {xv[2*g:2*g+2]}, {t[6]} offset:{16*g}")
for k in range(0, 16, 2): I(f"v_pk_add_f32 {sac[0][k:k+2]}, {sac[0][k:k+2]}, {sac[1][k:k+2]}")
for e in range(8):
    I(f"v_lshlrev_b32 {t[0]}, 16, {xv[e]}"); I(f"v_and_b32 {t[1]}, 0xffff0000, {xv[e]}")
    I(f"v_fmac_f32 {t[0]}, {sac[0][2*e]}, {gv[2*e]}"); I(f"v_fmac_f32 {t[1]}, {sac[0][2*e+1]}, {gv[2*e+1]}")
    I(f"v_cvt_pk_bf16_f32 {xv[8+e]}, {t[0]}, {t[1]}")
for g in range(4): I(f"ds_write_b64 {t[6]}, {xv[8+2*g:8+2*g+2]} offset:{16*g}")
I(f"v_add_u32 {t[5]}, {sT[0]}, {vL16}")
S.wait_all(vm=False)
for m in range(2): I(f"ds_read_b128 {xv[4*m:4*m+4]}, {t[5]} offset:{m*1024}")
for m in range(2): I(f"buffer_store_dwordx4 {xv[4*m:4*m+4]}, {vOA[m]}, {SOUT}, {sOB} offen offset:{m*1024}")
stamp()
if DIAG:
    S.wait_all(force=True)
    stamp()
    S.wait_all(force=True)
    I(f"s_lshl_b32 {sT[0]}, s2, 2"); I(f"s_add_u32 {sT[0]}, {sT[0]}, {sW}"); I(f"s_lshl_b32 {sT[0]}, {sT[0]}, 6"); I(f"s_add_u32 {sT[0]}, {sT[0]}, {WS_DIAG}")
    I("s_mov_b64 exec, 1")
    I(f"v_mov_b32 {t[1]}, 0")
    for k in range(nstamp[0]):
        I(f"v_mov_b32 {t[0]}, s{100-2*k}")
        I(f"buffer_store_dword {t[0]}, {t[1]}, {SWS}, {sT[0]} offen offset:{4*k}")
S.label("L_end")
I("s_endpgm")

hdr = open("cdna_kernels/%s.s.ref" % NAME).read().split("; Override launch")[0]
out = [hdr.rstrip(), f"; @launch grid=(256,1,1) block=(256,1,1) lds={LDS_TOTAL}",
       '.amdgcn_target "amdgcn-amd-amdhsa--gfx950"', ".text", f".globl {NAME}_kernel", ".p2align 8",
       f".type {NAME}_kernel,@function", f"{NAME}_kernel:"]
out += S.lines
for f in tail: out += f.lines
out += ['.section .rodata,"a"', ".p2align 6", f".amdhsa_kernel {NAME}_kernel",
        "  .amdhsa_next_free_vgpr 512", "  .amdhsa_next_free_sgpr 102", "  .amdhsa_accum_offset 256",
        "  .amdhsa_group_segment_fixed_size 0", "  .amdhsa_kernarg_size 72", "  .amdhsa_user_sgpr_count 2",
        "  .amdhsa_user_sgpr_kernarg_segment_ptr 1", "  .amdhsa_system_sgpr_workgroup_id_x 1",
        "  .amdhsa_float_denorm_mode_32 3", ".end_amdhsa_kernel"]
print("\n".join(out))
sys.stderr.write("instrs main %d, vgpr hw %d\n" % (S.ninstr, V.hw))
```

```python
import re

TRANS = ("v_exp_f32", "v_log_f32", "v_rcp_f32", "v_rsq_f32", "v_sqrt_f32", "v_sin_f32", "v_cos_f32", "v_rcp_iflag_f32")
REG_RE = re.compile(r"(?<![\w.])([vas])(?:\[(\d+):(\d+)\]|(\d+))(?![\w])|\b(vcc|exec|m0|scc)\b")

def regs_of(tok):
    out = []
    for m in REG_RE.finditer(tok):
        if m.group(5):
            out.append((m.group(5), 0))
        else:
            k = m.group(1)
            if m.group(2) is not None:
                out += [(k, i) for i in range(int(m.group(2)), int(m.group(3)) + 1)]
            else:
                out.append((k, int(m.group(4))))
    return out

def split_ops(s):
    ops, depth, cur = [], 0, ""
    for ch in s:
        if ch in "[(": depth += 1
        if ch in "])": depth -= 1
        if ch == "," and depth == 0:
            ops.append(cur.strip()); cur = ""
        else:
            cur += ch
    if cur.strip(): ops.append(cur.strip())
    return ops

class Ins:
    __slots__ = ("text", "mn", "kind", "defs", "uses", "srcC", "passes", "tag", "counted", "lds_dma", "wide_store", "dpp", "store_data")

def parse(text):
    i = Ins(); i.text = text
    t = text.strip()
    sp = t.split(None, 1)
    mn = sp[0]; rest = sp[1] if len(sp) > 1 else ""
    i.mn = mn; i.tag = None; i.counted = True; i.srcC = []; i.passes = 0; i.lds_dma = False; i.wide_store = False
    i.store_data = []
    i.dpp = "_dpp" in mn
    ops = split_ops(rest)
    opr = [regs_of(o.split(" ")[0]) if not o.startswith("abs") else regs_of(o) for o in ops]
    opr = [regs_of(re.split(r"\s+(?=[a-z_]+[:\s]|[a-z_0-9]+$)", o)[0]) for o in ops]
    defs, uses = [], []
    if mn.startswith("v_mfma"):
        i.kind = "mfma"
        defs = opr[0]; uses = opr[1] + opr[2] + opr[3]; i.srcC = opr[3]
        i.passes = 8 if "32x32" in mn else 4
    elif mn.startswith("v_"):
        i.kind = "trans" if mn.split("_e32")[0].split("_e64")[0] in TRANS else "valu"
        if mn.startswith("v_cmp"):
            defs = opr[0]; uses = sum(opr[1:], [])
        elif mn.startswith(("v_add_co", "v_sub_co", "v_addc_co", "v_subb_co", "v_subrev_co")):
            defs = opr[0] + opr[1]; uses = sum(opr[2:], [])
        elif mn.startswith("v_permlane") and "swap" in mn:
            defs = opr[0] + opr[1]; uses = opr[0] + opr[1]
        else:
            defs = opr[0]; uses = sum(opr[1:], [])
            if mn.startswith(("v_fmac", "v_dot2c", "v_writelane", "v_pk_fmac")) or i.dpp:
                uses = uses + opr[0]
            if mn.startswith("v_cndmask") and len(ops) == 3:
                uses = uses + [("vcc", 0)]
    elif mn.startswith("ds_"):
        i.kind = "ds"
        if mn.startswith(("ds_write", "ds_add")):
            uses = sum(opr, [])
        else:
            defs = opr[0]; uses = sum(opr[1:], [])
    elif mn.startswith(("buffer_", "global_")):
        i.kind = "vmem"
        if re.search(r"\blds\b", rest):
            i.lds_dma = True; uses = sum(opr, []) + [("m0", 0)]
        elif "store" in mn or "atomic" in mn:
            uses = sum(opr, [])
            dat = opr[0] if mn.startswith("buffer_") else opr[1]
            i.store_data = dat
            i.wide_store = mn.endswith(("x3", "x4"))
        else:
            defs = opr[0]; uses = sum(opr[1:], [])
    elif mn.startswith(("s_load", "s_buffer_load", "s_memtime", "s_memrealtime")):
        i.kind = "smem"; defs = opr[0]; uses = sum(opr[1:], [])
    elif mn.startswith("s_"):
        i.kind = "salu"
        if mn.startswith(("s_cmp", "s_waitcnt", "s_barrier", "s_nop", "s_branch", "s_cbranch", "s_endpgm", "s_sleep", "s_setprio", "s_bitcmp")):
            uses = sum(opr, [])
        else:
            defs = opr[0] if opr else []; uses = sum(opr[1:], [])
            if "saveexec" in mn: defs = defs + [("exec", 0)]
    else:
        raise ValueError("unknown instr " + text)
    i.defs = defs; i.uses = uses
    return i

class Stream:
    def __init__(self):
        self.lines = []
        self.hist = []
        self.pos = 0
        self.vm = []
        self.lg = []
        self.smem_out = []
        self.ninstr = 0
        self.bg = []
        self.bg_period = 0
        self.bg_last = 0
        self.atomic = 0
        self.in_bg = False
        self.fq = []

    def bg_push(self, group): self.bg.append(group)
    def bg_pop(self, n=1):
        assert not self.atomic
        self.in_bg = True
        while n > 0 and self.bg:
            for it in self.bg.pop(0):
                if callable(it): it(self)
                else: self.I(it[0], **it[1])
            n -= 1
        self.in_bg = False
        self.bg_last = self.pos
    def bg_flush(self): self.bg_pop(len(self.bg))
    def fill(self, n):
        while n > 0 and self.fq:
            it = self.fq.pop(0)
            if callable(it): it(self)
            else: self.I(it[0], **it[1])
            n -= 1
    def fill_flush(self): self.fill(len(self.fq))

    def raw(self, text):
        self.lines.append(text)

    def comment(self, t):
        self.lines.append("  ; " + t)

    def label(self, name):
        self.lines.append(name + ":")

    def _put(self, ins, slots=1):
        self.lines.append("  " + ins.text)
        self.hist.append((self.pos, ins))
        self.pos += slots
        self.ninstr += 1
        if len(self.hist) > 40: self.hist = self.hist[-32:]

    def nop(self, n):
        while n > 0:
            k = min(n, 16)
            self._put(parse("s_nop %d" % (k - 1)), k)
            n -= k

    def _wait(self, vm=None, lg=None):
        parts = []
        if vm is not None:
            vm = min(vm, 63)
            if vm < len(self.vm):
                parts.append("vmcnt(%d)" % vm); self.vm = self.vm[len(self.vm) - vm:] if vm else []
        if lg is not None:
            lg = min(lg, 15)
            if lg < len(self.lg) or (lg == 0 and self.smem_out):
                parts.append("lgkmcnt(%d)" % lg); self.lg = self.lg[len(self.lg) - lg:] if lg else []
                if lg == 0: self.smem_out = []
        if parts:
            self._put(parse("s_waitcnt " + " ".join(parts)))

    def wait_all(self, vm=True, lg=True, force=False):
        if force:
            self._put(parse("s_waitcnt " + " ".join((["vmcnt(0)"] if vm else []) + (["lgkmcnt(0)"] if lg else []))))
            if vm: self.vm = []
            if lg: self.lg = []; self.smem_out = []
        else:
            self._wait(0 if vm else None, 0 if lg else None)

    def wait_tag(self, *tags):
        vm = lg = None
        for k in range(len(self.vm) - 1, -1, -1):
            if self.vm[k].tag in tags:
                vm = len(self.vm) - 1 - k; break
        for k in range(len(self.lg) - 1, -1, -1):
            if self.lg[k].tag in tags:
                lg = len(self.lg) - 1 - k; break
        self._wait(vm, lg)

    def _hazard(self, ins):
        need = 0
        U = set(ins.uses); Dn = set(ins.defs); UD = U | Dn
        isvalu = ins.kind in ("valu", "trans")
        for pos, p in reversed(self.hist):
            dist = self.pos - pos - 1
            if dist >= 20: break
            req = 0
            pd = set(p.defs)
            if p.kind in ("valu", "trans"):
                vd = {r for r in pd if r[0] in "va"}
                sd = {r for r in pd if r[0] == "s" or r[0] == "vcc"}
                if ins.kind == "mfma" and vd & U: req = max(req, 2)
                if p.kind == "trans" and ins.kind != "trans" and vd & U and ins.kind in ("valu", "mfma"): req = max(req, 1)
                if p.kind == "trans" and vd & U and ins.kind in ("ds", "vmem"): req = max(req, 1)
                if isvalu and ins.mn.startswith(("v_readlane", "v_readfirstlane")) and vd & U: req = max(req, 1)
                if isvalu and ins.dpp and vd & U: req = max(req, 2)
                if isvalu and ins.mn.startswith("v_permlane") and vd & U: req = max(req, 2)
                if sd & U:
                    if isvalu:
                        req = max(req, 4 if ins.mn.startswith(("v_readlane", "v_writelane")) else 2)
                    elif ins.kind == "vmem": req = max(req, 5)
                    elif ins.kind in ("salu", "smem"): req = max(req, 1)
                if p.mn.startswith("v_dot") and vd & UD and ins.mn != p.mn: req = max(req, 3)
                if ("exec", 0) in pd: req = max(req, 5)
                if p.mn.startswith("v_pk_") and False: pass
            elif p.kind == "mfma":
                big = 12 if p.passes == 8 else 8
                if pd & UD:
                    if ins.kind == "mfma":
                        ab = set(ins.uses[:len(ins.uses) - len(ins.srcC)])
                        if pd & ab: req = max(req, big)
                        c = set(ins.srcC)
                        if pd & c:
                            if c == pd and ins.passes == p.passes: pass
                            else: req = max(req, 10 if p.passes == 8 else 6)
                        if pd & Dn and not (pd & c):
                            req = max(req, big)
                    else:
                        req = max(req, big)
                if isvalu and set(p.srcC) & Dn: req = max(req, 7 if p.passes == 8 else 3)
            elif p.kind == "salu":
                if ("m0", 0) in pd and ins.lds_dma: req = max(req, 1)
            elif p.kind == "vmem":
                if p.wide_store and set(p.store_data) & Dn: req = max(req, 2)
            need = max(need, req - dist)
        return need

    def I(self, text, tag=None, counted=True, nodef=False):
        ins = parse(text); ins.tag = tag; ins.counted = counted
        if nodef: ins.defs = []
        UD = set(ins.uses) | set(ins.defs)
        vm = lg = None
        for k in range(len(self.vm) - 1, -1, -1):
            if set(self.vm[k].defs) & UD:
                vm = len(self.vm) - 1 - k; break
        for k in range(len(self.lg) - 1, -1, -1):
            if set(self.lg[k].defs) & UD:
                lg = len(self.lg) - 1 - k; break
        for p in self.smem_out:
            if set(p.defs) & UD: lg = 0
        if lg is not None and lg > 0 and any(p.counted for p in self.smem_out): lg = 0
        self._wait(vm, lg)
        n = self._hazard(ins)
        if n > 0: self.nop(n)
        self._put(ins)
        if counted:
            if ins.kind == "vmem": self.vm.append(ins)
            elif ins.kind == "ds": self.lg.append(ins)
        if ins.kind == "smem": self.smem_out.append(ins)
        if self.bg_period and self.bg and not self.atomic and not self.in_bg and self.pos - self.bg_last >= self.bg_period \
                and not ins.mn.startswith(("s_cmp", "s_cbranch", "s_branch", "s_bitcmp")):
            self.bg_pop(1)
        return ins

    def M(self, block, **kw):
        for l in block.strip().splitlines():
            l = l.split(";")[0].strip()
            if l: self.I(l, **kw)

    def fork(self):
        s = Stream()
        s.hist = list(self.hist); s.pos = self.pos
        s.vm = list(self.vm); s.lg = list(self.lg); s.smem_out = list(self.smem_out)
        return s

class Pool:
    def __init__(self, kind, lo, hi):
        self.kind = kind; self.free = set(range(lo, hi)); self.hw = lo
    def alloc(self, n=1, align=None):
        if align is None: align = 1 if n == 1 else (2 if n == 2 else 4)
        for b in sorted(self.free):
            if b % align == 0 and all((b + i) in self.free for i in range(n)):
                for i in range(n): self.free.discard(b + i)
                self.hw = max(self.hw, b + n)
                return R(self.kind, b, n)
        raise RuntimeError("out of %s regs (need %d, free %d)" % (self.kind, n, len(self.free)))
    def release(self, *rs):
        for r in rs:
            for i in range(r.n):
                assert (r.b + i) not in self.free
                self.free.add(r.b + i)

class R:
    def __init__(self, kind, b, n): self.kind = kind; self.b = b; self.n = n
    def __str__(self):
        return "%s%d" % (self.kind, self.b) if self.n == 1 else "%s[%d:%d]" % (self.kind, self.b, self.b + self.n - 1)
    __repr__ = __str__
    def __format__(self, spec): return str(self)
    def __getitem__(self, i):
        if isinstance(i, slice):
            a = i.start or 0; e = self.n if i.stop is None else i.stop
            assert 0 <= a < e <= self.n
            return R(self.kind, self.b + a, e - a)
        assert 0 <= i < self.n
        return R(self.kind, self.b + i, 1)
    def __len__(self): return self.n
```

```python
import sys, struct
sys.path.insert(0, "dev")
from fw import *

NAME = "recurrent_scan__spectral_gfnet__dense_activation_relu__prompt"
DIAG = "--diag" in sys.argv
OPT = {"rot1": 1, "rot2": 1, "pretouch": 1, "nb": 8, "prioG": 0, "prioH": 0}
for a in sys.argv[1:]:
    if "=" in a:
        k, v = a.split("="); OPT[k] = int(v)

def f2u(x): return struct.unpack("<I", struct.pack("<f", x))[0]
def fl(x): return "0x%08x" % f2u(x)

WS_F1 = 0x4000; WS_FW = 0x8000; WS_F2 = 0x9000; WS_F3 = 0x10000; WS_ST = 0x18000; WS_DIAG = 0x20000
WS_X1 = 0x100000; WS_WT = 0x300000; WS_Y1 = 0x600000; WS_H = 0x800000; WS_SIZE = 0x1000000
S4 = 131072
L_XN = S4; L_GA = S4 + 8192
L_XC = S4; L_EX = S4 + 8192; L_SP = S4
L_PROG = S4 + 17408; L_TAG = L_PROG + 32; L_CS = S4 + 17664; L_MEAN = S4 + 18688; L_RS = S4 + 20736; L_XT = S4 + 24576
L_SX = S4
LDS_TOTAL = 163840

SX, SA, SB, SW2, SOUT, SWS = ("s[%d:%d]" % (b, b + 3) for b in (8, 12, 16, 24, 28, 32))
sXCD, sJ, sW, sTAG, sQ, sCB, sHQ, sSPIN = ("s%d" % i for i in range(36, 44))
sT = ["s%d" % i for i in range(44, 52)]
sB0, sIdx, sBaseA, sBaseB, sMulA, sMulB, sM0A, sM0B, sStep = ("s%d" % i for i in range(52, 61))
sW12, sW13, sS0 = "s61", "s62", "s63"
sO, sAa, sFB, sTT = "s20", "s21", "s22", "s23"
sWI = sO
sF1, sF2 = "s4", "s5"
sP2, sW2b = "s6", "s7"
sW8 = "s3"

tail = []
EP = {}
class Q:
    def __init__(self): self.l = []
    def I(self, text, **kw): self.l.append((text, kw))

def stamp(st):
    if DIAG:
        k = st.nstamp; st.nstamp += 1
        assert k < 15
        st.I("%s s[%d:%d]" % ("s_memtime" if OPT.get("cyc") else "s_memrealtime", 100 - 2 * k, 101 - 2 * k), counted=False)

def srd(st, name, lo, hi, nbytes):
    b = int(name[2:name.index(":")])
    st.I(f"s_mov_b32 s{b}, s{lo}"); st.I(f"s_and_b32 s{b+1}, s{hi}, 0xffff")
    st.I(f"s_mov_b32 s{b+2}, {nbytes}"); st.I(f"s_mov_b32 s{b+3}, 0x20000")

nlab = [0]
def poll_check(st, loads, tagregs, tmp):
    k = nlab[0]; nlab[0] += 1
    def test(s):
        if len(tagregs) == 1:
            s.I(f"v_cmp_ne_u32 vcc, {sTAG}, {tagregs[0]}")
        else:
            s.I(f"v_xor_b32 {tmp}, {sTAG}, {tagregs[0]}")
            for r in tagregs[1:]:
                s.I(f"v_xor_b32 {r}, {sTAG}, {r}"); s.I(f"v_or_b32 {tmp}, {tmp}, {r}")
            s.I(f"v_cmp_ne_u32 vcc, 0, {tmp}")
    st.atomic += 1
    test(st)
    st.nop(1)
    st.I(f"s_cbranch_vccnz L_slow{k}")
    st.label(f"L_got{k}")
    st.atomic -= 1
    F = Stream(); tail.append(F)
    F.label(f"L_slow{k}")
    F.I(f"s_mov_b32 {sSPIN}, 0")
    F.label(f"L_spin{k}")
    F.I("s_mov_b64 exec, vcc")
    F.I("s_sleep %d" % OPT.get("psleep", 3))
    for l in loads: F.I(l)
    F.wait_all(vm=True, lg=False, force=True)
    test(F)
    F.I("s_mov_b64 exec, -1")
    F.I(f"s_cbranch_vccz L_got{k}")
    F.I(f"s_add_u32 {sSPIN}, {sSPIN}, 1")
    F.I(f"s_cmp_lt_u32 {sSPIN}, 100000")
    F.I(f"s_cbranch_scc1 L_spin{k}")
    F.I(f"s_branch L_got{k}")

def post(st, name, alias=False):
    if not alias:
        st.epoch += 1
        assert name not in EP
        EP[name] = st.epoch
    st.atomic += 1
    st.I(f"v_mov_b32 {vSY[1]}, EP_{name}")
    st.I("s_mov_b64 exec, 1")
    st.I(f"ds_write_b32 {vPME}, {vSY[1]}")
    st.I("s_mov_b64 exec, -1")
    st.atomic -= 1
def aw_issue(st, grp):
    st.I(f"ds_read_b32 {vSY[0]}, {vPG} offset:{16*grp}")
def aw_check(st, grp, name):
    k = nlab[0]; nlab[0] += 1
    st.atomic += 1
    st.I(f"v_cmp_gt_u32 vcc, EP_{name}, {vSY[0]}")
    st.nop(1)
    st.I(f"s_cbranch_vccnz L_aslow{k}")
    st.label(f"L_agot{k}")
    st.atomic -= 1
    F = Stream(); tail.append(F)
    F.label(f"L_aslow{k}")
    F.I(f"s_mov_b32 {sSPIN}, 0")
    F.label(f"L_aspin{k}")
    if OPT.get("asleep"): F.I("s_sleep %d" % OPT["asleep"])
    F.I(f"ds_read_b32 {vSY[0]}, {vPG} offset:{16*grp}")
    F.wait_all(vm=False, lg=True, force=True)
    F.I(f"v_cmp_gt_u32 vcc, EP_{name}, {vSY[0]}")
    F.nop(1)
    F.I(f"s_cbranch_vccz L_agot{k}")
    F.I(f"s_add_u32 {sSPIN}, {sSPIN}, 1")
    F.I(f"s_cmp_lt_u32 {sSPIN}, 0x400000")
    F.I(f"s_cbranch_scc1 L_aspin{k}")
    F.I(f"s_branch L_agot{k}")
def await_(st, grp, name):
    aw_issue(st, grp); aw_check(st, grp, name)
GRP_G, GRP_H = 0, 1

def flag(st, soff, counted=True):
    st.atomic += 1
    st.I("s_mov_b64 exec, 1")
    st.I(f"buffer_store_dword {vTAG}, {vZ}, {SWS}, {soff} offen sc1", counted=counted)
    st.I("s_mov_b64 exec, -1")
    st.atomic -= 1

def cmul_tw(st, re, im, c, s, t0, out):
    st.I(f"v_mul_f32 {t0[0]}, {re}, {c}")
    st.I(f"v_mul_f32 {t0[1]}, {im}, {c}")
    st.I(f"v_fmac_f32 {t0[0]}, {im}, {s}")
    st.I(f"v_fma_f32 {t0[1]}, -{re}, {s}, {t0[1]}")
    st.I(f"v_cvt_pk_bf16_f32 {out}, {t0[0]}, {t0[1]}")

C = Stream(); C.nstamp = 0
V = Pool("v", 1, 254)
I = C.I
I("s_cmp_ge_u32 s2, 256")
I("s_cbranch_scc1 L_end")
stamp(C)
I("s_load_dwordx16 s[64:79], s[0:1], 0")
I("s_load_dwordx2 s[80:81], s[0:1], 64")
vL = V.alloc(); vL15 = V.alloc(); vH = V.alloc(); vL16 = V.alloc(); vZ = V.alloc(); vTAG = V.alloc()
vHH = V.alloc(); vL31 = V.alloc(); vRp = V.alloc(); vTRL = V.alloc(); vRowOff = V.alloc(); vL3 = V.alloc()
vPG = V.alloc(); vPME = V.alloc(); vSY = V.alloc(2); vE = V.alloc()
t = V.alloc(8)
vXD = V.alloc(4); vW1D = V.alloc(4); vW2D = V.alloc(4); vD8 = V.alloc(); vTRa = V.alloc()
I(f"v_lshrrev_b32 {t[0]}, 6, v0"); I(f"v_and_b32 {vL3}, 3, v0")
I(f"v_and_b32 {vL}, 63, v0")
I(f"v_readfirstlane_b32 {sW8}, {t[0]}")
I(f"v_mov_b32 {vZ}, 0")
I(f"v_lshlrev_b32 {vL16}, 4, {vL}")
I(f"v_lshlrev_b32 {vPME}, 2, {t[0]}"); I(f"v_add_u32 {vPME}, {L_PROG}, {vPME}")
I(f"ds_write_b32 {vPME}, {vZ}")
I(f"s_lshr_b32 {sJ}, s2, 3"); I(f"s_and_b32 {sXCD}, s2, 7")
I(f"s_and_b32 {sW}, {sW8}, 3")
I(f"s_lshr_b32 {sCB}, {sJ}, 2"); I(f"s_and_b32 {sHQ}, {sJ}, 3")
I(f"s_lshl_b32 {sW12}, {sW}, 12"); I(f"s_lshl_b32 {sW13}, {sW}, 13")
I(f"v_and_b32 {vL15}, 15, v0")
I(f"v_lshrrev_b32 {vH}, 4, {vL}")
I(f"v_lshrrev_b32 {vHH}, 5, {vL}"); I(f"v_and_b32 {vL31}, 31, {vL}"); I(f"v_bfe_u32 {vRp}, {vL}, 2, 2")
I(f"v_lshlrev_b32 {vPG}, 2, {vL3}"); I(f"v_add_u32 {vPG}, {L_PROG}, {vPG}")
I("s_getpc_b64 s[4:5]")
C.label("L_pc")
I("s_and_b32 s5, s5, 0xffff")
I("s_mov_b32 s6, L_code_end-L_pc"); I("s_mov_b32 s7, 0x20000")
I(f"s_lshl_b32 {sT[0]}, {sJ}, 11"); I(f"s_lshl_b32 {sT[1]}, {sW8}, 8"); I(f"s_add_u32 {sT[0]}, {sT[0]}, {sT[1]}")
I(f"v_lshlrev_b32 {t[1]}, 7, {vL}")
I("s_mov_b64 exec, 3")
I(f"buffer_load_dword v255, {t[1]}, s[4:7], {sT[0]} offen", counted=False)
I("s_mov_b64 exec, -1")

def dma_addr_setup(st, c_first):
    I = st.I
    I(f"v_lshlrev_b32 {t[0]}, 14, {vHH}")
    I(f"v_bfe_u32 {t[1]}, {vL}, 3, 2"); I(f"v_lshl_add_u32 {t[0]}, {t[1]}, 10, {t[0]}")
    I(f"v_and_b32 {t[3]}, 7, {vL}"); I(f"v_xor_b32 {t[1]}, {t[3]}, {vH}")
    I(f"v_lshl_add_u32 {vXD[0]}, {t[1]}, 4, {t[0]}")
    I(f"v_xor_b32 {t[2]}, 64, {vXD[0]}")
    I(f"v_add_u32 {vXD[1]}, {31744}, {t[2]}"); I(f"v_add_u32 {vXD[2]}, {2*31744}, {vXD[0]}"); I(f"v_add_u32 {vXD[3]}, {3*31744}, {t[2]}")
    I(f"v_mul_u32_u24 {t[0]}, 3584, {vH}")
    I(f"v_xor_b32 {t[1]}, {vRp}, {vH}")
    I(f"v_lshl_add_u32 {t[0]}, {t[1]}, 6, {t[0]}")
    I(f"v_lshl_add_u32 {vW1D[0]}, {vL3}, 4, {t[0]}")
    for m in range(1, 4): I(f"v_add_u32 {vW1D[m]}, {m*(4*3584-1024)}, {vW1D[0]}")
    I(f"s_and_b32 {sO}, {sXCD}, 6"); I(f"s_bfe_u32 {sT[0]}, {sJ}, 0x10001"); I(f"s_add_u32 {sO}, {sO}, {sT[0]}")
    I(f"s_and_b32 {sAa}, {sJ}, 1")
    I(f"s_and_b32 {sT[0]}, {sXCD}, 1"); I(f"s_mul_i32 {sFB}, {sT[0]}, 7"); I(f"s_add_u32 {sFB}, {sFB}, {sCB}")
    I(f"s_lshl_b32 {sBaseA}, {sO}, 8"); I(f"s_and_b32 {sT[0]}, {sW}, 1"); I(f"s_lshl_b32 {sT[0]}, {sT[0]}, 7"); I(f"s_add_u32 {sBaseA}, {sBaseA}, {sT[0]}")
    I(f"s_lshl_b32 {sT[0]}, {sAa}, 3"); I(f"s_add_u32 {sBaseA}, {sBaseA}, {sT[0]}")
    I(f"s_lshr_b32 {sT[0]}, {sW}, 1"); I(f"s_lshl_b32 {sT[0]}, {sT[0]}, 2"); I(f"s_add_u32 {sBaseA}, {sBaseA}, {sT[0]}")
    I(f"s_lshl_b32 {sBaseA}, {sBaseA}, 10")
    I(f"s_mul_i32 {sBaseB}, {sW}, {16*3584}"); I(f"s_lshl_b32 {sT[0]}, {sFB}, 8"); I(f"s_add_u32 {sBaseB}, {sBaseB}, {sT[0]}")
    if OPT["rot1"] == 2:
        I(f"s_add_u32 {sIdx}, {sXCD}, {c_first}"); I(f"s_and_b32 {sIdx}, {sIdx}, 7")
    elif OPT["rot1"] == 3:
        I(f"s_lshl_b32 {sIdx}, {sJ}, 2"); I(f"s_add_u32 {sIdx}, {sIdx}, {sXCD}"); I(f"s_add_u32 {sIdx}, {sIdx}, {c_first}"); I(f"s_and_b32 {sIdx}, {sIdx}, 7")
    elif OPT["rot1"]:
        I(f"s_lshl_b32 {sIdx}, {sHQ}, 1"); I(f"s_add_u32 {sIdx}, {sIdx}, {sCB}"); I(f"s_bfe_u32 {sT[0]}, {sXCD}, 0x10001"); I(f"s_add_u32 {sIdx}, {sIdx}, {sT[0]}")
        if c_first: I(f"s_add_u32 {sIdx}, {sIdx}, {c_first}")
        I(f"s_and_b32 {sIdx}, {sIdx}, 7")
    else:
        I(f"s_mov_b32 {sIdx}, {c_first}")
def misc_lane(st):
    c = st.I
    c(f"v_and_b32 {t[0]}, 1, {vH}"); c(f"v_lshlrev_b32 {t[1]}, 5, {t[0]}"); c(f"v_lshl_add_u32 {vTRL}, {vL3}, 3, {t[1]}")
    c(f"v_lshrrev_b32 {t[1]}, 3, {vL31}"); c(f"v_lshlrev_b32 {t[1]}, 5, {t[1]}")
    c(f"v_bfe_u32 {t[2]}, {vL}, 2, 1"); c(f"v_lshl_add_u32 {t[1]}, {t[2]}, 4, {t[1]}"); c(f"v_add_u32 {vRowOff}, {t[1]}, {vL3}")
    c(f"v_lshlrev_b32 {t[1]}, 2, {t[0]}"); c(f"v_and_b32 {t[2]}, 7, {vL}"); c(f"v_xor_b32 {t[1]}, {t[1]}, {t[2]}")
    c(f"v_lshlrev_b32 {vD8}, 4, {t[1]}"); c(f"v_lshrrev_b32 {t[2]}, 3, {vL}")
    c(f"v_lshl_add_u32 {vW2D[0]}, {t[2]}, 10, {vD8}")
    for m in range(1, 4): c(f"v_add_u32 {vW2D[m]}, {m*(8192-1024)}, {vW2D[0]}")
    c(f"v_lshl_add_u32 {t[1]}, {vHH}, 2, {vRp}"); c(f"v_lshl_add_u32 {t[1]}, {t[1]}, 7, {vTRL}")
    c(f"v_lshrrev_b32 {t[2]}, 1, {vRp}"); c(f"v_lshl_add_u32 {vTRa}, {t[2]}, 6, {t[1]}")
def w2_setup(st, first):
    c = st.I
    c(f"s_mul_i32 {sW2b}, {sW}, {448*1024}"); c(f"s_lshl_b32 {sP2}, {sCB}, 7"); c(f"s_add_u32 {sW2b}, {sW2b}, {sP2}")
    p2_set(st, first)
def p2_set(st, first):
    c = st.I
    if OPT["rot2"]:
        c(f"s_lshl_b32 {sP2}, {sHQ}, 1"); c(f"s_add_u32 {sP2}, {sP2}, {sCB}")
        if first: c(f"s_add_u32 {sP2}, {sP2}, {first}")
        c(f"s_mul_i32 {sB0}, {sP2}, 37"); c(f"s_lshr_b32 {sB0}, {sB0}, 8"); c(f"s_mul_i32 {sB0}, {sB0}, 7"); c(f"s_sub_u32 {sP2}, {sP2}, {sB0}")
    else:
        c(f"s_mov_b32 {sP2}, {first}")
def g1_dma(st, c, generic, between=None):
    for which, (vD, sr, mul, base, m0r, cm) in enumerate(((vXD, SA, sMulA, sBaseA, sM0A, 128), (vW1D, SB, sMulB, sBaseB, sM0B, 64 * 3584))):
        st.I(f"s_mul_i32 {sB0}, {sIdx}, {mul if generic else cm}"); st.I(f"s_add_u32 {sB0}, {sB0}, {base}")
        if generic:
            st.I(f"s_mov_b32 m0, {m0r}")
            if c < 3: st.I(f"s_add_u32 {m0r}, {m0r}, {sStep}")
        else:
            st.I(f"s_add_u32 m0, {sW12}, {(c & 3) * 32768 + which * 16384}")
        for m in range(4):
            st.I(f"buffer_load_dwordx4 {vD[m]}, {sr}, {sB0} offen offset:{m*1024} lds", tag=f"g1c{c}")
            if between: between()
    st.I(f"s_add_u32 {sIdx}, {sIdx}, 1"); st.I(f"s_and_b32 {sIdx}, {sIdx}, 7")
W2SLOT = [0, 1, 2, 3, 2, 0, 1]
def w2_dma(st, p, between=None):
    for g in range(2):
        if g == 0:
            st.I(f"s_lshl_b32 {sB0}, {sP2}, 16"); st.I(f"s_add_u32 {sB0}, {sB0}, {sW2b}")
        else:
            st.I(f"s_add_u32 {sB0}, {sB0}, 32768")
        st.I(f"s_add_u32 m0, {sW13}, {W2SLOT[p] * 32768 + g * 4096}")
        for m in range(4):
            st.I(f"buffer_load_dwordx4 {vW2D[m]}, {SW2}, {sB0} offen offset:{m*1024} lds", tag=f"w2p{p}")
            if between: between()
    st.I(f"s_add_u32 {sP2}, {sP2}, 1"); st.I(f"s_cmp_eq_u32 {sP2}, 7"); st.I(f"s_cselect_b32 {sP2}, 0, {sP2}")
def make_tag(st):
    st.I(f"v_readfirstlane_b32 {sT[4]}, {vE}")
    st.I(f"s_mul_i32 {sTAG}, {sT[4]}, 0x9E3779B1"); st.I(f"s_add_u32 {sTAG}, {sTAG}, 0x7F4A7C15")
    st.I(f"v_mov_b32 {vTAG}, {sTAG}")
def diag_out(st):
    if not DIAG: return
    st.wait_all(force=True)
    stamp(st)
    st.wait_all(force=True)
    st.I(f"s_lshl_b32 {sT[0]}, s2, 3"); st.I(f"s_add_u32 {sT[0]}, {sT[0]}, {sW8}"); st.I(f"s_lshl_b32 {sT[0]}, {sT[0]}, 6"); st.I(f"s_add_u32 {sT[0]}, {sT[0]}, {WS_DIAG}")
    st.I("s_mov_b64 exec, 1")
    for k in range(st.nstamp):
        st.I(f"v_mov_b32 {t[0]}, s{100-2*k}")
        st.I(f"buffer_store_dword {t[0]}, {vZ}, {SWS}, {sT[0]} offen offset:{4*k}")

I(f"s_cmp_ge_u32 {sW8}, 4")
I("s_cbranch_scc1 L_H")
import copy
VG = copy.deepcopy(V); VH = copy.deepcopy(V)
G = C.fork(); G.nstamp = C.nstamp; G.epoch = 0
H = C.fork(); H.nstamp = C.nstamp; H.epoch = 0

S = H; V = VH; I = H.I
H.label("L_H")
if OPT["prioH"]: I(f"s_setprio {OPT['prioH']}")
I(f"s_lshl_b32 {sT[0]}, {sXCD}, 8"); I(f"s_lshl_b32 {sT[1]}, {sW}, 6"); I(f"s_add_u32 {sT[0]}, {sT[0]}, {sT[1]}"); I(f"s_add_u32 {sS0}, {sT[0]}, {sJ}")
I(f"s_lshl_b32 {sT[6]}, {sS0}, 10"); I(f"s_add_u32 {sT[7]}, {sT[6]}, 32768")
CQ = Q()
fq = V.alloc(); fh4 = V.alloc(); ang = V.alloc(4)
C1 = V.alloc(4); TWc = V.alloc(8); TWs = V.alloc(8)
F32 = [[[V.alloc(4) for p in range(2)] for tt in range(2)] for tau in range(2)]
CN = V.alloc(4); cs = V.alloc(8); kN = V.alloc()
c = CQ.I
c(f"v_cvt_f32_u32 {fq}, {vL15}")
c(f"v_lshlrev_b32 {t[0]}, 2, {vH}"); c(f"v_cvt_f32_u32 {fh4}, {t[0]}")
c(f"v_mul_f32 {t[1]}, {fl(1/16)}, {fq}")
c(f"v_mul_f32 {ang[0]}, {t[1]}, {fh4}")
for e in range(1, 4): c(f"v_add_f32 {ang[e]}, {ang[e-1]}, {t[1]}")
for e in range(4):
    c(f"v_cos_f32 {cs[e]}, {ang[e]}"); c(f"v_sin_f32 {cs[4+e]}, {ang[e]}")
c(f"v_mul_f32 {t[2]}, {fl(1/32)}, {fq}")
c(f"v_cvt_pk_bf16_f32 {C1[0]}, {cs[0]}, {cs[1]}"); c(f"v_cvt_pk_bf16_f32 {C1[1]}, {cs[2]}, {cs[3]}")
c(f"v_cvt_pk_bf16_f32 {C1[2]}, -{cs[4]}, -{cs[5]}"); c(f"v_cvt_pk_bf16_f32 {C1[3]}, -{cs[6]}, -{cs[7]}")
for r in range(4):
    c(f"v_mul_f32 {t[3]}, {fl(1/32)}, {ang[r]}")
    c(f"v_add_f32 {t[4]}, {t[3]}, {t[2]}")
    c(f"v_cos_f32 {TWc[r]}, {t[3]}"); c(f"v_sin_f32 {TWs[r]}, {t[3]}")
    c(f"v_cos_f32 {TWc[4+r]}, {t[4]}"); c(f"v_sin_f32 {TWs[4+r]}, {t[4]}")
c(f"v_and_b32 {t[5]}, 1, {vL}"); c(f"v_mul_u32_u24 {t[5]}, 0x8000, {t[5]}"); c(f"v_lshl_or_b32 {t[5]}, {t[5]}, 16, {t[5]}")
for r in range(4): c(f"v_mul_f32 {ang[r]}, 0.5, {ang[r]}")
for r in range(4):
    c(f"v_cos_f32 {cs[r]}, {ang[r]}"); c(f"v_sin_f32 {cs[4+r]}, {ang[r]}")
for r in range(4): c(f"v_mov_b32 {CN[r]}, {'0x3f80' if r % 2 == 0 else '0xbf80'}")
for r in range(4):
    c(f"v_cvt_pk_bf16_f32 {F32[0][0][0][r]}, {cs[r]}, {cs[4+r]}")
    c(f"v_cvt_pk_bf16_f32 {F32[0][0][1][r]}, -{cs[4+r]}, {cs[r]}")
    for p in range(2): c(f"v_xor_b32 {F32[0][1][p][r]}, {t[5]}, {F32[0][0][p][r]}")
c(f"v_mov_b32 {kN}, {fl(-1/512)}")
S.fq = CQ.l
S.fill(OPT.get("pre", 16))
S.wait_all(vm=False, force=True)
stamp(S)
srd(S, SX, 64, 65, 2048 * 1024)
xa = [V.alloc(4), V.alloc(4)]
I(f"buffer_load_dwordx4 {xa[0]}, {vL16}, {SX}, {sT[6]} offen")
I(f"buffer_load_dwordx4 {xa[1]}, {vL16}, {SX}, {sT[7]} offen")
srd(S, SWS, 80, 81, WS_SIZE)
I(f"buffer_load_dword {vE}, {vZ}, {SWS}, 0 offen sc1")
I("s_barrier")
S.fill_flush()
I(f"s_add_u32 {sQ}, {sJ}, 4"); I(f"s_and_b32 {sQ}, {sQ}, 31")
I(f"s_lshl_b32 {sT[0]}, {sXCD}, 5"); I(f"s_add_u32 {sQ}, {sQ}, {sT[0]}")
I(f"s_lshl_b32 {sF1}, {sW}, 8"); I(f"s_add_u32 {sF1}, {sF1}, {sT[0]}"); I(f"s_add_u32 {sF1}, {sF1}, {sJ}")
I(f"s_lshl_b32 {sF1}, {sF1}, 4"); I(f"s_add_u32 {sF1}, {sF1}, {WS_F1}")
vXNW = V.alloc(); vTR = V.alloc(); vGW = V.alloc(); vGR = V.alloc(); vGS = V.alloc()
I(f"s_lshl_b32 {sT[5]}, {sW}, 11"); I(f"s_add_u32 {sT[5]}, {sT[5]}, {L_XN}")
I(f"v_add_u32 {vXNW}, {sT[5]}, {vL16}")
I(f"v_lshrrev_b32 {t[1]}, 2, {vL}"); I(f"v_lshlrev_b32 {t[2]}, 3, {vL3}")
I(f"v_lshl_add_u32 {t[1]}, {t[1]}, 6, {t[2]}"); I(f"v_add_u32 {vTR}, {sT[5]}, {t[1]}")
I(f"v_mul_u32_u24 {t[0]}, 144, {vL}")
I(f"s_lshl_b32 {sT[5]}, {sW}, 3"); I(f"s_add_u32 {sT[6]}, {sT[5]}, {L_GA}")
I(f"v_add_u32 {vGW}, {sT[6]}, {t[0]}")
I(f"v_lshrrev_b32 {t[1]}, 3, {vL}"); I(f"v_add_u32 {t[1]}, {sT[5]}, {t[1]}"); I(f"v_and_b32 {t[2]}, 7, v0"); I(f"v_lshlrev_b32 {t[2]}, 4, {t[2]}")
I(f"v_mul_u32_u24 {t[3]}, 144, {t[1]}"); I(f"v_add_u32 {t[3]}, {t[3]}, {t[2]}"); I(f"v_add_u32 {vGR}, {L_GA}, {t[3]}")
I(f"v_and_b32 {t[4]}, 15, {t[1]}"); I(f"v_lshrrev_b32 {t[5]}, 4, {t[1]}"); I(f"v_lshl_add_u32 {t[4]}, {t[4]}, 2, {t[5]}")
I(f"v_lshl_add_u32 {vGS}, {t[4]}, 15, {t[2]}")
xf = [V.alloc(8), V.alloc(8)]
red = V.alloc(2)
for p in range(2):
    for e in range(4):
        I(f"v_lshlrev_b32 {xf[p][2*e]}, 16, {xa[p][e]}")
        I(f"v_and_b32 {xf[p][2*e+1]}, 0xffff0000, {xa[p][e]}")
stamp(S)
def tree(dst, src, tmp):
    I(f"v_pk_add_f32 {tmp[0:2]}, {src[0:2]}, {src[2:4]}"); I(f"v_pk_add_f32 {tmp[2:4]}, {src[4:6]}, {src[6:8]}")
    I(f"v_pk_add_f32 {tmp[0:2]}, {tmp[0:2]}, {tmp[2:4]}")
    I(f"v_add_f32 {dst}, {tmp[0]}, {tmp[1]}")
def wave_reduce(regs, sdst):
    for mod in ("row_shr:1 row_mask:0xf bank_mask:0xf bound_ctrl:0", "row_shr:2 row_mask:0xf bank_mask:0xf bound_ctrl:0",
                "row_shr:4 row_mask:0xf bank_mask:0xf bound_ctrl:0", "row_shr:8 row_mask:0xf bank_mask:0xf bound_ctrl:0",
                "row_bcast:15 row_mask:0xa bank_mask:0xf", "row_bcast:31 row_mask:0xc bank_mask:0xf"):
        for r in regs: I(f"v_add_f32_dpp {r}, {r}, {r} {mod}")
    for r, s in zip(regs, sdst): I(f"v_readlane_b32 {s}, {r}, 63")
tree(red[0], xf[0], t[0:4]); tree(red[1], xf[1], t[4:8])
wave_reduce([red[0], red[1]], [sT[0], sT[1]])
dv = V.alloc(8); nm = V.alloc(4)
for p in range(2): I(f"v_mul_f32 {nm[2*p]}, {sT[p]}, {kN}")
for p in range(2):
    for e in range(0, 8, 2): I(f"v_pk_add_f32 {dv[e:e+2]}, {xf[p][e:e+2]}, {nm[2*p:2*p+2]} op_sel_hi:[1,0]")
    I(f"v_pk_mul_f32 {t[2*p:2*p+2]}, {dv[0:2]}, {dv[0:2]}")
    for e in range(2, 8, 2): I(f"v_pk_fma_f32 {t[2*p:2*p+2]}, {dv[e:e+2]}, {dv[e:e+2]}, {t[2*p:2*p+2]}")
    I(f"v_add_f32 {red[p]}, {t[2*p]}, {t[2*p+1]}")
wave_reduce([red[0], red[1]], [sT[2], sT[3]])
stt = V.alloc(2); rs = V.alloc(4); mo = V.alloc(4)
seqs = []
for p in range(2):
    q = Q(); a, b = t[4*p], t[4*p+1]
    q.I(f"v_mul_f32 {a}, {sT[2+p]}, {kN}")
    q.I(f"v_cvt_pk_bf16_f32 {a}, -{a}, -{a}")
    q.I(f"v_lshlrev_b32 {a}, 16, {a}")
    q.I(f"v_add_f32 {a}, {fl(1e-5)}, {a}")
    q.I(f"v_cvt_pk_bf16_f32 {a}, {a}, {a}")
    q.I(f"v_lshlrev_b32 {a}, 16, {a}")
    q.I(f"v_sqrt_f32 {a}, {a}")
    q.I(f"v_cvt_pk_bf16_f32 {stt[p]}, {a}, -{nm[2*p]}")
    q.I(f"v_lshlrev_b32 {a}, 16, {stt[p]}")
    q.I(f"v_rcp_f32 {rs[2*p]}, {a}")
    q.I(f"v_and_b32 {b}, 0xffff0000, {stt[p]}")
    q.I(f"v_mul_f32 {mo[2*p]}, {b}, {rs[2*p]}")
    seqs.append(q.l)
for x, y in zip(*seqs): I(x[0]); I(y[0])
Aop = [[V.alloc(2) for tt in range(2)] for p in range(2)]
for p in range(2):
    for e in range(0, 8, 2):
        I(f"v_pk_fma_f32 {xf[p][e:e+2]}, {xf[p][e:e+2]}, {rs[2*p:2*p+2]}, {mo[2*p:2*p+2]} op_sel_hi:[1,0,0] neg_lo:[0,0,1] neg_hi:[0,0,1]")
    for e in range(4): I(f"v_cvt_pk_bf16_f32 {xa[p][e]}, {xf[p][2*e]}, {xf[p][2*e+1]}")
    I(f"ds_write_b128 {vXNW}, {xa[p]} offset:{p*1024}")
    for tt in range(2): I(f"ds_read_b64_tr_b16 {Aop[p][tt]}, {vTR} offset:{p*1024 + tt*32}")
V.release(xf[0], xf[1], dv, nm, rs, mo, red, cs, ang, kN)
make_tag(S)
gr = V.alloc(2)
I(f"v_cmp_eq_u32 vcc, 0, {vL}")
I(f"v_mov_b32 {gr[1]}, {sTAG}")
I(f"v_lshlrev_b32 {t[0]}, 8, {vL}")
I(f"v_cndmask_b32 {gr[0]}, {stt[1]}, {stt[0]}, vcc")
I(f"s_lshl_b32 {sT[6]}, {sS0}, 3"); I(f"s_add_u32 {sT[6]}, {sT[6]}, {WS_ST}")
D1 = [[[V.alloc(4) for c in range(2)] for tt in range(2)] for p in range(2)]
for p in range(2):
    for tt in range(2):
        for c in range(2): I(f"v_mfma_f32_16x16x16_bf16 {D1[p][tt][c]}, {Aop[p][tt]}, {C1[2*c:2*c+2]}, 0")
I("s_mov_b64 exec, 3")
I(f"buffer_store_dwordx2 {gr}, {t[0]}, {SWS}, {sT[6]} offen sc1")
I("s_mov_b64 exec, -1")
P = [[V.alloc(4) for tt in range(2)] for p in range(2)]
D2 = [[V.alloc(4) for c in range(3)] for p in range(2)]
for p in range(2):
    for tt in range(2):
        for r in range(4):
            cmul_tw(S, D1[p][tt][0][r], D1[p][tt][1][r], TWc[4*tt+r], TWs[4*tt+r], t[2+2*(r&1):4+2*(r&1)], P[p][tt][r])
    for c in range(3):
        for tt in range(2):
            B = F32[0][tt][c] if c < 2 else CN
            I(f"v_mfma_f32_16x16x32_bf16 {D2[p][c]}, {P[p][tt]}, {B}, {'0' if tt == 0 else D2[p][c]}")
I(f"s_lshl_b32 {sT[5]}, {sJ}, 3"); I(f"s_add_u32 {sT[5]}, {sT[5]}, {sXCD}"); I(f"s_lshl_b32 {sT[5]}, {sT[5]}, 7")
I(f"s_add_u32 {sT[5]}, {sT[5]}, {WS_X1}"); I(f"s_add_u32 {sT[6]}, {sT[5]}, {2*32768}")
O = V.alloc(8)
for p in range(2):
    I(f"v_cndmask_b32 {D2[p][1][0]}, {D2[p][1][0]}, {D2[p][2][0]}, vcc")
    for r in range(4): I(f"v_cvt_pk_bf16_f32 {O[2*r+p]}, {D2[p][0][r]}, {D2[p][1][r]}")
for r in range(4): I(f"ds_write_b64 {vGW}, {O[2*r:2*r+2]} offset:{32*r}")
post(S, "H_ga")
aw_issue(S, GRP_H)
srd(S, SA, 64, 65, 2048 * 1024); srd(S, SB, 72, 73, 512 * 3584); srd(S, SW2, 74, 75, 1792 * 1024)
aw_check(S, GRP_H, "H_ga")
I(f"ds_read_b128 {O[0:4]}, {vGR}"); I(f"ds_read_b128 {O[4:8]}, {vGR} offset:{32*144}")
aw_issue(S, GRP_G)
I(f"buffer_store_dwordx4 {O[0:4]}, {vGS}, {SWS}, {sT[5]} offen sc1", tag="x1st")
I(f"buffer_store_dwordx4 {O[4:8]}, {vGS}, {SWS}, {sT[6]} offen sc1", tag="x1st")
stamp(S)
V.release(xa[0], xa[1], stt, vXNW, gr, vTR, C1, TWc, TWs, CN, vGW, vGR)
for p in range(2):
    for c in range(3): V.release(D2[p][c])
    for tt in range(2): V.release(Aop[p][tt], P[p][tt], D1[p][tt][0], D1[p][tt][1])
dma_addr_setup(S, 4)
misc_lane(S)
w2_setup(S, 0)
aw_check(S, GRP_G, "G_tag")
S.wait_tag("x1st")
flag(S, sF1)
V.release(O, vGS)
F64 = [[V.alloc(4) for p in range(2)] for u in range(4)]
TFc = V.alloc(8); TFs = V.alloc(8); TIc = V.alloc(8); TIs = V.alloc(8)
ft = V.alloc(8)
vPF1 = V.alloc(); vPFW = V.alloc(); vXCa = V.alloc(); vKs = V.alloc(); vKs4 = V.alloc(); vST = V.alloc(); vMW = V.alloc()
pf1 = V.alloc(); pfw = V.alloc(4); Wv = V.alloc(8); mm = V.alloc(4)
sXC0, sWT0 = sM0A, sM0B
q = Q(); c = q.I
fk, a0, fw16 = ft[5], ft[6], ft[7]
c(f"s_lshr_b32 {sXC0}, {sQ}, 4"); c(f"s_bfe_u32 {sWT0}, {sQ}, 0x10002"); c(f"s_lshl_b32 {sWT0}, {sWT0}, 4")
c(f"s_add_u32 {sXC0}, {sXC0}, {sWT0}"); c(f"s_lshr_b32 {sXC0}, {sXC0}, 3")
c(f"s_lshl_b32 {sXC0}, {sXC0}, 12"); c(f"s_lshr_b32 {sWT0}, {sW12}, 2"); c(f"s_add_u32 {sXC0}, {sXC0}, {sWT0}"); c(f"s_add_u32 {sXC0}, {sXC0}, {WS_F1}")
c(f"v_add_u32 {vPF1}, {sXC0}, {vL16}")
c(f"v_and_b32 {vPFW}, 7, {vL}"); c(f"v_lshlrev_b32 {vPFW}, 6, {vPFW}"); c(f"s_lshr_b32 {sWT0}, {sW12}, 3"); c(f"s_add_u32 {sWT0}, {sWT0}, {WS_FW}"); c(f"v_add_u32 {vPFW}, {sWT0}, {vPFW}")
c(f"v_and_b32 {ft[0]}, 1, {vH}")
c(f"v_lshlrev_b32 {ft[1]}, 10, {vL15}"); c(f"v_lshl_add_u32 {ft[1]}, {vHH}, 7, {ft[1]}"); c(f"v_lshl_add_u32 {vXCa}, {ft[0]}, 4, {ft[1]}")
c(f"s_lshr_b32 {sXC0}, {sQ}, 2"); c(f"s_lshl_b32 {sXC0}, {sXC0}, 15"); c(f"s_and_b32 {sWT0}, {sQ}, 3"); c(f"s_lshl_b32 {sWT0}, {sWT0}, 5")
c(f"s_add_u32 {sXC0}, {sXC0}, {sWT0}"); c(f"s_lshr_b32 {sWT0}, {sW12}, 4"); c(f"s_add_u32 {sXC0}, {sXC0}, {sWT0}"); c(f"s_add_u32 {sXC0}, {sXC0}, {WS_X1}")
c(f"s_lshl_b32 {sWT0}, {sW}, 4")
c(f"v_lshl_add_u32 {vKs}, {vH}, 8, {vL15}"); c(f"v_add_u32 {vKs}, {sWT0}, {vKs}"); c(f"v_lshlrev_b32 {vKs4}, 2, {vKs}")
c(f"v_cvt_f32_u32 {fw16}, {sWT0}")
c(f"s_lshl_b32 {sWT0}, {sQ}, 13"); c(f"s_add_u32 {sWT0}, {sWT0}, {WS_WT}")
c(f"s_lshl_b32 {sT[0]}, {sAa}, 1"); c(f"s_and_b32 {sT[1]}, {sW}, 1"); c(f"s_add_u32 {sT[0]}, {sT[0]}, {sT[1]}")
c(f"s_lshl_b32 {sT[0]}, {sT[0]}, 2"); c(f"s_lshl_b32 {sT[1]}, {sO}, 8"); c(f"s_add_u32 {sT[0]}, {sT[0]}, {sT[1]}")
c(f"s_lshl_b32 {sT[0]}, {sT[0]}, 3"); c(f"s_add_u32 {sT[0]}, {sT[0]}, {WS_ST}")
c(f"v_lshlrev_b32 {ft[0]}, 3, {vRowOff}"); c(f"v_lshl_add_u32 {ft[0]}, {vHH}, 10, {ft[0]}"); c(f"v_add_u32 {vST}, {sT[0]}, {ft[0]}")
c(f"s_lshl_b32 {sT[0]}, {sW}, 8"); c(f"s_add_u32 {sT[0]}, {sT[0]}, {L_MEAN}"); c(f"v_lshl_add_u32 {vMW}, {vL}, 2, {sT[0]}")
for tt in range(2):
    for p in range(2):
        for r in range(4):
            if r % 2 == 0: c(f"v_mov_b32 {F32[1][tt][p][r]}, {F32[0][tt][p][r]}")
            else: c(f"v_xor_b32 {F32[1][tt][p][r]}, 0x80008000, {F32[0][tt][p][r]}")
c(f"v_add_f32 {fk}, {fw16}, {fq}"); c(f"v_mul_f32 {fk}, {fl(1/64)}, {fk}")
c(f"v_mul_f32 {a0}, {fk}, {fh4}")
for u in range(4):
    for r in range(4):
        c(f"v_fmamk_f32 {ft[0]}, {fk}, {fl(16*u+r)}, {a0}")
        c(f"v_cos_f32 {ft[1]}, {ft[0]}"); c(f"v_sin_f32 {ft[2]}, {ft[0]}")
        c(f"v_mul_f32 {ft[3]}, {fl(1/32)}, {ft[0]}")
        c(f"v_cvt_pk_bf16_f32 {F64[u][0][r]}, {ft[1]}, {ft[2]}")
        c(f"v_cvt_pk_bf16_f32 {F64[u][1][r]}, -{ft[2]}, {ft[1]}")
        if u < 2:
            c(f"v_cos_f32 {TFc[4*u+r]}, {ft[3]}"); c(f"v_sin_f32 {TFs[4*u+r]}, {ft[3]}")
c(f"v_add_f32 {ft[4]}, {fw16}, {fh4}")
for tt in range(2):
    c(f"v_add_f32 {ft[5]}, {fl(16.0*tt)}, {fq}"); c(f"v_mul_f32 {ft[5]}, {fl(1/2048)}, {ft[5]}")
    c(f"v_mul_f32 {ft[6]}, {ft[5]}, {ft[4]}")
    for r in range(4):
        c(f"v_fmamk_f32 {ft[0]}, {ft[5]}, {fl(r)}, {ft[6]}")
        c(f"v_cos_f32 {TIc[4*tt+r]}, {ft[0]}"); c(f"v_sin_f32 {TIs[4*tt+r]}, {ft[0]}")
S.fq = q.l
S.fill(OPT.get("hpre", 80))
LD_F1 = f"buffer_load_dword {pf1}, {vPF1}, {SWS}, 0 offen sc1"
LD_FW = f"buffer_load_dword {pfw[0]}, {vPFW}, {SWS}, 0 offen sc1"
LD_ST = f"buffer_load_dwordx2 {mm[0:2]}, {vST}, {SWS}, 0 offen sc1"
fb = lambda: S.fill(5)
def w_loads():
    I(f"s_add_u32 {sT[7]}, {sWT0}, 4096")
    for tau in range(2):
        for r in range(4):
            I(f"buffer_load_dword {Wv[4*tau+r]}, {vKs4}, {SWS}, {sWT0 if tau == 0 else sT[7]} offen offset:{256*r} sc1")
I(f"s_cmp_ge_u32 {sJ}, 28")
I("s_cbranch_scc1 L_H_free")
FH = S.fork(); tail.append(FH); FH.fq = list(S.fq)
for cc in range(4, 8):
    await_(S, GRP_G, f"G_rel{cc-4}")
    if OPT.get("fine") and not (OPT.get("fine2") and cc > 4): stamp(S)
    g1_dma(S, cc, False, fb)
    if cc == 7: I(LD_F1)
    if cc == 5: I(LD_ST)
    if cc > 4:
        S.wait_tag(f"g1c{cc-1}"); post(S, f"H_c{cc-1}")
    if cc == 6:
        poll_check(S, [LD_ST], [mm[1]], t[7])
        I(f"v_and_b32 {mm[0]}, 0xffff0000, {mm[0]}")
        I(f"ds_write_b32 {vMW}, {mm[0]}")
stamp(S)
S.vm_snapshot = None
S.fill_flush()
S.wait_tag("g1c7"); post(S, "H_c7")
S.label("L_H_join")
FH.label("L_H_free")
FH.fill_flush()
await_(FH, GRP_G, "G_c0")
FH.I(LD_F1)
FH.wait_all(force=True)
FH.I("s_branch L_H_join")
poll_check(S, [LD_F1], [pf1], t[7])
I(f"s_lshr_b32 {sB0}, {sW12}, 2"); I(f"s_add_u32 m0, {sB0}, {L_XC}")
I(f"buffer_load_dwordx4 {vXCa}, {SWS}, {sXC0} offen sc1 lds", tag="xc")
I(f"s_add_u32 m0, {sB0}, {L_XC + 4096}"); I(f"s_add_u32 {sB0}, {sXC0}, 16384")
I(f"buffer_load_dwordx4 {vXCa}, {SWS}, {sB0} offen sc1 lds", tag="xc")
I(LD_FW)
if OPT.get("fine"): stamp(S)
NWH = OPT.get("nwh", 2)
def h_w2(p):
    await_(S, GRP_G, f"G_rel{4+p}")
    w2_dma(S, p)
if NWH > 0: h_w2(0)
poll_check(S, [LD_FW], [pfw[0]], t[7])
post(S, "H_xc")
stamp(S)
FR = [[V.alloc(4) for u in range(4)] for tt in range(2)]
DD = [[V.alloc(4) for p in range(2)] for tt in range(2)]
PP = [V.alloc(4) for tt in range(2)]
vLX = V.alloc()
I(f"v_add_u32 {vLX}, {S4}, {vL16}")
await_(S, GRP_H, "H_xc")
def big_step(base, mid=None):
    for u in range(4):
        for tt in range(2): I(f"ds_read_b128 {FR[tt][u]}, {vLX} offset:{base - S4 + (tt*4+u)*1024}")
    if mid: mid()
    for u in range(4):
        for tt in range(2):
            for p in range(2):
                I(f"v_mfma_f32_16x16x32_bf16 {DD[tt][p]}, {FR[tt][u]}, {F64[u][p]}, {'0' if u == 0 else DD[tt][p]}")
def mid1():
    I(f"s_or_b32 {sT[0]}, s2, {sW}"); I(f"s_cmp_lg_u32 {sT[0]}, 0"); I("s_cbranch_scc1 L_noepoch")
    flag(S, "0", counted=False)
    S.label("L_noepoch")
    post(S, "H_fr")
    w_loads()
big_step(L_XC, mid1)
if NWH > 1: h_w2(1)
for tt in range(2):
    for r in range(4): cmul_tw(S, DD[tt][0][r], DD[tt][1][r], TFc[4*tt+r], TFs[4*tt+r], t[2*(r&1):2*(r&1)+2], PP[tt][r])
for tau in range(2):
    for p in range(2):
        for tt in range(2):
            I(f"v_mfma_f32_16x16x32_bf16 {DD[tau][p]}, {F32[tau][tt][p]}, {PP[tt]}, {'0' if tt == 0 else DD[tau][p]}")
if OPT.get("fine2"): stamp(S)
S.epoch += 2; EP["H_sp1"] = S.epoch - 1; EP["H_sp2"] = S.epoch
I(f"s_cmp_eq_u32 {sQ}, 0")
I("s_cbranch_scc1 L_special")
F = S.fork(); tail.append(F)
for tau in range(2):
    for r in range(4):
        wr_, wi_ = t[4+2*(r&1)], t[5+2*(r&1)]; o = t[2*(r&1):2*(r&1)+2]
        ur, ui = DD[tau][0][r], DD[tau][1][r]
        I(f"v_lshlrev_b32 {wr_}, 16, {Wv[4*tau+r]}"); I(f"v_and_b32 {wi_}, 0xffff0000, {Wv[4*tau+r]}")
        I(f"v_mul_f32 {o[0]}, {ur}, {wr_}"); I(f"v_mul_f32 {o[1]}, {ur}, {wi_}")
        I(f"v_fma_f32 {o[0]}, -{ui}, {wi_}, {o[0]}"); I(f"v_fmac_f32 {o[1]}, {ui}, {wr_}")
        I(f"v_cvt_pk_bf16_f32 {PP[tau][r]}, {o[0]}, -{o[1]}")
S.label("L_special_done")
F.label("L_special")
F.nop(10)
sx = V.alloc(24); sa = FR[0][2]; q8 = [FR[0][i>>2][i&3] for i in range(8)]
svp = [FR[1][k>>1][2*(k&1):2*(k&1)+2] for k in range(8)]
await_(F, GRP_H, "H_fr")
F.I(f"v_lshlrev_b32 {sa[0]}, 3, {vKs}"); F.I(f"v_add_u32 {sa[0]}, {L_SP}, {sa[0]}")
for tau in range(2):
    for r in range(4):
        F.I(f"v_mov_b32 {sa[2]}, {DD[tau][0][r]}"); F.I(f"v_mov_b32 {sa[3]}, {DD[tau][1][r]}")
        F.I(f"ds_write_b64 {sa[0]}, {sa[2:4]} offset:{(16*tau + r)*512}")
post(F, "H_sp1", alias=True)
F.I(f"s_mov_b32 {sT[0]}, {WS_WT + 256*8192}"); F.I(f"s_mov_b32 {sT[1]}, {WS_WT + 256*8192 + 4096}"); F.I(f"s_mov_b32 {sT[2]}, {WS_WT}")
for tau in range(2):
    for r in range(4):
        F.I(f"buffer_load_dword {sx[4*tau+r]}, {vKs4}, {SWS}, {sT[tau]} offen offset:{256*r} sc1")
await_(F, GRP_H, "H_sp1")
for tau in range(2):
    for r in range(4):
        k = 4 * tau + r
        F.I(f"v_sub_u32 {sa[2]}, {2048 - 64*(16*tau+r)}, {vKs}"); F.I(f"v_and_b32 {sa[2]}, 2047, {sa[2]}")
        F.I(f"v_lshlrev_b32 {sa[3]}, 2, {sa[2]}")
        F.I(f"buffer_load_dword {sx[8+k]}, {sa[3]}, {SWS}, {sT[2]} offen sc1")
        F.I(f"buffer_load_dword {sx[16+k]}, {sa[3]}, {SWS}, {sT[0]} offen sc1")
        F.I(f"v_lshlrev_b32 {sa[2]}, 3, {sa[2]}"); F.I(f"v_add_u32 {sa[2]}, {L_SP}, {sa[2]}")
        F.I(f"ds_read_b64 {svp[k]}, {sa[2]}")
post(F, "H_sp2", alias=True)
for tau in range(2):
    for r in range(4):
        k = 4 * tau + r
        ur, ui = DD[tau][0][r], DD[tau][1][r]; vr, vi = svp[k][0], svp[k][1]
        def lo(d, s): F.I(f"v_lshlrev_b32 {d}, 16, {s}")
        def hi(d, s): F.I(f"v_and_b32 {d}, 0xffff0000, {s}")
        lo(q8[0], Wv[k]); hi(q8[1], Wv[k]); lo(q8[2], sx[8+k]); hi(q8[3], sx[8+k])
        F.I(f"v_add_f32 {q8[0]}, {q8[0]}, {q8[2]}"); F.I(f"v_sub_f32 {q8[1]}, {q8[1]}, {q8[3]}")
        lo(q8[2], sx[k]); hi(q8[3], sx[k]); lo(q8[4], sx[16+k]); hi(q8[5], sx[16+k])
        F.I(f"v_add_f32 {q8[2]}, {q8[2]}, {q8[4]}"); F.I(f"v_sub_f32 {q8[3]}, {q8[3]}, {q8[5]}")
        F.I(f"v_add_f32 {q8[4]}, {ur}, {vr}"); F.I(f"v_sub_f32 {q8[5]}, {ui}, {vi}")
        F.I(f"v_sub_f32 {q8[6]}, {ur}, {vr}"); F.I(f"v_add_f32 {q8[7]}, {ui}, {vi}")
        F.I(f"v_mul_f32 {t[0]}, {q8[0]}, {q8[4]}"); F.I(f"v_fma_f32 {t[0]}, -{q8[1]}, {q8[5]}, {t[0]}")
        F.I(f"v_fmac_f32 {t[0]}, {q8[2]}, {q8[6]}"); F.I(f"v_fma_f32 {t[0]}, -{q8[3]}, {q8[7]}, {t[0]}")
        F.I(f"v_mul_f32 {t[1]}, {q8[0]}, {q8[5]}"); F.I(f"v_fmac_f32 {t[1]}, {q8[1]}, {q8[4]}")
        F.I(f"v_fmac_f32 {t[1]}, {q8[2]}, {q8[7]}"); F.I(f"v_fmac_f32 {t[1]}, {q8[3]}, {q8[6]}")
        F.I(f"v_mul_f32 {t[0]}, {fl(0.125)}, {t[0]}"); F.I(f"v_mul_f32 {t[1]}, {fl(0.125)}, {t[1]}")
        F.I(f"v_cvt_pk_bf16_f32 {PP[tau][r]}, {t[0]}, -{t[1]}")
await_(F, GRP_H, "H_sp2")
F.wait_all(force=True)
F.nop(2)
F.I("s_branch L_special_done")
V.release(sx)
for tt in range(2):
    for p in range(2):
        for tau in range(2):
            I(f"v_mfma_f32_16x16x32_bf16 {DD[tt][p]}, {PP[tau]}, {F32[tt][tau][p]}, {'0' if tau == 0 else DD[tt][p]}")
if OPT.get("fine2"): stamp(S)
if NWH > 0: S.wait_tag("w2p0"); post(S, "H_w0")
P3 = [FR[0][0], FR[0][1]]
I(f"s_lshr_b32 {sT[0]}, {sW12}, 2"); I(f"v_add_u32 {t[6]}, {sT[0]}, {vLX}")
for tt in range(2):
    for r in range(4): cmul_tw(S, DD[tt][0][r], DD[tt][1][r], TIc[4*tt+r], TIs[4*tt+r], t[2*(r&1):2*(r&1)+2], P3[tt][r])
    I(f"ds_write_b128 {t[6]}, {P3[tt]} offset:{L_EX - S4 + tt*4096}")
post(S, "H_ex")
aw_issue(S, GRP_H)
I(f"s_lshl_b32 {sT[0]}, {sQ}, 13"); I(f"s_lshr_b32 {sT[1]}, {sW12}, 2"); I(f"s_add_u32 {sT[0]}, {sT[0]}, {sT[1]}"); I(f"s_add_u32 {sT[0]}, {sT[0]}, {WS_Y1}")
I(f"s_add_u32 {sT[1]}, {sT[0]}, 4096")
sF3 = sF1
I(f"s_lshl_b32 {sF3}, {sW}, 8"); I(f"s_add_u32 {sF3}, {sF3}, {sQ}"); I(f"s_lshl_b32 {sF3}, {sF3}, 4"); I(f"s_add_u32 {sF3}, {sF3}, {WS_F3}")
aw_check(S, GRP_H, "H_ex")
if OPT.get("fine2"): stamp(S)
big_step(L_EX)
if NWH > 1: S.wait_tag("w2p1"); post(S, "H_w1")
for p in range(2):
    for tt in range(2):
        for e in range(2): I(f"v_cvt_pk_bf16_f32 {PP[p][2*tt+e]}, {DD[tt][p][2*e]}, {DD[tt][p][2*e+1]}")
    I(f"buffer_store_dwordx4 {PP[p]}, {vL16}, {SWS}, {sT[p]} offen sc1", tag="y1st")
stamp(S)
V.release(TFc, TFs, TIc, TIs, Wv, pfw, mm, vKs, vKs4, fq, fh4, vXCa, vPFW, vST, vMW)
for u in range(4): V.release(F64[u][0], F64[u][1], FR[0][u], FR[1][u])
for a in range(2):
    for b in range(2): V.release(DD[a][b], F32[a][b][0], F32[a][b][1])
sAD, sKH, sOB, sY = sM0A, sM0B, sBaseA, sBaseB
def out_addr(st, vOA, tmp):
    c = st.I
    c(f"s_and_b32 {sAD}, {sW}, 1"); c(f"s_lshr_b32 {sKH}, {sW}, 1")
    c(f"v_lshlrev_b32 {tmp[0]}, 5, {vHH}"); c(f"v_and_b32 {tmp[1]}, 1, {vH}"); c(f"v_lshl_add_u32 {tmp[0]}, {tmp[1]}, 4, {tmp[0]}"); c(f"v_add_u32 {tmp[0]}, {tmp[0]}, {vRp}")
    c(f"v_lshlrev_b32 {tmp[1]}, 4, {vL3}"); c(f"v_lshl_add_u32 {vOA[0]}, {tmp[0]}, 10, {tmp[1]}")
    c(f"v_add_u32 {vOA[1]}, {65536-1024}, {vOA[0]}")
    c(f"s_lshl_b32 {sOB}, {sXCD}, 8"); c(f"s_lshl_b32 {sT[0]}, {sKH}, 7"); c(f"s_add_u32 {sOB}, {sOB}, {sT[0]}"); c(f"s_lshl_b32 {sT[0]}, {sHQ}, 2"); c(f"s_add_u32 {sOB}, {sOB}, {sT[0]}")
    c(f"s_lshl_b32 {sT[3]}, {sOB}, 3"); c(f"s_add_u32 {sT[3]}, {sT[3]}, {WS_ST}")
    c(f"s_lshl_b32 {sOB}, {sOB}, 10"); c(f"s_lshl_b32 {sT[0]}, {sCB}, 7"); c(f"s_add_u32 {sOB}, {sOB}, {sT[0]}"); c(f"s_lshl_b32 {sT[0]}, {sAD}, 6"); c(f"s_add_u32 {sOB}, {sOB}, {sT[0]}")
GM = [V.alloc(4) for k in range(16)]
vYD = V.alloc(4); vOA = V.alloc(2); vYR = V.alloc(2); vPF3 = vPF1; pf3 = pf1
out_addr(S, vOA, ft)
I(f"s_lshr_b32 {sB0}, {sW12}, 1"); I(f"s_add_u32 m0, {sB0}, {L_XT}")
for m in range(2): I(f"buffer_load_dwordx4 {vOA[m]}, {SX}, {sOB} offen offset:{m*1024} lds", tag="xt")
gq = Q(); c = gq.I
fd, ab, vSel, vMsk = ft[4], ft[5], ft[6], ft[7]
c(f"s_lshr_b32 {sT[0]}, {sXCD}, 1"); c(f"s_lshl_b32 {sT[1]}, {sT[0]}, 12"); c(f"s_lshr_b32 {sT[2]}, {sW12}, 2"); c(f"s_add_u32 {sT[1]}, {sT[1]}, {sT[2]}"); c(f"s_add_u32 {sT[1]}, {sT[1]}, {WS_F3}")
c(f"v_add_u32 {vPF3}, {sT[1]}, {vL16}")
c(f"s_lshl_b32 {sY}, {sT[0]}, 10"); c(f"s_lshl_b32 {sT[2]}, {sHQ}, 8"); c(f"s_add_u32 {sY}, {sY}, {sT[2]}")
c(f"s_and_b32 {sT[2]}, {sXCD}, 1"); c(f"s_lshl_b32 {sT[2]}, {sT[2]}, 7"); c(f"s_add_u32 {sY}, {sY}, {sT[2]}")
c(f"s_lshl_b32 {sT[2]}, {sW}, 19"); c(f"s_add_u32 {sY}, {sY}, {sT[2]}"); c(f"s_add_u32 {sY}, {sY}, {WS_Y1}")
c(f"v_lshrrev_b32 {ft[0]}, 3, {vL}"); c(f"v_lshl_add_u32 {vYD[0]}, {ft[0]}, 12, {vD8}")
for m in range(1, 4): c(f"v_add_u32 {vYD[m]}, {m*(32768-1024)}, {vYD[0]}")
c(f"s_lshl_b32 {sT[0]}, {sKH}, 14"); c(f"s_lshl_b32 {sT[1]}, {sKH}, 6")
c(f"v_xor_b32 {ft[0]}, {sT[1]}, {vTRa}"); c(f"v_add_u32 {vYR[0]}, {sT[0]}, {ft[0]}"); c(f"v_xor_b32 {vYR[1]}, 64, {vYR[0]}")
c(f"s_lshl_b32 {sT[0]}, {sCB}, 6"); c(f"s_lshl_b32 {sT[2]}, {sAD}, 5"); c(f"s_add_u32 {sT[0]}, {sT[0]}, {sT[2]}")
c(f"v_add_u32 {ft[0]}, {sT[0]}, {vL31}"); c(f"v_cvt_f32_u32 {fd}, {ft[0]}"); c(f"v_mul_f32 {fd}, {fl(1/512)}, {fd}")
c(f"v_lshl_add_u32 {ft[1]}, {vHH}, 1, {sT[1]}"); c(f"v_cvt_f32_u32 {ft[1]}, {ft[1]}"); c(f"v_mul_f32 {ab}, {fd}, {ft[1]}")
c(f"v_and_b32 {ft[0]}, 1, {vL}"); c(f"v_mul_u32_u24 {ft[1]}, 0x0202, {ft[0]}"); c(f"v_lshl_or_b32 {ft[1]}, {ft[1]}, 16, {ft[1]}"); c(f"v_xor_b32 {vSel}, 0x03020100, {ft[1]}")
c(f"v_bfe_u32 {ft[1]}, {vL}, 1, 1"); c(f"v_xor_b32 {ft[2]}, {ft[1]}, {ft[0]}"); c(f"v_lshlrev_b32 {ft[1]}, 31, {ft[1]}"); c(f"v_lshl_or_b32 {vMsk}, {ft[2]}, 15, {ft[1]}")
for kl in range(8):
    for rho in range(4):
        c(f"v_fmamk_f32 {ft[0]}, {fd}, {fl(8*kl + 4*(rho>>1) + (rho&1))}, {ab}")
        c(f"v_cos_f32 {ft[1]}, {ft[0]}"); c(f"v_sin_f32 {ft[2]}, {ft[0]}")
        if not (kl == 0 and rho == 0):
            pk, pr = (kl, rho - 1) if rho else (kl - 1, 3)
            c(f"v_perm_b32 {ft[3]}, {GM[pk][pr]}, {GM[pk][pr]}, {vSel}")
            c(f"v_cvt_pk_bf16_f32 {GM[kl][rho]}, {ft[1]}, {ft[2]}")
            c(f"v_xor_b32 {GM[8+pk][pr]}, {vMsk}, {ft[3]}")
        else:
            c(f"v_cvt_pk_bf16_f32 {GM[kl][rho]}, {ft[1]}, {ft[2]}")
c(f"v_perm_b32 {ft[3]}, {GM[7][3]}, {GM[7][3]}, {vSel}"); c(f"v_xor_b32 {GM[15][3]}, {vMsk}, {ft[3]}")
c(f"v_and_b32 {ft[0]}, 1, {vL}"); c(f"v_lshlrev_b32 {ft[0]}, 31, {ft[0]}"); c(f"v_xor_b32 {ft[0]}, 0xbf803f80, {ft[0]}")
c(f"s_sub_u32 {sT[4]}, {sKH}, 1"); c(f"s_mov_b32 {sT[5]}, 0")
c(f"v_cndmask_b32 {GM[0][0]}, {GM[0][0]}, {ft[0]}, s[48:49]")
S.fq = gq.l
S.fill(OPT.get("gpre", 120))
S.wait_tag("y1st"); flag(S, sF3)

V.release(PP[0], PP[1])
S.fill_flush()
LD_F3 = f"buffer_load_dword {pf3}, {vPF3}, {SWS}, 0 offen sc1"
await_(S, GRP_G, "G_s01")
I(LD_F3)
poll_check(S, [LD_F3], [pf3], t[7])
stamp(S)
for g in range(4):
    I(f"s_lshl_b32 {sB0}, {sW}, 14"); I(f"s_add_u32 m0, {sB0}, {g*4096}")
    I(f"s_add_u32 {sB0}, {sY}, {g*32*4096}")
    for m in range(4): I(f"buffer_load_dwordx4 {vYD[m]}, {SWS}, {sB0} offen offset:{m*1024} sc1 lds", tag="yb")
S.wait_tag("yb"); post(S, "H_yb")
sac = [V.alloc(16), V.alloc(16)]
V.release(vYD, vOA, ft, vXD, vW1D)
NY = OPT.get("ny", 13)
yf = [[V.alloc(4) for b in range(2)] for s in range(NY)]
vSW = V.alloc(); vSR = V.alloc()
I(f"v_add_u32 {vSW}, {sW12}, {vLX}"); I(f"v_xor_b32 {vSR}, 0x2000, {vSW}")
p2_set(S, 5)
await_(S, GRP_H, "H_yb")
stamp(S)
def y_reads(k):
    kk = k if k < 8 else k + 8
    return [f"ds_read_b64_tr_b16 {yf[k%NY][b][2*j:2*j+2]}, {vYR[b]} offset:{kk*2048 + j*1024}" for b in (1, 0) for j in range(2)]
rd = []
for k in range(16): rd += [(k, l) for l in y_reads(k)]
for _ in range(12): I(rd.pop(0)[1])
class Cap:
    def __init__(self): self.l = []
    def I(self, text, **kw): self.l.append((text, kw))
def groups_of(fn):
    cap = Cap(); fn(cap); gs = []; grp = []
    for it in cap.l:
        grp.append(it)
        if it[0].startswith("buffer_load"):
            gs.append(grp); grp = []
    gs[-1] += grp
    return gs
posted = False
for k in range(16):
    for b in (1, 0):
        I(f"v_mfma_f32_32x32x16_bf16 {sac[b]}, {GM[k]}, {yf[k%NY][b]}, {'0' if k == 0 else sac[b]}")
        n = 0
        while rd and n < 5 and rd[0][0] - NY < k: I(rd.pop(0)[1]); n += 1
        if not rd and not posted:
            post(S, "H_yr"); aw_issue(S, GRP_H); posted = k
        if posted is not False and k == posted + 2 and b == 1:
            aw_check(S, GRP_H, "H_yr")
            for p in (5, 6):
                for g in groups_of(lambda st, p=p: w2_dma(st, p)): S.bg_push(g)
        S.bg_pop(2)
S.bg_flush()
for g in range(4): I(f"ds_write_b128 {vSR}, {sac[1][4*g:4*g+4]} offset:{g*1024}")
post(S, "H_sx")
await_(S, GRP_H, "H_sx")
for g in range(4): I(f"ds_read_b128 {sac[1][4*g:4*g+4]}, {vSW} offset:{g*1024}")
for g in range(4):
    for e in range(2): I(f"v_pk_add_f32 {sac[0][4*g+2*e:4*g+2*e+2]}, {sac[0][4*g+2*e:4*g+2*e+2]}, {sac[1][4*g+2*e:4*g+2*e+2]}")
    I(f"ds_write_b128 {vSW}, {sac[0][4*g:4*g+4]} offset:{g*1024}")
S.wait_tag("w2p5"); post(S, "H_w5")
S.wait_tag("w2p6"); post(S, "H_done")
diag_out(S)
I("s_endpgm")

S = G; V = VG; I = G.I
if OPT["prioG"]: I(f"s_setprio {OPT['prioG']}")
dma_addr_setup(S, 0)
I(f"s_mov_b32 {sMulA}, 128"); I(f"s_mov_b32 {sMulB}, {64*3584}")
I(f"s_mov_b32 {sM0A}, {sW12}"); I(f"s_add_u32 {sM0B}, {sW12}, 16384"); I(f"s_mov_b32 {sStep}, 32768")
I("s_mov_b32 s14, 0x200000"); I(f"s_mov_b32 s18, {512*3584}"); I("s_mov_b32 s15, 0x20000"); I("s_mov_b32 s19, 0x20000")
I(f"s_cmp_lt_u32 {sJ}, 28")
I("s_cbranch_scc1 L_notfree0")
for m in range(4): I(f"v_mov_b32 {vXD[m]}, {vL16}"); I(f"v_mov_b32 {vW1D[m]}, {vL16}")
I(f"s_lshl_b32 {sWI}, {sXCD}, 2"); I(f"s_add_u32 {sWI}, {sWI}, {sJ}"); I(f"s_sub_u32 {sWI}, {sWI}, 28")
I(f"s_mul_i32 {sBaseA}, {sWI}, 32896"); I(f"s_add_u32 s14, {sBaseA}, 32896"); I("s_mov_b32 s18, s14")
I(f"s_add_u32 {sBaseA}, {sBaseA}, {sW12}"); I(f"s_mov_b32 {sBaseB}, {sBaseA}")
I(f"s_mov_b32 {sMulA}, 16384"); I(f"s_mov_b32 {sMulB}, 16384"); I(f"s_add_u32 {sM0B}, {sW12}, 65536"); I(f"s_mov_b32 {sStep}, 16384"); I(f"s_mov_b32 {sIdx}, 0")
S.label("L_notfree0")
WI_OFF = 65536
S.wait_all(vm=False, force=True)
stamp(S)
I(f"s_cmp_lt_u32 {sJ}, 28")
I("s_cselect_b32 s12, s64, s66"); I("s_cselect_b32 s13, s65, s67"); I("s_cselect_b32 s16, s72, s68"); I("s_cselect_b32 s17, s73, s69")
I("s_and_b32 s13, s13, 0xffff"); I("s_and_b32 s17, s17, 0xffff")
srd(S, SWS, 80, 81, WS_SIZE); srd(S, SW2, 74, 75, 1792 * 1024)
I("s_barrier")
I(f"buffer_load_dword {vE}, {vZ}, {SWS}, 0 offen sc1")
g1_dma(S, 0, True)
if OPT["pretouch"]:
    I(f"s_lshl_b32 {sT[0]}, s2, 2"); I(f"s_add_u32 {sT[0]}, {sT[0]}, {sW}"); I(f"s_mul_i32 {sT[0]}, {sT[0]}, {14*128}")
    I(f"v_lshlrev_b32 {t[7]}, 7, {vL}")
    I("s_mov_b64 exec, 0x3fff")
    I(f"buffer_load_dword v255, {t[7]}, {SW2}, {sT[0]} offen", counted=False)
    I("s_mov_b64 exec, -1")
srd(S, SOUT, 76, 77, 2048 * 1024)
misc_lane(S)
make_tag(S)
post(S, "G_tag")
g1_dma(S, 1, True)
acc = [[V.alloc(16) for b in range(2)] for a in range(2)]
vW2R = V.alloc(4)
I(f"s_and_b32 {sT[0]}, {sW}, 1"); I(f"s_lshl_b32 {sT[0]}, {sT[0]}, 6")
I(f"v_xor_b32 {t[1]}, {sT[0]}, {vTRa}"); I(f"v_add_u32 {vW2R[0]}, {sW13}, {t[1]}"); I(f"v_xor_b32 {vW2R[1]}, 64, {vW2R[0]}")
I(f"v_add_u32 {vW2R[2]}, 0x10000, {vW2R[0]}"); I(f"v_add_u32 {vW2R[3]}, 0x10000, {vW2R[1]}")
w2_setup(S, NWH)
stamp(S)
I(f"s_cmp_ge_u32 {sJ}, 28")
I("s_cbranch_scc1 L_free_wprep")
Ffree = S.fork()
vXR = V.alloc(4); vWR = V.alloc(4)
sWRr, sWF = sM0A, sM0B
I(f"s_and_b32 {sWRr}, {sW}, 1"); I(f"s_lshr_b32 {sWF}, {sW}, 1")
I(f"s_lshl_b32 {sT[0]}, {sWRr}, 13"); I(f"v_lshlrev_b32 {t[0]}, 7, {vL31}"); I(f"v_add_u32 {t[0]}, {sT[0]}, {t[0]}")
I(f"v_bfe_u32 {t[1]}, {vL}, 1, 3"); I(f"v_xor_b32 {t[1]}, {t[1]}, {vHH}")
I(f"s_lshl_b32 {sT[1]}, {sWRr}, 2"); I(f"v_xor_b32 {t[1]}, {sT[1]}, {t[1]}")
I(f"v_lshl_add_u32 {vXR[0]}, {t[1]}, 4, {t[0]}")
I(f"v_lshl_add_u32 {t[0]}, {vHH}, 3, {vRp}"); I(f"v_lshl_add_u32 {t[0]}, {t[0]}, 8, {vTRL}")
I(f"s_lshl_b32 {sT[1]}, {sWF}, 1"); I(f"v_xor_b32 {t[1]}, {sT[1]}, {vRp}")
I(f"v_lshl_add_u32 {t[0]}, {t[1]}, 6, {t[0]}")
I(f"s_add_u32 {sT[1]}, {sT[0]}, 16384"); I(f"s_sub_u32 {sT[2]}, 16384, {sT[0]}")
I(f"v_add_u32 {vWR[0]}, {sT[1]}, {t[0]}"); I(f"v_xor_b32 {vWR[1]}, 64, {vWR[0]}")
I(f"v_add_u32 {vWR[2]}, {sT[2]}, {t[0]}"); I(f"v_xor_b32 {vWR[3]}, 64, {vWR[2]}")
for k in range(1, 4): I(f"v_xor_b32 {vXR[k]}, {k*32}, {vXR[0]}")
vXR2 = V.alloc(4); vWR2 = V.alloc(4)
for k in range(4): I(f"v_add_u32 {vXR2[k]}, 0x10000, {vXR[k]}"); I(f"v_add_u32 {vWR2[k]}, 0x10000, {vWR[k]}")
S.wait_tag("g1c0"); post(S, "G_c0")
csa = [V.alloc(4) for a in range(2)]
NS = 3
fx = [[V.alloc(4) for b in range(2)] for s in range(NS)]
fw_ = [[V.alloc(4) for a in range(2)] for s in range(NS)]
ONES = V.alloc(4)
aw_issue(S, GRP_G)
I(f"v_and_b32 {t[0]}, 1, {vH}"); I(f"v_cmp_eq_u32 vcc, {t[0]}, {vL15}")
I(f"v_mov_b32 {t[1]}, 0x3f803f80")
for r in range(4): I(f"v_cndmask_b32 {ONES[r]}, 0, {t[1]}, vcc")
def g1_reads(step):
    c, k = divmod(step, 4); s = step % NS
    sl = (c & 1) * 32768
    xr_, wr_ = (vXR2, vWR2) if c & 2 else (vXR, vWR)
    l = []
    def wr(a):
        for j in range(2):
            l.append(f"ds_read_b64_tr_b16 {fw_[s][a][2*j:2*j+2]}, {wr_[2*(k>>1)+a]} offset:{sl + k*4096 + j*1024}")
    def xr(b): l.append(f"ds_read_b128 {fx[s][b]}, {xr_[k]} offset:{sl + b*4096}")
    wr(0); xr(0); xr(1); wr(1)
    return l
vCSW = V.alloc(); vCSR = V.alloc(); vMR = V.alloc(); mm = V.alloc(4)
sH0 = sStep
eq = Q(); c = eq.I
c(f"v_lshlrev_b32 {t[0]}, 6, {vL15}"); c(f"v_lshl_add_u32 {t[0]}, {vH}, 4, {t[0]}")
c(f"s_lshl_b32 {sT[0]}, {sW}, 8"); c(f"s_add_u32 {sT[1]}, {sT[0]}, {L_CS}"); c(f"v_add_u32 {vCSW}, {sT[1]}, {t[0]}")
c(f"s_add_u32 {sT[1]}, {sT[0]}, {L_MEAN}"); c(f"v_lshl_add_u32 {vMR}, {vL31}, 2, {sT[1]}")
c(f"s_lshl_b32 {sT[0]}, {sWF}, 9"); c(f"s_add_u32 {sT[0]}, {sT[0]}, {L_CS}")
c(f"v_lshlrev_b32 {t[0]}, 4, {vHH}"); c(f"v_add_u32 {vCSR}, {sT[0]}, {t[0]}")
c(f"s_lshl_b32 {sT[0]}, {sAa}, 1"); c(f"s_add_u32 {sT[0]}, {sT[0]}, {sWRr}")
c(f"s_lshl_b32 {sTT}, {sO}, 2"); c(f"s_add_u32 {sTT}, {sTT}, {sT[0]}")
c(f"s_mul_i32 {sH0}, {sTT}, 229376"); c(f"s_lshl_b32 {sT[1]}, {sFB}, 14"); c(f"s_add_u32 {sH0}, {sH0}, {sT[1]}")
c(f"s_lshl_b32 {sT[1]}, {sWF}, 13"); c(f"s_add_u32 {sH0}, {sH0}, {sT[1]}"); c(f"s_add_u32 {sH0}, {sH0}, {WS_H}")
c(f"s_lshl_b32 {sF2}, {sTT}, 9"); c(f"s_lshl_b32 {sT[1]}, {sFB}, 5"); c(f"s_add_u32 {sF2}, {sF2}, {sT[1]}")
c(f"s_lshl_b32 {sT[1]}, {sWF}, 4"); c(f"s_add_u32 {sF2}, {sF2}, {sT[1]}"); c(f"s_add_u32 {sF2}, {sF2}, {WS_F2}")
S.fq = eq.l
aw_check(S, GRP_G, "G_c0")
for cc in (2, 3):
    cap = Cap(); g1_dma(cap, cc, False)
    grp = []
    for it in cap.l:
        grp.append(it)
        if it[0].startswith("buffer_load"):
            S.bg_push(grp); grp = []
    S.bg[-1] += grp
for st_ in range(NS - 1):
    for l in g1_reads(st_): I(l)
csv = [V.alloc(4) for i in range(8)]; cst = [V.alloc(4) for i in range(6)] + [vXD, vW1D]
for step in range(32):
    c_, k = divmod(step, 4); s = step % NS
    nxt = step + NS - 1
    mf = [f"v_mfma_f32_32x32x16_bf16 {acc[a][b]}, {fw_[s][a]}, {fx[s][b]}, {'0' if step == 0 else acc[a][b]}" for a, b in ((0, 0), (0, 1), (1, 0), (1, 1))]
    if k < 2:
        cm = [f"v_mfma_f32_16x16x32_bf16 {csa[a]}, {fw_[s][a]}, {ONES}, {'0' if step == 0 else csa[a]}" for a in range(2)]
        mf = [mf[0], mf[1], cm[0], mf[2], mf[3], cm[1]]
    rd = g1_reads(nxt) if nxt < 32 else []
    acts = []
    cn = nxt // 4
    if nxt < 32 and nxt % 4 == 0:
        grp, nmx = (GRP_G, f"G_c{cn}") if cn < 4 else (GRP_H, f"H_c{cn}")
        acts.append(lambda grp=grp, nmx=nmx: aw_check(S, grp, nmx))
        if OPT.get("fine") and cn not in (1, 3): acts.append(lambda: stamp(S))
        if cn == 4 and OPT.get("prioG1"): acts.append(lambda: I("s_setprio %d" % OPT["prioG1"]))
    post_after = []
    if nxt < 32 and nxt % 4 == 3:
        post_after.append(lambda cn=cn: post(S, f"G_rel{cn}"))
        if cn + 1 < 4:
            post_after.append(lambda cn=cn: (S.wait_tag(f"g1c{cn+1}"), post(S, f"G_c{cn+1}")))
        if cn + 1 < 8:
            post_after.append(lambda cn=cn: aw_issue(S, GRP_G if cn + 1 < 4 else GRP_H))

    if step == 30:
        def csw():
            S.atomic += 1
            I("s_mov_b32 exec_lo, 0x00030003"); I("s_mov_b32 exec_hi, 0x00030003")
            for a in range(2): I(f"ds_write_b128 {vCSW}, {csa[a]} offset:{a*128}")
            I("s_mov_b64 exec, -1")
            S.atomic -= 1
            post(S, "G_cs")
            for b in range(2): I(f"ds_read_b32 {mm[2*b]}, {vMR} offset:{b*128}")
        post_after.append(csw)
        post_after.append(lambda: aw_issue(S, GRP_G))
    if step == 31:
        def csr():
            aw_check(S, GRP_G, "G_cs")
            for i in range(8):
                I(f"ds_read_b128 {csv[i]}, {vCSR} offset:{(i>>2)*128 + (i&3)*32}")
                I(f"ds_read_b128 {cst[i]}, {vCSR} offset:{256 + (i>>2)*128 + (i&3)*32}")
        post_after.append(csr)
    for i, m in enumerate(mf):
        I(m)
        if i == 0:
            for a in acts: a()
        for _ in range(2):
            if rd: I(rd.pop(0))
        if not rd and post_after and i >= 2:
            for a in post_after: a()
            post_after = []
        if i < 4 and step < 4: S.bg_pop(1)
        S.fill(2)
stamp(S)
S.fill_flush()
I(f"s_add_u32 {sT[1]}, {sH0}, 4096")
ob = [t[0:4], t[4:8]]
n = 0
for a in range(2):
    for kp in range(2):
        for gg in range(2):
            i = a * 4 + kp * 2 + gg
            for e in range(2): I(f"v_pk_add_f32 {csv[i][2*e:2*e+2]}, {csv[i][2*e:2*e+2]}, {cst[i][2*e:2*e+2]}")
        for b in range(2):
            for e in range(4):
                rr = 8 * kp + 2 * e; cv = csv[a * 4 + kp * 2 + (e >> 1)][2*(e&1):2*(e&1)+2]
                I(f"v_pk_fma_f32 {acc[a][b][rr:rr+2]}, {cv}, {mm[2*b:2*b+2]}, {acc[a][b][rr:rr+2]} op_sel_hi:[1,0,1] neg_lo:[1,0,0] neg_hi:[1,0,0]")
        for b in range(2):
            o = ob[n & 1]; n += 1
            for e in range(4):
                rr = 8 * kp + 2 * e
                I(f"v_cvt_pk_bf16_f32 {o[e]}, {acc[a][b][rr]}, {acc[a][b][rr+1]}")
            for e in range(4): I(f"v_pk_max_i16 {o[e]}, {o[e]}, 0")
            I(f"buffer_store_dwordx4 {o}, {vL16}, {SWS}, {sH0 if a == 0 else sT[1]} offen offset:{kp*2048 + b*1024} sc1", tag="hst")
V.release(vXR, vWR, vXR2, vWR2, ONES, csa[0], csa[1], vCSW, vCSR, vMR, mm, *cst, *csv)
for s in range(NS): V.release(fx[s][0], fx[s][1], fw_[s][0], fw_[s][1])
S.nop(2)
S.label("L_join")
stamp(S)
F = Ffree; tail.append(F)
F.label("L_free_wprep")
wl = acc[1][0]; wo = acc[1][1][0:8]; wa = acc[1][1][8:12]
F.I(f"v_mul_u32_u24 {wa[0]}, 2056, {vL15}"); F.I(f"v_lshl_add_u32 {wa[0]}, {vH}, 1, {wa[0]}")
F.I(f"s_lshl_b32 {sT[0]}, {sW}, 3"); F.I(f"v_add_u32 {wa[0]}, {sT[0]}, {wa[0]}"); F.I(f"v_add_u32 {wa[2]}, {WI_OFF}, {wa[0]}")
F.I(f"v_lshlrev_b32 {wa[1]}, 13, {vH}"); F.I(f"v_lshl_add_u32 {wa[1]}, {vL15}, 4, {wa[1]}")
F.I(f"s_lshl_b32 {sT[1]}, {sWI}, 8"); F.I(f"s_lshl_b32 {sT[2]}, {sW}, 15"); F.I(f"s_add_u32 {sT[1]}, {sT[1]}, {sT[2]}"); F.I(f"s_add_u32 {sT[1]}, {sT[1]}, {WS_WT}")
F.I(f"s_lshl_b32 {sT[6]}, {sWI}, 6"); F.I(f"s_add_u32 {sT[6]}, {sT[6]}, {WS_FW}")
F.I(f"s_lshl_b32 {sF2}, s2, 6"); F.I(f"s_add_u32 {sF2}, {sF2}, 0x40000")
g1_dma(F, 2, True)
F.wait_tag("g1c2")
post(F, "G_c0", alias=True)
await_(F, GRP_G, "G_c0")
F.nstamp = 3; stamp(F)
def wprep_group(i):
    b = (i & 1) * 8
    for r in range(4):
        F.I(f"ds_read_u16 {wl[b+r]}, {wa[0]} offset:{r*514 + i*32}")
        F.I(f"ds_read_u16 {wl[b+4+r]}, {wa[2]} offset:{r*514 + i*32}")
def wprep_store(i):
    b = (i & 1) * 8; o = wo[(i & 1) * 4:(i & 1) * 4 + 4]
    for r in range(4): F.I(f"v_lshl_or_b32 {o[r]}, {wl[b+4+r]}, 16, {wl[b+r]}")
    F.I(f"s_add_u32 {sT[2]}, {sT[1]}, {i*16*8192}")
    F.I(f"buffer_store_dwordx4 {o}, {wa[1]}, {SWS}, {sT[2]} offen sc1", counted=(i < 16))
wprep_group(0)
for i in range(16):
    wprep_group(i + 1)
    wprep_store(i)
F.wait_all(vm=False)
F.I(f"s_cmp_lg_u32 {sW}, 0")
F.I("s_cbranch_scc1 L_wprep_done")
F.I("s_mov_b64 exec, 0xffff")
wprep_store(16)
F.I("s_mov_b64 exec, -1")
F.label("L_wprep_done")
F.wait_all(force=True)
F.nstamp = 4; stamp(F)
post(F, "G_cs", alias=True)
F.I(f"s_cmp_lg_u32 {sW}, 0")
F.I("s_cbranch_scc1 L_wprep_nf")
await_(F, GRP_G, "G_cs")
flag(F, sT[6])
F.label("L_wprep_nf")
await_(F, GRP_G, "G_cs")
F.wait_all(force=True)
F.nop(2)
F.I("s_branch L_join")
NREG = 3
W2F = [[V.alloc(4) for a in range(2)] for k in range(4 * NREG)]
def w2_reads(p, kl, dst):
    sl = W2SLOT[p]
    return [f"ds_read_b64_tr_b16 {dst[a][2*j:2*j+2]}, {vW2R[2*(sl>>1)+a]} offset:{(sl&1)*32768 + kl*2048 + j*1024}" for a in range(2) for j in range(2)]
w2_dma(S, NWH)
S.wait_tag("hst")
flag(S, sF2)
if OPT.get("prioG1"): I("s_setprio 0")
stamp(S)
for p in range(NWH + 1, 4): w2_dma(S, p)
sT2 = sTT; sH = sStep
vPF2 = V.alloc(); pf2 = V.alloc()
I(f"s_lshl_b32 {sT2}, {sXCD}, 2"); I(f"s_add_u32 {sT2}, {sT2}, {sHQ}")
I(f"s_lshl_b32 {sT[0]}, {sT2}, 9"); I(f"s_mul_i32 {sT[1]}, {sW}, 112"); I(f"s_add_u32 {sT[0]}, {sT[0]}, {sT[1]}"); I(f"s_add_u32 {sT[0]}, {sT[0]}, {WS_F2}")
I(f"v_min_u32 {vPF2}, 6, {vL}"); I(f"v_lshlrev_b32 {vPF2}, 4, {vPF2}"); I(f"v_add_u32 {vPF2}, {sT[0]}, {vPF2}")
LD_F2 = f"buffer_load_dword {pf2}, {vPF2}, {SWS}, 0 offen sc1"
for p in range(NREG):
    if p < NWH: await_(S, GRP_H, f"H_w{p}")
    else: S.wait_tag(f"w2p{p}")
    for kl in range(4):
        for l in w2_reads(p, kl, W2F[4*p+kl]): I(l, tag=f"w2d{p}")
    if p == 1: post(S, "G_s01")
S.wait_tag("w2d2")
w2_dma(S, 4)
I(LD_F2)
vOA = V.alloc(2)
out_addr(S, vOA, t)
vHb = V.alloc(2)
I(f"s_lshl_b32 {sT[0]}, {sKH}, 10"); I(f"v_add_u32 {vHb[0]}, {sT[0]}, {vL16}"); I(f"v_xor_b32 {vHb[1]}, 0x400, {vHb[0]}")
I(f"s_mul_i32 {sH}, {sT2}, 229376"); I(f"s_mul_i32 {sT[0]}, {sW}, 57344"); I(f"s_add_u32 {sH}, {sH}, {sT[0]}"); I(f"s_add_u32 {sH}, {sH}, {WS_H}")
V.release(vW2D)
yac = acc
NB = OPT["nb"]
order = [0, 1, 2, 3, 4, 5, 6]
WB = 2
wb = [[V.alloc(4) for a in range(2)] for s in range(WB)]
vYW = V.alloc()
V.release(vTRL, vD8, vTRa)
vRS = vE
I(f"v_lshlrev_b32 {vRowOff}, 3, {vRowOff}")
hfree = []
while True:
    try: hfree.append([V.alloc(4), V.alloc(4)])
    except RuntimeError: break
sys.stderr.write("initial h buffers %d\n" % len(hfree))
hown = list(hfree)
hb = {}
nissued = [0]
def h_load():
    i = nissued[0]; nissued[0] += 1
    hb[i] = hfree.pop(0)
    p, kl = order[i // 4], i % 4
    if kl == 0:
        p2_set(S, p)
        I(f"s_lshl_b32 {sS0}, {sP2}, 13"); I(f"s_add_u32 {sS0}, {sS0}, {sH}")
    if kl == 2: I(f"s_add_u32 {sS0}, {sS0}, 4096")
    for b in range(2):
        I(f"buffer_load_dwordx4 {hb[i][b]}, {vHb[b]}, {SWS}, {sS0} offen offset:{(kl%2)*2048} sc1")
def h_top(done):
    while hfree and nissued[0] < 28 and nissued[0] - done < NB: h_load()
def wsrc(i):
    p, kl = order[i // 4], i % 4
    return W2F[4*p+kl] if p < NREG else wb[i % WB]
def wrd(i):
    p, kl = order[i // 4], i % 4
    return w2_reads(p, kl, wb[i % WB]) if p >= NREG else []
poll_check(S, [LD_F2], [pf2], t[7])
stamp(S)
h_top(0)
I(f"buffer_load_dword {vRS}, {vRowOff}, {SWS}, {sT[3]} offen sc1")
vRd = [None] + [t[k] for k in (1, 2, 3)]
for i in range(28):
    rd = wrd(i + 1) if i + 1 < 28 else []
    if i + 1 in (20, 24): aw_check(S, GRP_H, "H_w5" if i + 1 == 20 else "H_done")
    for a, b in ((0, 0), (1, 0), (0, 1), (1, 1)):
        I(f"v_mfma_f32_32x32x16_bf16 {yac[a][b]}, {wsrc(i)[a]}, {hb[i][b]}, {'0' if i == 0 else yac[a][b]}")
        for _ in range(2):
            if rd: I(rd.pop(0))
    if i + 2 in (20, 24): aw_issue(S, GRP_H)
    hfree.append(hb[i])
    if order[i // 4] < NREG: hfree.append(wsrc(i))
    h_top(i + 1)
    if i == 22:
        I(f"s_add_u32 {sT[0]}, {sW13}, 65536"); I(f"v_add_u32 {vYW}, {sT[0]}, {vL16}")
        for k in (1, 2, 3): I(f"v_xor_b32 {vRd[k]}, {k*8192}, {vYW}")
stamp(S)
slots = {1: yac[1][0], 2: yac[0][1], 3: yac[1][1]}
soff = {1: 0, 2: 4096, 3: 32768}
for k in (1, 2, 3):
    for g in range(4): I(f"ds_write_b128 {vYW}, {slots[k][4*g:4*g+4]} offset:{soff[k] + g*1024}")
post(S, "G_y")
for pr in hown + W2F + wb: V.release(pr[0], pr[1])
sv = V.alloc(16); xv = V.alloc(8); xe = V.alloc(16); vXT = V.alloc(); vXL = V.alloc(); ft = V.alloc(8)
I(f"s_lshr_b32 {sT[0]}, {sW12}, 1"); I(f"s_add_u32 {sT[0]}, {sT[0]}, {L_XT}")
I(f"v_lshlrev_b32 {vXT}, 6, {vL31}"); I(f"v_lshl_add_u32 {vXT}, {vHH}, 3, {vXT}"); I(f"v_add_u32 {vXT}, {sT[0]}, {vXT}")
I(f"v_add_u32 {vXL}, {sT[0]}, {vL16}")
for g in range(4): I(f"ds_read_b64 {xv[2*g:2*g+2]}, {vXT} offset:{16*g}")
I(f"s_add_u32 {sT[0]}, {sW12}, {L_SX}"); I(f"v_add_u32 {t[0]}, {sT[0]}, {vL16}")
for g in range(4): I(f"ds_read_b128 {sv[4*g:4*g+4]}, {t[0]} offset:{g*1024}")
aw_issue(S, GRP_G)
I(f"v_lshlrev_b32 {vRS}, 16, {vRS}"); I(f"v_rcp_f32 {vRS}, {vRS}")
for e in range(8):
    I(f"v_lshlrev_b32 {xe[2*e]}, 16, {xv[e]}"); I(f"v_and_b32 {xe[2*e+1]}, 0xffff0000, {xv[e]}")
I(f"v_mul_f32 {ft[6]}, {fl(-1.4426950408889634)}, {vRS}"); I(f"v_mul_f32 {ft[4]}, {fl(2.0**-19)}, {vRS}")
aw_check(S, GRP_G, "G_y")
stamp(S)
for g in range(4):
    for k in (1, 2, 3): I(f"ds_read_b128 {slots[k][4*g:4*g+4]}, {vRd[k]} offset:{soff[k] + g*1024}")
for k in range(0, 16, 2): I(f"v_pk_mul_f32 {sv[k:k+2]}, {sv[k:k+2]}, {ft[4:6]} op_sel_hi:[1,0]")
gv = yac[0][0]
for g in range(4):
    for e in range(2):
        k = 4 * g + 2 * e
        I(f"v_pk_add_f32 {gv[k:k+2]}, {gv[k:k+2]}, {slots[1][k:k+2]}"); I(f"v_pk_add_f32 {slots[2][k:k+2]}, {slots[2][k:k+2]}, {slots[3][k:k+2]}")
    for e in range(2):
        k = 4 * g + 2 * e
        I(f"v_pk_add_f32 {gv[k:k+2]}, {gv[k:k+2]}, {slots[2][k:k+2]}")
    for e in range(2):
        k = 4 * g + 2 * e
        I(f"v_pk_mul_f32 {ft[2*e:2*e+2]}, {gv[k:k+2]}, {ft[6:8]} op_sel_hi:[1,0]")
    for e in range(4): I(f"v_exp_f32 {ft[e]}, {ft[e]}")
    for e in range(2):
        k = 4 * g + 2 * e
        I(f"v_pk_mul_f32 {gv[k:k+2]}, {gv[k:k+2]}, {sv[k:k+2]}")
    for e in range(4): I(f"v_add_f32 {ft[e]}, 1.0, {ft[e]}")
    for e in range(4): I(f"v_rcp_f32 {ft[e]}, {ft[e]}")
    for e in range(4): I(f"v_fmac_f32 {xe[4*g+e]}, {gv[4*g+e]}, {ft[e]}")
    for e in range(2): I(f"v_cvt_pk_bf16_f32 {xv[2*g+e]}, {xe[4*g+2*e]}, {xe[4*g+2*e+1]}")
    I(f"ds_write_b64 {vXT}, {xv[2*g:2*g+2]} offset:{16*g}")
for m in range(2): I(f"ds_read_b128 {sv[4*m:4*m+4]}, {vXL} offset:{m*1024}")
for m in range(2): I(f"buffer_store_dwordx4 {sv[4*m:4*m+4]}, {vOA[m]}, {SOUT}, {sOB} offen offset:{m*1024}")
diag_out(S)
S.label("L_end")
I("s_endpgm")

hdr = open("cdna_kernels/%s.s.ref" % NAME).read().split("; Override launch")[0]
out = [hdr.rstrip(), f"; @launch grid=(256,1,1) block=(512,1,1) lds={LDS_TOTAL}",
       '.amdgcn_target "amdgcn-amd-amdhsa--gfx950"']
out += [f".set EP_{k}, {v}" for k, v in EP.items()]
out += [".text", f".globl {NAME}_kernel", ".p2align 8", f".type {NAME}_kernel,@function", f"{NAME}_kernel:"]
out += C.lines + G.lines + H.lines
for f in tail: out += f.lines
out.append("L_code_end:")
out += ['.section .rodata,"a"', ".p2align 6", f".amdhsa_kernel {NAME}_kernel",
        "  .amdhsa_next_free_vgpr 256", "  .amdhsa_next_free_sgpr 102", "  .amdhsa_accum_offset 256",
        "  .amdhsa_group_segment_fixed_size 0", "  .amdhsa_kernarg_size 72", "  .amdhsa_user_sgpr_count 2",
        "  .amdhsa_user_sgpr_kernarg_segment_ptr 1", "  .amdhsa_system_sgpr_workgroup_id_x 1",
        "  .amdhsa_float_denorm_mode_32 3", ".end_amdhsa_kernel"]
print("\n".join(out))
sys.stderr.write("instrs G %d H %d, vgpr hw G %d H %d, stamps G %d H %d\nEP %s\n" % (G.ninstr, H.ninstr, VG.hw, VH.hw, G.nstamp, H.nstamp, EP))
```

```python
import sys, struct
sys.path.insert(0, "dev")
from fw import *

NAME = "recurrent_scan__spectral_gfnet__dense_activation_relu__prompt"
DIAG = "--diag" in sys.argv
OPT = {"rot1": 2, "rot2": 2, "pretouch": 0, "l2pf": 0, "nb": 8, "prioG": 0, "prioH": 3, "asleep": 1, "prioG1": 2, "psleep": 8, "gpre": 60}
for a in sys.argv[1:]:
    if "=" in a:
        k, v = a.split("="); OPT[k] = int(v)

def f2u(x): return struct.unpack("<I", struct.pack("<f", x))[0]
def fl(x): return "0x%08x" % f2u(x)

WS_F1 = 0x4000; WS_FW = 0x8000; WS_F2 = 0x9000; WS_F3 = 0x10000; WS_ST = 0x18000; WS_DIAG = 0x20000; WS_XCC = 0x1c000
WS_X1 = 0x100000; WS_WN = 0x50000; WS_Y1 = 0x600000; WS_H = 0x800000; WS_SIZE = 0x1000000
S4 = 131072
L_XN = S4; L_GA = S4 + 8192
L_XC = S4; L_EX = S4 + 16384; L_SP = S4
GP = 272
L_PROG = S4 + 25600; L_CS = S4 + 25856; L_MEAN = S4 + 26880; L_XT = S4 + 16384; L_WN = S4 + 25600 + 64
L_SX = S4
LDS_TOTAL = 163840

SX, SA, SB, SW2, SOUT, SWS = ("s[%d:%d]" % (b, b + 3) for b in (8, 12, 16, 24, 28, 32))
sXCD, sJ, sW, sTAG, sQ, sCB, sHQ, sSPIN = ("s%d" % i for i in range(36, 44))
sT = ["s%d" % i for i in range(44, 52)]
sB0, sIdx, sBaseA, sBaseB, sMulA, sMulB, sM0A, sM0B, sStep = ("s%d" % i for i in range(52, 61))
sW12, sW13, sS0 = "s61", "s62", "s63"
sO, sAa, sFB, sTT = "s20", "s21", "s22", "s23"
sWI = sO
sF1, sF2 = "s4", "s5"
sP2, sW2b = "s6", "s7"
sW8 = "s3"

tail = []
EP = {}
class Q:
    def __init__(self): self.l = []
    def I(self, text, **kw): self.l.append((text, kw))

def stamp(st):
    if DIAG:
        k = st.nstamp; st.nstamp += 1
        assert k < 15
        st.I("%s s[%d:%d]" % ("s_memtime" if OPT.get("cyc") else "s_memrealtime", 100 - 2 * k, 101 - 2 * k), counted=False)

def srd(st, name, lo, hi, nbytes):
    b = int(name[2:name.index(":")])
    st.I(f"s_mov_b32 s{b}, s{lo}"); st.I(f"s_and_b32 s{b+1}, s{hi}, 0xffff")
    st.I(f"s_mov_b32 s{b+2}, {nbytes}"); st.I(f"s_mov_b32 s{b+3}, 0x20000")

nlab = [0]
def poll_check(st, loads, tagregs, tmp):
    k = nlab[0]; nlab[0] += 1
    def test(s):
        if len(tagregs) == 1:
            s.I(f"v_cmp_ne_u32 vcc, {sTAG}, {tagregs[0]}")
        else:
            s.I(f"v_xor_b32 {tmp}, {sTAG}, {tagregs[0]}")
            for r in tagregs[1:]:
                s.I(f"v_xor_b32 {r}, {sTAG}, {r}"); s.I(f"v_or_b32 {tmp}, {tmp}, {r}")
            s.I(f"v_cmp_ne_u32 vcc, 0, {tmp}")
    st.atomic += 1
    test(st)
    st.nop(1)
    st.I(f"s_cbranch_vccnz L_slow{k}")
    st.label(f"L_got{k}")
    st.atomic -= 1
    F = Stream(); tail.append(F)
    F.label(f"L_slow{k}")
    F.I(f"s_mov_b32 {sSPIN}, 0")
    F.label(f"L_spin{k}")
    F.I("s_mov_b64 exec, vcc")
    F.I("s_sleep %d" % OPT.get("psleep", 3))
    for l in loads: F.I(l)
    F.wait_all(vm=True, lg=False, force=True)
    test(F)
    F.I("s_mov_b64 exec, -1")
    F.I(f"s_cbranch_vccz L_got{k}")
    F.I(f"s_add_u32 {sSPIN}, {sSPIN}, 1")
    F.I(f"s_cmp_lt_u32 {sSPIN}, 100000")
    F.I(f"s_cbranch_scc1 L_spin{k}")
    F.I(f"s_branch L_got{k}")

def post(st, name, alias=False):
    if not alias:
        st.epoch += 1
        assert name not in EP
        EP[name] = st.epoch
    st.atomic += 1
    st.I(f"v_mov_b32 {vSY[1]}, EP_{name}")
    st.I("s_mov_b64 exec, 1")
    st.I(f"ds_write_b32 {vPME}, {vSY[1]}")
    st.I("s_mov_b64 exec, -1")
    st.atomic -= 1
def aw_issue(st, grp):
    st.I(f"ds_read_b32 {vSY[0]}, {vPG} offset:{16*grp}")
def aw_check(st, grp, name):
    k = nlab[0]; nlab[0] += 1
    st.atomic += 1
    st.I(f"v_cmp_gt_u32 vcc, EP_{name}, {vSY[0]}")
    st.nop(1)
    st.I(f"s_cbranch_vccnz L_aslow{k}")
    st.label(f"L_agot{k}")
    st.atomic -= 1
    F = Stream(); tail.append(F)
    F.label(f"L_aslow{k}")
    F.I(f"s_mov_b32 {sSPIN}, 0")
    F.label(f"L_aspin{k}")
    if OPT.get("asleep"): F.I("s_sleep %d" % OPT["asleep"])
    F.I(f"ds_read_b32 {vSY[0]}, {vPG} offset:{16*grp}")
    F.wait_all(vm=False, lg=True, force=True)
    F.I(f"v_cmp_gt_u32 vcc, EP_{name}, {vSY[0]}")
    F.nop(1)
    F.I(f"s_cbranch_vccz L_agot{k}")
    F.I(f"s_add_u32 {sSPIN}, {sSPIN}, 1")
    F.I(f"s_cmp_lt_u32 {sSPIN}, 0x400000")
    F.I(f"s_cbranch_scc1 L_aspin{k}")
    F.I(f"s_branch L_agot{k}")
def await_(st, grp, name):
    aw_issue(st, grp); aw_check(st, grp, name)
GRP_G, GRP_H = 0, 1

def flag(st, soff, counted=True):
    st.atomic += 1
    st.I("s_mov_b64 exec, 1")
    st.I(f"buffer_store_dword {vTAG}, {vZ}, {SWS}, {soff} offen sc1", counted=counted)
    st.I("s_mov_b64 exec, -1")
    st.atomic -= 1

def cmul_tw(st, re, im, c, s, t0, out):
    st.I(f"v_mul_f32 {t0[0]}, {re}, {c}")
    st.I(f"v_mul_f32 {t0[1]}, {im}, {c}")
    st.I(f"v_fmac_f32 {t0[0]}, {im}, {s}")
    st.I(f"v_fma_f32 {t0[1]}, -{re}, {s}, {t0[1]}")
    st.I(f"v_cvt_pk_bf16_f32 {out}, {t0[0]}, {t0[1]}")

C = Stream(); C.nstamp = 0
V = Pool("v", 1, 254)
I = C.I
I("s_cmp_ge_u32 s2, 256")
I("s_cbranch_scc1 L_end")
stamp(C)
I("s_load_dwordx16 s[64:79], s[0:1], 0")
I("s_load_dwordx2 s[80:81], s[0:1], 64")
vL = V.alloc(); vL15 = V.alloc(); vH = V.alloc(); vL16 = V.alloc(); vZ = V.alloc(); vTAG = V.alloc()
vHH = V.alloc(); vL31 = V.alloc(); vRp = V.alloc(); vTRL = V.alloc(); vRowOff = V.alloc(); vL3 = V.alloc()
vPG = V.alloc(); vPME = V.alloc(); vSY = V.alloc(2); vE = V.alloc()
t = V.alloc(8)
vXD = V.alloc(4); vW1D = V.alloc(4); vW2D = V.alloc(4); vD8 = V.alloc(); vTRa = V.alloc()
I(f"v_lshrrev_b32 {t[0]}, 6, v0"); I(f"v_and_b32 {vL3}, 3, v0")
I(f"v_and_b32 {vL}, 63, v0")
I(f"v_readfirstlane_b32 {sW8}, {t[0]}")
I(f"v_mov_b32 {vZ}, 0")
I(f"v_lshlrev_b32 {vL16}, 4, {vL}")
I(f"v_lshlrev_b32 {vPME}, 2, {t[0]}"); I(f"v_add_u32 {vPME}, {L_PROG}, {vPME}")
I(f"ds_write_b32 {vPME}, {vZ}")
I(f"s_lshr_b32 {sJ}, s2, 3"); I(f"s_and_b32 {sXCD}, s2, 7")
I(f"s_and_b32 {sW}, {sW8}, 3")
I(f"s_lshr_b32 {sCB}, {sJ}, 2"); I(f"s_and_b32 {sHQ}, {sJ}, 3")
I(f"s_lshl_b32 {sW12}, {sW}, 12"); I(f"s_lshl_b32 {sW13}, {sW}, 13")
I(f"v_and_b32 {vL15}, 15, v0")
I(f"v_lshrrev_b32 {vH}, 4, {vL}")
I(f"v_lshrrev_b32 {vHH}, 5, {vL}"); I(f"v_and_b32 {vL31}, 31, {vL}"); I(f"v_bfe_u32 {vRp}, {vL}, 2, 2")
I(f"v_lshlrev_b32 {vPG}, 2, {vL3}"); I(f"v_add_u32 {vPG}, {L_PROG}, {vPG}")
I("s_getpc_b64 s[4:5]")
C.label("L_pc")
I("s_and_b32 s5, s5, 0xffff")
I("s_mov_b32 s6, L_code_end-L_pc"); I("s_mov_b32 s7, 0x20000")
I(f"s_lshl_b32 {sT[0]}, {sJ}, 11"); I(f"s_lshl_b32 {sT[1]}, {sW8}, 8"); I(f"s_add_u32 {sT[0]}, {sT[0]}, {sT[1]}")
I(f"v_lshlrev_b32 {t[1]}, 7, {vL}")
I("s_mov_b64 exec, 3")
I(f"buffer_load_dword v255, {t[1]}, s[4:7], {sT[0]} offen", counted=False)
I("s_mov_b64 exec, -1")

def dma_addr_setup(st, c_first):
    I = st.I
    I(f"v_lshlrev_b32 {t[0]}, 14, {vHH}")
    I(f"v_bfe_u32 {t[1]}, {vL}, 3, 2"); I(f"v_lshl_add_u32 {t[0]}, {t[1]}, 10, {t[0]}")
    I(f"v_and_b32 {t[3]}, 7, {vL}"); I(f"v_xor_b32 {t[1]}, {t[3]}, {vH}")
    I(f"v_lshl_add_u32 {vXD[0]}, {t[1]}, 4, {t[0]}")
    I(f"v_xor_b32 {t[2]}, 64, {vXD[0]}")
    I(f"v_add_u32 {vXD[1]}, {31744}, {t[2]}"); I(f"v_add_u32 {vXD[2]}, {2*31744}, {vXD[0]}"); I(f"v_add_u32 {vXD[3]}, {3*31744}, {t[2]}")
    I(f"v_mul_u32_u24 {t[0]}, 3584, {vH}")
    I(f"v_xor_b32 {t[1]}, {vRp}, {vH}")
    I(f"v_lshl_add_u32 {t[0]}, {t[1]}, 6, {t[0]}")
    I(f"v_lshl_add_u32 {vW1D[0]}, {vL3}, 4, {t[0]}")
    for m in range(1, 4): I(f"v_add_u32 {vW1D[m]}, {m*(4*3584-1024)}, {vW1D[0]}")
    I(f"s_mov_b32 {sO}, {sXCD}")
    I(f"s_and_b32 {sAa}, {sJ}, 1")
    I(f"s_lshr_b32 {sFB}, {sJ}, 1")
    I(f"s_lshl_b32 {sBaseA}, {sO}, 8"); I(f"s_and_b32 {sT[0]}, {sW}, 1"); I(f"s_lshl_b32 {sT[0]}, {sT[0]}, 7"); I(f"s_add_u32 {sBaseA}, {sBaseA}, {sT[0]}")
    I(f"s_lshl_b32 {sT[0]}, {sAa}, 3"); I(f"s_add_u32 {sBaseA}, {sBaseA}, {sT[0]}")
    I(f"s_lshr_b32 {sT[0]}, {sW}, 1"); I(f"s_lshl_b32 {sT[0]}, {sT[0]}, 2"); I(f"s_add_u32 {sBaseA}, {sBaseA}, {sT[0]}")
    I(f"s_lshl_b32 {sBaseA}, {sBaseA}, 10")
    I(f"s_mul_i32 {sBaseB}, {sW}, {16*3584}"); I(f"s_lshl_b32 {sT[0]}, {sFB}, 8"); I(f"s_add_u32 {sBaseB}, {sBaseB}, {sT[0]}")
    if OPT["rot1"] == 2:
        I(f"s_add_u32 {sIdx}, {sXCD}, {c_first}"); I(f"s_and_b32 {sIdx}, {sIdx}, 7")
    elif OPT["rot1"] == 3:
        I(f"s_lshl_b32 {sIdx}, {sJ}, 2"); I(f"s_add_u32 {sIdx}, {sIdx}, {sXCD}"); I(f"s_add_u32 {sIdx}, {sIdx}, {c_first}"); I(f"s_and_b32 {sIdx}, {sIdx}, 7")
    elif OPT["rot1"]:
        I(f"s_lshl_b32 {sIdx}, {sHQ}, 1"); I(f"s_add_u32 {sIdx}, {sIdx}, {sCB}"); I(f"s_bfe_u32 {sT[0]}, {sXCD}, 0x10001"); I(f"s_add_u32 {sIdx}, {sIdx}, {sT[0]}")
        if c_first: I(f"s_add_u32 {sIdx}, {sIdx}, {c_first}")
        I(f"s_and_b32 {sIdx}, {sIdx}, 7")
    else:
        I(f"s_mov_b32 {sIdx}, {c_first}")
def misc_lane(st):
    c = st.I
    c(f"v_and_b32 {t[0]}, 1, {vH}"); c(f"v_lshlrev_b32 {t[1]}, 5, {t[0]}"); c(f"v_lshl_add_u32 {vTRL}, {vL3}, 3, {t[1]}")
    c(f"v_lshrrev_b32 {t[1]}, 3, {vL31}"); c(f"v_lshlrev_b32 {t[1]}, 5, {t[1]}")
    c(f"v_bfe_u32 {t[2]}, {vL}, 2, 1"); c(f"v_lshl_add_u32 {t[1]}, {t[2]}, 4, {t[1]}"); c(f"v_add_u32 {vRowOff}, {t[1]}, {vL3}")
    c(f"v_lshlrev_b32 {t[1]}, 2, {t[0]}"); c(f"v_and_b32 {t[2]}, 7, {vL}"); c(f"v_xor_b32 {t[1]}, {t[1]}, {t[2]}")
    c(f"v_lshlrev_b32 {vD8}, 4, {t[1]}"); c(f"v_lshrrev_b32 {t[2]}, 3, {vL}")
    c(f"v_lshl_add_u32 {vW2D[0]}, {t[2]}, 10, {vD8}")
    for m in range(1, 4): c(f"v_add_u32 {vW2D[m]}, {m*(8192-1024)}, {vW2D[0]}")
    c(f"v_lshl_add_u32 {t[1]}, {vHH}, 2, {vRp}"); c(f"v_lshl_add_u32 {t[1]}, {t[1]}, 7, {vTRL}")
    c(f"v_lshrrev_b32 {t[2]}, 1, {vRp}"); c(f"v_lshl_add_u32 {vTRa}, {t[2]}, 6, {t[1]}")
def w2_setup(st, first):
    c = st.I
    c(f"s_mul_i32 {sW2b}, {sW}, {448*1024}"); c(f"s_lshl_b32 {sP2}, {sCB}, 7"); c(f"s_add_u32 {sW2b}, {sW2b}, {sP2}")
    p2_set(st, first)
def p2_set(st, first):
    c = st.I
    if OPT["rot2"]:
        if OPT["rot2"] == 2: c(f"s_mov_b32 {sP2}, {sXCD}")
        else: c(f"s_lshl_b32 {sP2}, {sHQ}, 1"); c(f"s_add_u32 {sP2}, {sP2}, {sCB}")
        if first: c(f"s_add_u32 {sP2}, {sP2}, {first}")
        c(f"s_mul_i32 {sB0}, {sP2}, 37"); c(f"s_lshr_b32 {sB0}, {sB0}, 8"); c(f"s_mul_i32 {sB0}, {sB0}, 7"); c(f"s_sub_u32 {sP2}, {sP2}, {sB0}")
    else:
        c(f"s_mov_b32 {sP2}, {first}")
def g1_dma(st, c, generic, between=None):
    for which, (vD, sr, mul, base, m0r, cm) in enumerate(((vXD, SA, sMulA, sBaseA, sM0A, 128), (vW1D, SB, sMulB, sBaseB, sM0B, 64 * 3584))):
        st.I(f"s_mul_i32 {sB0}, {sIdx}, {mul if generic else cm}"); st.I(f"s_add_u32 {sB0}, {sB0}, {base}")
        if generic:
            st.I(f"s_mov_b32 m0, {m0r}")
            if c < 3: st.I(f"s_add_u32 {m0r}, {m0r}, {sStep}")
        else:
            st.I(f"s_add_u32 m0, {sW12}, {(c & 3) * 32768 + which * 16384}")
        for m in range(4):
            st.I(f"buffer_load_dwordx4 {vD[m]}, {sr}, {sB0} offen offset:{m*1024} lds", tag=f"g1c{c}")
            if between: between()
    st.I(f"s_add_u32 {sIdx}, {sIdx}, 1"); st.I(f"s_and_b32 {sIdx}, {sIdx}, 7")
W2SLOT = [0, 1, 2, 3, 0, 1, 2]
def w2_dma(st, p, between=None):
    for g in range(2):
        if g == 0:
            st.I(f"s_lshl_b32 {sB0}, {sP2}, 16"); st.I(f"s_add_u32 {sB0}, {sB0}, {sW2b}")
        else:
            st.I(f"s_add_u32 {sB0}, {sB0}, 32768")
        st.I(f"s_add_u32 m0, {sW13}, {W2SLOT[p] * 32768 + g * 4096}")
        for m in range(4):
            st.I(f"buffer_load_dwordx4 {vW2D[m]}, {SW2}, {sB0} offen offset:{m*1024} lds", tag=f"w2p{p}")
            if between: between()
    st.I(f"s_add_u32 {sP2}, {sP2}, 1"); st.I(f"s_cmp_eq_u32 {sP2}, 7"); st.I(f"s_cselect_b32 {sP2}, 0, {sP2}")
def make_tag(st):
    st.I(f"v_readfirstlane_b32 {sT[4]}, {vE}")
    st.I(f"s_mul_i32 {sTAG}, {sT[4]}, 0x9E3779B1"); st.I(f"s_add_u32 {sTAG}, {sTAG}, 0x7F4A7C15")
    st.I(f"v_mov_b32 {vTAG}, {sTAG}")
def hcut(st, n):
    if OPT.get("hcut") == n:
        post(st, "H_done", alias=True)
        st.I("s_endpgm")
def diag_out(st):
    if not DIAG: return
    st.wait_all(force=True)
    stamp(st)
    st.wait_all(force=True)
    st.I(f"s_lshl_b32 {sT[0]}, s2, 3"); st.I(f"s_add_u32 {sT[0]}, {sT[0]}, {sW8}"); st.I(f"s_lshl_b32 {sT[0]}, {sT[0]}, 6"); st.I(f"s_add_u32 {sT[0]}, {sT[0]}, {WS_DIAG}")
    st.I("s_mov_b64 exec, 1")
    for k in range(st.nstamp):
        st.I(f"v_mov_b32 {t[0]}, s{100-2*k}")
        st.I(f"buffer_store_dword {t[0]}, {vZ}, {SWS}, {sT[0]} offen offset:{4*k}")

I(f"s_cmp_ge_u32 {sW8}, 4")
I("s_cbranch_scc1 L_H")
import copy
VG = copy.deepcopy(V); VH = copy.deepcopy(V)
G = C.fork(); G.nstamp = C.nstamp; G.epoch = 0
H = C.fork(); H.nstamp = C.nstamp; H.epoch = 0

S = H; V = VH; I = H.I
H.label("L_H")
if OPT.get("hcut") == 0:
    S.wait_all(force=True); I("s_barrier"); hcut(S, 0)
if OPT["prioH"]: I(f"s_setprio {OPT['prioH']}")
I(f"s_lshl_b32 {sT[0]}, {sXCD}, 8"); I(f"s_lshl_b32 {sT[1]}, {sW}, 6"); I(f"s_add_u32 {sT[0]}, {sT[0]}, {sT[1]}"); I(f"s_add_u32 {sS0}, {sT[0]}, {sJ}")
I(f"s_lshl_b32 {sT[6]}, {sS0}, 10"); I(f"s_add_u32 {sT[7]}, {sT[6]}, 32768")
CQ = Q()
fq = V.alloc(); fh4 = V.alloc(); ang = V.alloc(4)
C1 = V.alloc(4); TWc = V.alloc(8); TWs = V.alloc(8)
F32 = [[[V.alloc(4) for p in range(2)] for tt in range(2)] for tau in range(2)]
CN = V.alloc(4); cs = V.alloc(8); kN = V.alloc()
c = CQ.I
c(f"v_cvt_f32_u32 {fq}, {vL15}")
c(f"v_lshlrev_b32 {t[0]}, 2, {vH}"); c(f"v_cvt_f32_u32 {fh4}, {t[0]}")
c(f"v_mul_f32 {t[1]}, {fl(1/16)}, {fq}")
c(f"v_mul_f32 {ang[0]}, {t[1]}, {fh4}")
for e in range(1, 4): c(f"v_add_f32 {ang[e]}, {ang[e-1]}, {t[1]}")
for e in range(4):
    c(f"v_cos_f32 {cs[e]}, {ang[e]}"); c(f"v_sin_f32 {cs[4+e]}, {ang[e]}")
c(f"v_mul_f32 {t[2]}, {fl(1/32)}, {fq}")
c(f"v_cvt_pk_bf16_f32 {C1[0]}, {cs[0]}, {cs[1]}"); c(f"v_cvt_pk_bf16_f32 {C1[1]}, {cs[2]}, {cs[3]}")
c(f"v_cvt_pk_bf16_f32 {C1[2]}, -{cs[4]}, -{cs[5]}"); c(f"v_cvt_pk_bf16_f32 {C1[3]}, -{cs[6]}, -{cs[7]}")
for r in range(4):
    c(f"v_mul_f32 {t[3]}, {fl(1/32)}, {ang[r]}")
    c(f"v_add_f32 {t[4]}, {t[3]}, {t[2]}")
    c(f"v_cos_f32 {TWc[r]}, {t[3]}"); c(f"v_sin_f32 {TWs[r]}, {t[3]}")
    c(f"v_cos_f32 {TWc[4+r]}, {t[4]}"); c(f"v_sin_f32 {TWs[4+r]}, {t[4]}")
c(f"v_and_b32 {t[5]}, 1, {vL}"); c(f"v_mul_u32_u24 {t[5]}, 0x8000, {t[5]}"); c(f"v_lshl_or_b32 {t[5]}, {t[5]}, 16, {t[5]}")
for r in range(4): c(f"v_mul_f32 {ang[r]}, 0.5, {ang[r]}")
for r in range(4):
    c(f"v_cos_f32 {cs[r]}, {ang[r]}"); c(f"v_sin_f32 {cs[4+r]}, {ang[r]}")
for r in range(4): c(f"v_mov_b32 {CN[r]}, {'0x3f80' if r % 2 == 0 else '0xbf80'}")
for r in range(4):
    c(f"v_cvt_pk_bf16_f32 {F32[0][0][0][r]}, {cs[r]}, {cs[4+r]}")
    c(f"v_cvt_pk_bf16_f32 {F32[0][0][1][r]}, -{cs[4+r]}, {cs[r]}")
    for p in range(2): c(f"v_xor_b32 {F32[0][1][p][r]}, {t[5]}, {F32[0][0][p][r]}")
c(f"v_mov_b32 {kN}, {fl(-1/512)}")
S.fq = CQ.l
S.fill(OPT.get("pre", 16))
S.wait_all(vm=False, force=True)
stamp(S)
srd(S, SX, 64, 65, 2048 * 1024)
xa = [V.alloc(4), V.alloc(4)]
I(f"buffer_load_dwordx4 {xa[0]}, {vL16}, {SX}, {sT[6]} offen")
I(f"buffer_load_dwordx4 {xa[1]}, {vL16}, {SX}, {sT[7]} offen")
srd(S, SWS, 80, 81, WS_SIZE)
I(f"buffer_load_dword {vE}, {vZ}, {SWS}, 0 offen sc1")
I("s_barrier")
S.fill_flush()
I(f"s_add_u32 {sQ}, {sJ}, 4"); I(f"s_and_b32 {sQ}, {sQ}, 31")
I(f"s_lshl_b32 {sT[0]}, {sXCD}, 5"); I(f"s_add_u32 {sQ}, {sQ}, {sT[0]}")
I(f"s_lshl_b32 {sF1}, {sW}, 8"); I(f"s_add_u32 {sF1}, {sF1}, {sT[0]}"); I(f"s_add_u32 {sF1}, {sF1}, {sJ}")
I(f"s_lshl_b32 {sF1}, {sF1}, 4"); I(f"s_add_u32 {sF1}, {sF1}, {WS_F1}")
vXNW = V.alloc(); vTR = V.alloc(); vGW = V.alloc(); vGR = V.alloc(); vGS = V.alloc()
I(f"s_lshl_b32 {sT[5]}, {sW}, 11"); I(f"s_add_u32 {sT[5]}, {sT[5]}, {L_XN}")
I(f"v_add_u32 {vXNW}, {sT[5]}, {vL16}")
I(f"v_lshrrev_b32 {t[1]}, 2, {vL}"); I(f"v_lshlrev_b32 {t[2]}, 3, {vL3}")
I(f"v_lshl_add_u32 {t[1]}, {t[1]}, 6, {t[2]}"); I(f"v_add_u32 {vTR}, {sT[5]}, {t[1]}")
I(f"v_mul_u32_u24 {t[0]}, {GP}, {vL}")
I(f"s_lshl_b32 {sT[5]}, {sW}, 3"); I(f"s_add_u32 {sT[6]}, {sT[5]}, {L_GA}")
I(f"v_add_u32 {vGW}, {sT[6]}, {t[0]}")
I(f"s_lshl_b32 {sT[5]}, {sW}, 2"); I(f"v_add_u32 {t[1]}, {sT[5]}, {vH}")
I(f"v_mul_u32_u24 {t[3]}, {GP}, {t[1]}"); I(f"v_lshl_add_u32 {t[3]}, {vL15}, 4, {t[3]}"); I(f"v_add_u32 {vGR}, {L_GA}, {t[3]}")
I(f"v_lshlrev_b32 {t[4]}, 18, {t[1]}"); I(f"v_lshrrev_b32 {t[5]}, 3, {vL15}"); I(f"v_lshl_add_u32 {t[4]}, {t[5]}, 15, {t[4]}")
I(f"v_and_b32 {t[2]}, 7, {vL}"); I(f"v_lshl_add_u32 {vGS}, {t[2]}, 4, {t[4]}")
xf = [V.alloc(8), V.alloc(8)]
red = V.alloc(2)
for p in range(2):
    for e in range(4):
        I(f"v_lshlrev_b32 {xf[p][2*e]}, 16, {xa[p][e]}")
        I(f"v_and_b32 {xf[p][2*e+1]}, 0xffff0000, {xa[p][e]}")
stamp(S)
def tree(dst, src, tmp):
    I(f"v_pk_add_f32 {tmp[0:2]}, {src[0:2]}, {src[2:4]}"); I(f"v_pk_add_f32 {tmp[2:4]}, {src[4:6]}, {src[6:8]}")
    I(f"v_pk_add_f32 {tmp[0:2]}, {tmp[0:2]}, {tmp[2:4]}")
    I(f"v_add_f32 {dst}, {tmp[0]}, {tmp[1]}")
def wave_reduce(regs, sdst):
    for mod in ("row_shr:1 row_mask:0xf bank_mask:0xf bound_ctrl:0", "row_shr:2 row_mask:0xf bank_mask:0xf bound_ctrl:0",
                "row_shr:4 row_mask:0xf bank_mask:0xf bound_ctrl:0", "row_shr:8 row_mask:0xf bank_mask:0xf bound_ctrl:0",
                "row_bcast:15 row_mask:0xa bank_mask:0xf", "row_bcast:31 row_mask:0xc bank_mask:0xf"):
        for r in regs: I(f"v_add_f32_dpp {r}, {r}, {r} {mod}")
    for r, s in zip(regs, sdst): I(f"v_readlane_b32 {s}, {r}, 63")
tree(red[0], xf[0], t[0:4]); tree(red[1], xf[1], t[4:8])
wave_reduce([red[0], red[1]], [sT[0], sT[1]])
dv = V.alloc(8); nm = V.alloc(4)
for p in range(2): I(f"v_mul_f32 {nm[2*p]}, {sT[p]}, {kN}")
for p in range(2):
    for e in range(0, 8, 2): I(f"v_pk_add_f32 {dv[e:e+2]}, {xf[p][e:e+2]}, {nm[2*p:2*p+2]} op_sel_hi:[1,0]")
    I(f"v_pk_mul_f32 {t[2*p:2*p+2]}, {dv[0:2]}, {dv[0:2]}")
    for e in range(2, 8, 2): I(f"v_pk_fma_f32 {t[2*p:2*p+2]}, {dv[e:e+2]}, {dv[e:e+2]}, {t[2*p:2*p+2]}")
    I(f"v_add_f32 {red[p]}, {t[2*p]}, {t[2*p+1]}")
wave_reduce([red[0], red[1]], [sT[2], sT[3]])
stt = V.alloc(2); rs = V.alloc(4); mo = V.alloc(4)
seqs = []
for p in range(2):
    q = Q(); a, b = t[4*p], t[4*p+1]
    q.I(f"v_mul_f32 {a}, {sT[2+p]}, {kN}")
    q.I(f"v_cvt_pk_bf16_f32 {a}, -{a}, -{a}")
    q.I(f"v_lshlrev_b32 {a}, 16, {a}")
    q.I(f"v_add_f32 {a}, {fl(1e-5)}, {a}")
    q.I(f"v_cvt_pk_bf16_f32 {a}, {a}, {a}")
    q.I(f"v_lshlrev_b32 {a}, 16, {a}")
    q.I(f"v_sqrt_f32 {a}, {a}")
    q.I(f"v_cvt_pk_bf16_f32 {stt[p]}, {a}, -{nm[2*p]}")
    q.I(f"v_lshlrev_b32 {a}, 16, {stt[p]}")
    q.I(f"v_rcp_f32 {rs[2*p]}, {a}")
    q.I(f"v_and_b32 {b}, 0xffff0000, {stt[p]}")
    q.I(f"v_mul_f32 {mo[2*p]}, {b}, {rs[2*p]}")
    seqs.append(q.l)
for x, y in zip(*seqs): I(x[0]); I(y[0])
Aop = [[V.alloc(2) for tt in range(2)] for p in range(2)]
for p in range(2):
    for e in range(0, 8, 2):
        I(f"v_pk_fma_f32 {xf[p][e:e+2]}, {xf[p][e:e+2]}, {rs[2*p:2*p+2]}, {mo[2*p:2*p+2]} op_sel_hi:[1,0,0] neg_lo:[0,0,1] neg_hi:[0,0,1]")
    for e in range(4): I(f"v_cvt_pk_bf16_f32 {xa[p][e]}, {xf[p][2*e]}, {xf[p][2*e+1]}")
    I(f"ds_write_b128 {vXNW}, {xa[p]} offset:{p*1024}")
    for tt in range(2): I(f"ds_read_b64_tr_b16 {Aop[p][tt]}, {vTR} offset:{p*1024 + tt*32}")
V.release(xf[0], xf[1], dv, nm, rs, mo, red, cs, ang, kN)
make_tag(S)
gr = V.alloc(2)
I(f"v_cmp_eq_u32 vcc, 0, {vL}")
I(f"v_mov_b32 {gr[1]}, {sTAG}")
I(f"v_lshlrev_b32 {t[0]}, 8, {vL}")
I(f"v_cndmask_b32 {gr[0]}, {stt[1]}, {stt[0]}, vcc")
I(f"s_lshl_b32 {sT[6]}, {sS0}, 3"); I(f"s_add_u32 {sT[6]}, {sT[6]}, {WS_ST}")
D1 = [[[V.alloc(4) for c in range(2)] for tt in range(2)] for p in range(2)]
for p in range(2):
    for tt in range(2):
        for c in range(2): I(f"v_mfma_f32_16x16x16_bf16 {D1[p][tt][c]}, {Aop[p][tt]}, {C1[2*c:2*c+2]}, 0")
I("s_mov_b64 exec, 3")
I(f"buffer_store_dwordx2 {gr}, {t[0]}, {SWS}, {sT[6]} offen sc1")
I("s_mov_b64 exec, -1")
P = [[V.alloc(4) for tt in range(2)] for p in range(2)]
D2 = [[V.alloc(4) for c in range(3)] for p in range(2)]
for p in range(2):
    for tt in range(2):
        for r in range(4):
            cmul_tw(S, D1[p][tt][0][r], D1[p][tt][1][r], TWc[4*tt+r], TWs[4*tt+r], t[2+2*(r&1):4+2*(r&1)], P[p][tt][r])
    for c in range(3):
        for tt in range(2):
            B = F32[0][tt][c] if c < 2 else CN
            I(f"v_mfma_f32_16x16x32_bf16 {D2[p][c]}, {P[p][tt]}, {B}, {'0' if tt == 0 else D2[p][c]}")
I(f"s_lshl_b32 {sT[5]}, {sXCD}, 5"); I(f"s_add_u32 {sT[5]}, {sT[5]}, {sJ}"); I(f"s_lshl_b32 {sT[5]}, {sT[5]}, 7")
I(f"s_add_u32 {sT[5]}, {sT[5]}, {WS_X1}")
O = V.alloc(16)
aw_issue(S, GRP_G)
for p in range(2):
    I(f"v_cndmask_b32 {D2[p][1][0]}, {D2[p][1][0]}, {D2[p][2][0]}, vcc")
    for r in range(4): I(f"v_cvt_pk_bf16_f32 {O[2*r+p]}, {D2[p][0][r]}, {D2[p][1][r]}")
for r in range(4): I(f"ds_write_b64 {vGW}, {O[2*r:2*r+2]} offset:{64*r}")
post(S, "H_ga")
aw_check(S, GRP_G, "G_wp0")
aw_issue(S, GRP_H)
aw_check(S, GRP_H, "H_ga")
hcut(S, 1)
for m in range(4): I(f"ds_read_b128 {O[4*m:4*m+4]}, {vGR} offset:{16*GP*m}")
I(f"v_add_u32 {t[0]}, {L_WN}, {vL16}")
I(f"ds_read_b128 {t[4:8]}, {t[0]}")
I(f"s_sub_u32 {sT[6]}, {sT[5]}, {WS_X1}"); I(f"s_lshr_b32 {sT[6]}, {sT[6]}, 2"); I(f"s_add_u32 {sT[6]}, {sT[6]}, {WS_WN}")
S.wait_all(vm=False)
I(f"s_cmp_lg_u32 {sW}, 0"); I("s_cbranch_scc1 L_nown")
I("s_mov_b64 exec, 3")
I(f"buffer_store_dwordx4 {t[4:8]}, {vL16}, {SWS}, {sT[6]} offen sc1", counted=False)
I("s_mov_b64 exec, -1")
S.label("L_nown")
for m in range(4):
    I(f"buffer_store_dwordx4 {O[4*m:4*m+4]}, {vGS}, {SWS}, {sT[5]} offen sc1", tag="x1st")
    if m < 3: I(f"s_add_u32 {sT[5]}, {sT[5]}, 65536")
stamp(S)
V.release(xa[0], xa[1], stt, vXNW, gr, vTR, C1, TWc, TWs, CN, vGW, vGR)
for p in range(2):
    for c in range(3): V.release(D2[p][c])
    for tt in range(2): V.release(Aop[p][tt], P[p][tt], D1[p][tt][0], D1[p][tt][1])
GC = OPT.get("gc", 3)
NWH = OPT.get("nwh", 2)
dma_addr_setup(S, GC)
srd(S, SA, 64, 65, 2048 * 1024); srd(S, SB, 72, 73, 512 * 3584); srd(S, SW2, 74, 75, 1792 * 1024)
I(f"s_cmp_lt_u32 {sJ}, 28"); I("s_cselect_b32 s14, s14, 0"); I("s_cselect_b32 s18, s18, 0")
for cc in range(GC, 4): g1_dma(S, cc, False)
misc_lane(S)
w2_setup(S, 0)
sPFb, sPFp = sMulA, sMulB
vPF = V.alloc()
I(f"s_lshr_b32 {sPFb}, {sJ}, 3"); I(f"s_mul_i32 {sPFb}, {sPFb}, {448*1024}"); I(f"s_and_b32 {sT[0]}, {sJ}, 7"); I(f"s_lshl_b32 {sT[0]}, {sT[0]}, 13")
I(f"s_add_u32 {sPFb}, {sPFb}, {sT[0]}"); I(f"s_lshr_b32 {sT[0]}, {sW12}, 1"); I(f"s_add_u32 {sPFb}, {sPFb}, {sT[0]}")
I(f"s_mov_b32 {sPFp}, {sP2}")
I(f"v_lshlrev_b32 {vPF}, 7, {vL}")
def pf1_(st):
    st.I(f"s_lshl_b32 {sS0}, {sPFp}, 16"); st.I(f"s_add_u32 {sS0}, {sS0}, {sPFb}")
    st.I("s_mov_b64 exec, 0xffff")
    st.I(f"buffer_load_dword v255, {vPF}, {SW2}, {sS0} offen", nodef=True)
    st.I("s_mov_b64 exec, -1")
    st.I(f"s_add_u32 {sPFp}, {sPFp}, 1"); st.I(f"s_cmp_eq_u32 {sPFp}, 7"); st.I(f"s_cselect_b32 {sPFp}, 0, {sPFp}")
S.wait_tag("x1st")
flag(S, sF1)
hcut(S, 2)
V.release(O, vGS)
F64 = [[V.alloc(4) for p in range(2)] for u in range(4)]
TFc = V.alloc(8); TFs = V.alloc(8); TIc = V.alloc(8); TIs = V.alloc(8)
ft = V.alloc(8)
vPF1 = V.alloc(); vXCr = V.alloc(); vXCa = V.alloc(4); vKs = V.alloc(); vWr = V.alloc(); vST = V.alloc(); vMW = V.alloc(); vPXC = V.alloc()
pf1 = V.alloc(); Wv = V.alloc(8); mm = V.alloc(4)
sXC0, sWT0 = sM0A, sM0B
q = Q(); c = q.I
fk, a0, fw16 = ft[5], ft[6], ft[7]
c(f"s_lshr_b32 {sXC0}, {sQ}, 6"); c(f"s_lshl_b32 {sXC0}, {sXC0}, 12"); c(f"s_lshr_b32 {sWT0}, {sW12}, 2"); c(f"s_add_u32 {sXC0}, {sXC0}, {sWT0}"); c(f"s_add_u32 {sXC0}, {sXC0}, {WS_F1}")
c(f"v_add_u32 {vPF1}, {sXC0}, {vL16}")
c(f"v_lshrrev_b32 {ft[0]}, 2, {vL}"); c(f"v_xor_b32 {ft[1]}, {vH}, {vL3}")
c(f"v_lshlrev_b32 {ft[0]}, 7, {ft[0]}"); c(f"v_lshl_add_u32 {vXCa[0]}, {ft[1]}, 4, {ft[0]}")
for m in range(1, 4): c(f"v_add_u32 {vXCa[m]}, {m*1024}, {vXCa[0]}")
c(f"s_lshr_b32 {sXC0}, {sQ}, 1"); c(f"s_lshl_b32 {sXC0}, {sXC0}, 15"); c(f"s_and_b32 {sWT0}, {sQ}, 1"); c(f"s_lshl_b32 {sWT0}, {sWT0}, 6")
c(f"s_add_u32 {sXC0}, {sXC0}, {sWT0}"); c(f"s_add_u32 {sXC0}, {sXC0}, {sW13}"); c(f"s_add_u32 {sXC0}, {sXC0}, {WS_X1}")
c(f"v_and_b32 {ft[1]}, 1, {vH}"); c(f"v_xor_b32 {ft[0]}, {vRp}, {ft[1]}")
c(f"v_lshlrev_b32 {ft[1]}, 6, {vL15}"); c(f"v_lshl_add_u32 {ft[1]}, {ft[0]}, 4, {ft[1]}"); c(f"v_add_u32 {ft[1]}, {L_XC}, {ft[1]}")
c(f"v_lshl_add_u32 {vXCr}, {vHH}, 11, {ft[1]}")
c(f"v_xor_b32 {ft[1]}, 32, {ft[1]}"); c(f"v_lshl_add_u32 {ft[1]}, {vHH}, 10, {ft[1]}"); c(f"v_add_u32 {vWr}, {sW12}, {ft[1]}")
c(f"s_lshl_b32 {sWT0}, {sW}, 4")
c(f"v_lshl_add_u32 {vKs}, {vH}, 8, {vL15}"); c(f"v_add_u32 {vKs}, {sWT0}, {vKs}")
c(f"v_cvt_f32_u32 {fw16}, {sWT0}")
c(f"s_lshl_b32 {sT[0]}, {sAa}, 1"); c(f"s_and_b32 {sT[1]}, {sW}, 1"); c(f"s_add_u32 {sT[0]}, {sT[0]}, {sT[1]}")
c(f"s_lshl_b32 {sT[0]}, {sT[0]}, 2"); c(f"s_lshl_b32 {sT[1]}, {sO}, 8"); c(f"s_add_u32 {sT[0]}, {sT[0]}, {sT[1]}")
c(f"s_lshl_b32 {sT[0]}, {sT[0]}, 3"); c(f"s_add_u32 {sT[0]}, {sT[0]}, {WS_ST}")
c(f"v_lshlrev_b32 {ft[0]}, 3, {vRowOff}"); c(f"v_lshl_add_u32 {ft[0]}, {vHH}, 10, {ft[0]}"); c(f"v_add_u32 {vST}, {sT[0]}, {ft[0]}")
c(f"s_lshl_b32 {sT[0]}, {sW}, 8"); c(f"s_add_u32 {sT[0]}, {sT[0]}, {L_MEAN}"); c(f"v_lshl_add_u32 {vMW}, {vL}, 2, {sT[0]}")
c(f"s_lshl_b32 {sT[0]}, {sXCD}, 9"); c(f"s_add_u32 {sT[0]}, {sT[0]}, {WS_XCC}"); c(f"v_lshl_add_u32 {vPXC}, {vL31}, 4, {sT[0]}")
for tt in range(2):
    for p in range(2):
        for r in range(4):
            if r % 2 == 0: c(f"v_mov_b32 {F32[1][tt][p][r]}, {F32[0][tt][p][r]}")
            else: c(f"v_xor_b32 {F32[1][tt][p][r]}, 0x80008000, {F32[0][tt][p][r]}")
c(f"v_add_f32 {fk}, {fw16}, {fq}"); c(f"v_mul_f32 {fk}, {fl(1/64)}, {fk}")
c(f"v_mul_f32 {a0}, {fk}, {fh4}")
for u in range(4):
    for r in range(4):
        c(f"v_fmamk_f32 {ft[0]}, {fk}, {fl(16*u+r)}, {a0}")
        c(f"v_cos_f32 {ft[1]}, {ft[0]}"); c(f"v_sin_f32 {ft[2]}, {ft[0]}")
        c(f"v_mul_f32 {ft[3]}, {fl(1/32)}, {ft[0]}")
        c(f"v_cvt_pk_bf16_f32 {F64[u][0][r]}, {ft[1]}, {ft[2]}")
        c(f"v_cvt_pk_bf16_f32 {F64[u][1][r]}, -{ft[2]}, {ft[1]}")
        if u < 2:
            c(f"v_cos_f32 {TFc[4*u+r]}, {ft[3]}"); c(f"v_sin_f32 {TFs[4*u+r]}, {ft[3]}")
c(f"v_add_f32 {ft[4]}, {fw16}, {fh4}")
for tt in range(2):
    c(f"v_add_f32 {ft[5]}, {fl(16.0*tt)}, {fq}"); c(f"v_mul_f32 {ft[5]}, {fl(1/2048)}, {ft[5]}")
    c(f"v_mul_f32 {ft[6]}, {ft[5]}, {ft[4]}")
    for r in range(4):
        c(f"v_fmamk_f32 {ft[0]}, {ft[5]}, {fl(r)}, {ft[6]}")
        c(f"v_cos_f32 {TIc[4*tt+r]}, {ft[0]}"); c(f"v_sin_f32 {TIs[4*tt+r]}, {ft[0]}")
S.fq = q.l
S.fill(OPT.get("hpre", 80))
LD_F1 = f"buffer_load_dword {pf1}, {vPF1}, {SWS}, 0 offen sc1"
LD_ST = f"buffer_load_dwordx2 {mm[0:2]}, {vST}, {SWS}, 0 offen sc1"
fb = lambda: S.fill(5)
def w_loads():
    for tau in range(2): I(f"ds_read_b128 {Wv[4*tau:4*tau+4]}, {vWr} offset:{tau*2048}")
LD_XC = f"buffer_load_dword {mm[2]}, {vPXC}, {SWS}, 0 offen sc1"
fb = lambda: S.fill(5)
npf = [0]
def pf(n):
    for _ in range(n):
        if OPT.get("pf", 1) and npf[0] < 7: pf1_(S); npf[0] += 1
def chunk(cc):
    await_(S, GRP_G, f"G_rel{cc-4}")
    g1_dma(S, cc, False, fb)
    pf(2)
    if cc - 1 >= GC:
        S.wait_tag(f"g1c{cc-1}"); post(S, f"H_c{cc-1}")
chunk(4)
chunk(5)
I(LD_ST); I(LD_XC)
chunk(6)
poll_check(S, [LD_ST], [mm[1]], t[7])
I(f"v_and_b32 {mm[0]}, 0xffff0000, {mm[0]}")
I(f"ds_write_b32 {vMW}, {mm[0]}")
k = nlab[0]; nlab[0] += 1
I(f"s_getreg_b32 {sT[0]}, hwreg(HW_REG_XCC_ID, 0, 4)")
I(f"s_mov_b32 {sSPIN}, 0")
I(f"v_mov_b32 {mm[3]}, {mm[2]}")
S.label(f"L_xc{k}")
I(f"v_subrev_u32 {mm[3]}, {sTAG}, {mm[2]}")
I(f"v_cmp_lt_u32 vcc, 15, {mm[3]}")
S.nop(1)
I(f"s_cbranch_vccnz L_xcslow{k}")
S.label(f"L_xcgo{k}")
Fx = Stream(); tail.append(Fx)
Fx.label(f"L_xcslow{k}")
Fx.I("s_sleep 8"); Fx.I(LD_XC); Fx.wait_all(force=True)
Fx.I(f"s_add_u32 {sSPIN}, {sSPIN}, 1"); Fx.I(f"s_cmp_lt_u32 {sSPIN}, 100000"); Fx.I(f"s_cbranch_scc1 L_xc{k}"); Fx.I(f"s_branch L_xcgo{k}")
I(f"v_cmp_ne_u32 vcc, {sT[0]}, {mm[3]}")
S.nop(1)
I(f"s_cmp_lg_u64 vcc, 0"); I(f"s_cselect_b32 {sT[0]}, 1, {OPT.get('forceslow', 0)}")
I(f"v_mov_b32 {mm[3]}, {sT[0]}")
I(f"ds_write_b32 {vMW}, {mm[3]} offset:1024")
chunk(7)
S.fill_flush()
stamp(S)
I(LD_F1)
S.wait_tag("g1c7"); post(S, "H_c7")
poll_check(S, [LD_F1], [pf1], t[7])
I(f"s_cmp_lg_u32 {sQ}, 0"); I("s_cbranch_scc1 L_nown2")
I(f"s_lshr_b32 {sB0}, {sW12}, 1"); I(f"s_add_u32 m0, {sB0}, {L_EX}"); I(f"s_add_u32 {sB0}, {sB0}, {WS_WN}")
for m in range(2): I(f"buffer_load_dwordx4 {vL16}, {SWS}, {sB0} offen offset:{m*1024} sc1 lds", counted=False)
S.label("L_nown2")
I(f"s_add_u32 m0, {sW12}, {L_XC}")
for m in range(4): I(f"buffer_load_dwordx4 {vXCa[m]}, {SWS}, {sXC0} offen offset:{m*1024} sc1 lds", tag="xc")
if OPT.get("fine"): stamp(S)
def h_w2(p):
    await_(S, GRP_G, f"G_rel{4+p}")
    w2_dma(S, p)
if NWH > 0: h_w2(0)
S.wait_tag("xc")
post(S, "H_xc")
hcut(S, 4)
stamp(S)
FR = [[V.alloc(4) for u in range(4)] for tt in range(2)]
DD = [[V.alloc(4) for p in range(2)] for tt in range(2)]
PP = [V.alloc(4) for tt in range(2)]
vLX = V.alloc()
I(f"v_add_u32 {vLX}, {S4}, {vL16}")
await_(S, GRP_H, "H_xc")
if "prioC" in OPT: I("s_setprio %d" % OPT["prioC"])
def big_step(base, mid=None):
    for u in range(4):
        for tt in range(2):
            if base == L_XC: I(f"ds_read_b128 {FR[tt][u]}, {vXCr} offset:{u*4096 + tt*1024}")
            else: I(f"ds_read_b128 {FR[tt][u]}, {vLX} offset:{base - S4 + (tt*4+u)*1024}")
    if mid: mid()
    for u in range(4):
        for tt in range(2):
            for p in range(2):
                I(f"v_mfma_f32_16x16x32_bf16 {DD[tt][p]}, {FR[tt][u]}, {F64[u][p]}, {'0' if u == 0 else DD[tt][p]}")
def mid1():
    I(f"s_or_b32 {sT[0]}, s2, {sW}"); I(f"s_cmp_lg_u32 {sT[0]}, 0"); I("s_cbranch_scc1 L_noepoch")
    flag(S, "0", counted=False)
    S.label("L_noepoch")
    w_loads()
big_step(L_XC, mid1)
if NWH > 1: h_w2(1)
for tt in range(2):
    for r in range(4): cmul_tw(S, DD[tt][0][r], DD[tt][1][r], TFc[4*tt+r], TFs[4*tt+r], t[2*(r&1):2*(r&1)+2], PP[tt][r])
for tau in range(2):
    for p in range(2):
        for tt in range(2):
            I(f"v_mfma_f32_16x16x32_bf16 {DD[tau][p]}, {F32[tau][tt][p]}, {PP[tt]}, {'0' if tt == 0 else DD[tau][p]}")
if OPT.get("fine2"): stamp(S)
S.epoch += 2; EP["H_fr"] = S.epoch - 1; EP["H_sp1"] = S.epoch
I(f"s_cmp_eq_u32 {sQ}, 0")
I("s_cbranch_scc1 L_special")
F = S.fork(); tail.append(F)
for tau in range(2):
    for r in range(4):
        wr_, wi_ = t[4+2*(r&1)], t[5+2*(r&1)]; o = t[2*(r&1):2*(r&1)+2]
        ur, ui = DD[tau][0][r], DD[tau][1][r]
        I(f"v_lshlrev_b32 {wr_}, 16, {Wv[4*tau+r]}"); I(f"v_and_b32 {wi_}, 0xffff0000, {Wv[4*tau+r]}")
        I(f"v_mul_f32 {o[0]}, {ur}, {wr_}"); I(f"v_mul_f32 {o[1]}, {ur}, {wi_}")
        I(f"v_fma_f32 {o[0]}, -{ui}, {wi_}, {o[0]}"); I(f"v_fmac_f32 {o[1]}, {ui}, {wr_}")
        I(f"v_cvt_pk_bf16_f32 {PP[tau][r]}, {o[0]}, -{o[1]}")
S.label("L_special_done")
F.label("L_special")
F.nop(10)
sa = ft
svp = [TFc[2*k:2*k+2] if k < 4 else TFs[2*k-8:2*k-6] for k in range(8)]
PQ = [FR[k>>2][k&3] for k in range(8)]
post(F, "H_fr", alias=True)
F.I(f"v_lshlrev_b32 {sa[0]}, 3, {vKs}"); F.I(f"v_add_u32 {sa[0]}, {L_SP}, {sa[0]}")
F.I(f"s_add_u32 {sT[0]}, {sW13}, {3*32768}"); F.I(f"v_add_u32 {sa[1]}, {sT[0]}, {vL16}")
await_(F, GRP_G, "G_rel6")
for k in range(8): F.I(f"ds_read_b128 {PQ[k]}, {sa[1]} offset:{k*1024}")
await_(F, GRP_H, "H_fr")
for tau in range(2):
    for r in range(4):
        F.I(f"ds_write2_b32 {sa[0]}, {DD[tau][0][r]}, {DD[tau][1][r]} offset0:0 offset1:1")
        if not (tau == 1 and r == 3): F.I(f"v_add_u32 {sa[0]}, {512 if r < 3 else 13*512}, {sa[0]}")
post(F, "H_sp1", alias=True)
for k in range(8):
    F.I(f"v_sub_u32 {Wv[k]}, {2048 - 64*(16*(k>>2)+(k&3))}, {vKs}"); F.I(f"v_and_b32 {Wv[k]}, 2047, {Wv[k]}")
    F.I(f"v_lshlrev_b32 {Wv[k]}, 3, {Wv[k]}"); F.I(f"v_add_u32 {Wv[k]}, {L_SP}, {Wv[k]}")
await_(F, GRP_H, "H_sp1")
for k in range(8): F.I(f"ds_read_b64 {svp[k]}, {Wv[k]}")
for k in range(8):
    ur, ui = DD[k>>2][0][k&3], DD[k>>2][1][k&3]; pr, pi = PQ[k][0], PQ[k][1]
    F.I(f"v_mul_f32 {Wv[k]}, {pr}, {ur}"); F.I(f"v_fma_f32 {Wv[k]}, -{pi}, {ui}, {Wv[k]}")
    F.I(f"v_mul_f32 {ur}, {pi}, {ur}"); F.I(f"v_fmac_f32 {ur}, {pr}, {ui}")
for k in range(8):
    yi = DD[k>>2][0][k&3]; vr, vi = svp[k][0], svp[k][1]; qr, qi = PQ[k][2], PQ[k][3]
    F.I(f"v_fmac_f32 {Wv[k]}, {qr}, {vr}"); F.I(f"v_fmac_f32 {Wv[k]}, {qi}, {vi}")
    F.I(f"v_fmac_f32 {yi}, {qi}, {vr}"); F.I(f"v_fma_f32 {yi}, -{qr}, {vi}, {yi}")
    F.I(f"v_cvt_pk_bf16_f32 {PP[k>>2][k&3]}, {Wv[k]}, -{yi}")
F.wait_all(vm=False, force=True)
F.nop(2)
F.I("s_branch L_special_done")
for tt in range(2):
    for p in range(2):
        for tau in range(2):
            I(f"v_mfma_f32_16x16x32_bf16 {DD[tt][p]}, {PP[tau]}, {F32[tt][tau][p]}, {'0' if tau == 0 else DD[tt][p]}")
if OPT.get("fine2"): stamp(S)
if NWH > 0: S.wait_tag("w2p0"); post(S, "H_w0")
P3 = [FR[0][0], FR[0][1]]
I(f"s_lshr_b32 {sT[0]}, {sW12}, 2"); I(f"v_add_u32 {t[6]}, {sT[0]}, {vLX}")
for tt in range(2):
    for r in range(4): cmul_tw(S, DD[tt][0][r], DD[tt][1][r], TIc[4*tt+r], TIs[4*tt+r], t[2*(r&1):2*(r&1)+2], P3[tt][r])
    I(f"ds_write_b128 {t[6]}, {P3[tt]} offset:{L_EX - S4 + tt*4096}")
post(S, "H_ex")
aw_issue(S, GRP_H)
I(f"s_lshl_b32 {sT[0]}, {sQ}, 13"); I(f"s_lshr_b32 {sT[1]}, {sW12}, 2"); I(f"s_add_u32 {sT[0]}, {sT[0]}, {sT[1]}"); I(f"s_add_u32 {sT[0]}, {sT[0]}, {WS_Y1}")
I(f"s_add_u32 {sT[1]}, {sT[0]}, 4096")
sF3 = sF1
I(f"s_lshl_b32 {sF3}, {sW}, 8"); I(f"s_add_u32 {sF3}, {sF3}, {sQ}"); I(f"s_lshl_b32 {sF3}, {sF3}, 4"); I(f"s_add_u32 {sF3}, {sF3}, {WS_F3}")
aw_check(S, GRP_H, "H_ex")
if OPT.get("fine2"): stamp(S)
big_step(L_EX)
if "prioC" in OPT: I("s_setprio %d" % OPT["prioH"])
if NWH > 1: S.wait_tag("w2p1"); post(S, "H_w1")
for p in range(2):
    for tt in range(2):
        for e in range(2): I(f"v_cvt_pk_bf16_f32 {PP[p][2*tt+e]}, {DD[tt][p][2*e]}, {DD[tt][p][2*e+1]}")
    I(f"buffer_store_dwordx4 {PP[p]}, {vL16}, {SWS}, {sT[p]} offen sc1", tag="y1st")
stamp(S)
V.release(TFc, TFs, TIc, TIs, Wv, mm, vKs, vWr, fq, fh4, vXCa, vXCr, vST, vMW, vPXC, vPF)
for u in range(4): V.release(F64[u][0], F64[u][1], FR[0][u], FR[1][u])
for a in range(2):
    for b in range(2): V.release(DD[a][b], F32[a][b][0], F32[a][b][1])
sAD, sKH, sOB, sY = sM0A, sM0B, sBaseA, sBaseB
def out_addr(st, vOA, tmp):
    c = st.I
    c(f"s_and_b32 {sAD}, {sW}, 1"); c(f"s_lshr_b32 {sKH}, {sW}, 1")
    c(f"v_lshlrev_b32 {tmp[0]}, 5, {vHH}"); c(f"v_and_b32 {tmp[1]}, 1, {vH}"); c(f"v_lshl_add_u32 {tmp[0]}, {tmp[1]}, 4, {tmp[0]}"); c(f"v_add_u32 {tmp[0]}, {tmp[0]}, {vRp}")
    c(f"v_lshlrev_b32 {tmp[1]}, 4, {vL3}"); c(f"v_lshl_add_u32 {vOA[0]}, {tmp[0]}, 10, {tmp[1]}")
    c(f"v_add_u32 {vOA[1]}, {65536-1024}, {vOA[0]}")
    c(f"s_lshl_b32 {sOB}, {sXCD}, 8"); c(f"s_lshl_b32 {sT[0]}, {sKH}, 7"); c(f"s_add_u32 {sOB}, {sOB}, {sT[0]}"); c(f"s_lshl_b32 {sT[0]}, {sHQ}, 2"); c(f"s_add_u32 {sOB}, {sOB}, {sT[0]}")
    c(f"s_lshl_b32 {sT[3]}, {sOB}, 3"); c(f"s_add_u32 {sT[3]}, {sT[3]}, {WS_ST}")
    c(f"s_lshl_b32 {sOB}, {sOB}, 10"); c(f"s_lshl_b32 {sT[0]}, {sCB}, 7"); c(f"s_add_u32 {sOB}, {sOB}, {sT[0]}"); c(f"s_lshl_b32 {sT[0]}, {sAD}, 6"); c(f"s_add_u32 {sOB}, {sOB}, {sT[0]}")
GM = [V.alloc(4) for k in range(16)]
vYD = V.alloc(4); vOA = V.alloc(2); vYR = V.alloc(2); vPF3 = vPF1; pf3 = pf1
out_addr(S, vOA, ft)
gq = Q(); c = gq.I
fd, ab, vSel, vMsk = ft[4], ft[5], ft[6], ft[7]
c(f"s_lshr_b32 {sT[0]}, {sXCD}, 1"); c(f"s_lshl_b32 {sT[1]}, {sT[0]}, 12"); c(f"s_lshr_b32 {sT[2]}, {sW12}, 2"); c(f"s_add_u32 {sT[1]}, {sT[1]}, {sT[2]}"); c(f"s_add_u32 {sT[1]}, {sT[1]}, {WS_F3}")
c(f"v_add_u32 {vPF3}, {sT[1]}, {vL16}")
c(f"s_lshl_b32 {sY}, {sT[0]}, 10"); c(f"s_lshl_b32 {sT[2]}, {sHQ}, 8"); c(f"s_add_u32 {sY}, {sY}, {sT[2]}")
c(f"s_and_b32 {sT[2]}, {sXCD}, 1"); c(f"s_lshl_b32 {sT[2]}, {sT[2]}, 7"); c(f"s_add_u32 {sY}, {sY}, {sT[2]}")
c(f"s_lshl_b32 {sT[2]}, {sW}, 19"); c(f"s_add_u32 {sY}, {sY}, {sT[2]}"); c(f"s_add_u32 {sY}, {sY}, {WS_Y1}")
c(f"v_lshrrev_b32 {ft[0]}, 3, {vL}"); c(f"v_lshl_add_u32 {vYD[0]}, {ft[0]}, 12, {vD8}")
for m in range(1, 4): c(f"v_add_u32 {vYD[m]}, {m*(32768-1024)}, {vYD[0]}")
c(f"s_lshl_b32 {sT[0]}, {sKH}, 14"); c(f"s_add_u32 {sT[0]}, {sT[0]}, 65536"); c(f"s_lshl_b32 {sT[1]}, {sKH}, 6")
c(f"v_xor_b32 {ft[0]}, {sT[1]}, {vTRa}"); c(f"v_add_u32 {vYR[0]}, {sT[0]}, {ft[0]}"); c(f"v_xor_b32 {vYR[1]}, 64, {vYR[0]}")
c(f"s_lshl_b32 {sT[0]}, {sCB}, 6"); c(f"s_lshl_b32 {sT[2]}, {sAD}, 5"); c(f"s_add_u32 {sT[0]}, {sT[0]}, {sT[2]}")
c(f"v_add_u32 {ft[0]}, {sT[0]}, {vL31}"); c(f"v_cvt_f32_u32 {fd}, {ft[0]}"); c(f"v_mul_f32 {fd}, {fl(1/512)}, {fd}")
c(f"v_lshl_add_u32 {ft[1]}, {vHH}, 1, {sT[1]}"); c(f"v_cvt_f32_u32 {ft[1]}, {ft[1]}"); c(f"v_mul_f32 {ab}, {fd}, {ft[1]}")
c(f"v_and_b32 {ft[0]}, 1, {vL}"); c(f"v_mul_u32_u24 {ft[1]}, 0x0202, {ft[0]}"); c(f"v_lshl_or_b32 {ft[1]}, {ft[1]}, 16, {ft[1]}"); c(f"v_xor_b32 {vSel}, 0x03020100, {ft[1]}")
c(f"v_bfe_u32 {ft[1]}, {vL}, 1, 1"); c(f"v_xor_b32 {ft[2]}, {ft[1]}, {ft[0]}"); c(f"v_lshlrev_b32 {ft[1]}, 31, {ft[1]}"); c(f"v_lshl_or_b32 {vMsk}, {ft[2]}, 15, {ft[1]}")
for kl in range(8):
    for rho in range(4):
        c(f"v_fmamk_f32 {ft[0]}, {fd}, {fl(8*kl + 4*(rho>>1) + (rho&1))}, {ab}")
        c(f"v_cos_f32 {ft[1]}, {ft[0]}"); c(f"v_sin_f32 {ft[2]}, {ft[0]}")
        if not (kl == 0 and rho == 0):
            pk, pr = (kl, rho - 1) if rho else (kl - 1, 3)
            c(f"v_perm_b32 {ft[3]}, {GM[pk][pr]}, {GM[pk][pr]}, {vSel}")
            c(f"v_cvt_pk_bf16_f32 {GM[kl][rho]}, {ft[1]}, {ft[2]}")
            c(f"v_xor_b32 {GM[8+pk][pr]}, {vMsk}, {ft[3]}")
        else:
            c(f"v_cvt_pk_bf16_f32 {GM[kl][rho]}, {ft[1]}, {ft[2]}")
c(f"v_perm_b32 {ft[3]}, {GM[7][3]}, {GM[7][3]}, {vSel}"); c(f"v_xor_b32 {GM[15][3]}, {vMsk}, {ft[3]}")
c(f"v_and_b32 {ft[0]}, 1, {vL}"); c(f"v_lshlrev_b32 {ft[0]}, 31, {ft[0]}"); c(f"v_xor_b32 {ft[0]}, 0xbf803f80, {ft[0]}")
c(f"s_sub_u32 {sT[4]}, {sKH}, 1"); c(f"s_mov_b32 {sT[5]}, 0")
c(f"v_cndmask_b32 {GM[0][0]}, {GM[0][0]}, {ft[0]}, s[48:49]")
S.fq = gq.l
S.fill(OPT.get("gpre", 120))
S.wait_tag("y1st"); flag(S, sF3)

hcut(S, 5)
V.release(PP[0], PP[1])
S.fill_flush()
LD_F3 = f"buffer_load_dword {pf3}, {vPF3}, {SWS}, 0 offen sc1"
await_(S, GRP_G, "G_hs")
I(LD_F3)
poll_check(S, [LD_F3], [pf3], t[7])
stamp(S)
await_(S, GRP_G, "G_s01")
for g in range(4):
    I(f"s_lshl_b32 {sB0}, {sW}, 14"); I(f"s_add_u32 m0, {sB0}, {65536 + g*4096}")
    I(f"s_add_u32 {sB0}, {sY}, {g*32*4096}")
    for m in range(4): I(f"buffer_load_dwordx4 {vYD[m]}, {SWS}, {sB0} offen offset:{m*1024} sc1 lds", tag="yb")
S.wait_tag("yb"); post(S, "H_yb")
sac = [V.alloc(16), V.alloc(16)]
V.release(vYD, ft, vXD, vW1D)
NY = OPT.get("ny", 13)
yf = [[V.alloc(4) for b in range(2)] for s in range(NY)]
vSW = V.alloc(); vSR = V.alloc()
I(f"v_add_u32 {vSW}, {sW12}, {vLX}"); I(f"v_xor_b32 {vSR}, 0x2000, {vSW}")
await_(S, GRP_H, "H_yb")
stamp(S)
def y_reads(k):
    kk = k if k < 8 else k + 8
    return [f"ds_read_b64_tr_b16 {yf[k%NY][b][2*j:2*j+2]}, {vYR[b]} offset:{kk*2048 + j*1024}" for b in (1, 0) for j in range(2)]
rd = []
for k in range(16): rd += [(k, l) for l in y_reads(k)]
for _ in range(12): I(rd.pop(0)[1])
I(f"s_lshr_b32 {sB0}, {sW12}, 1"); I(f"s_add_u32 m0, {sB0}, {L_XT}")
for m in range(2): I(f"buffer_load_dwordx4 {vOA[m]}, {SX}, {sOB} offen offset:{m*1024} lds", tag="xt")
class Cap:
    def __init__(self): self.l = []
    def I(self, text, **kw): self.l.append((text, kw))
def groups_of(fn):
    cap = Cap(); fn(cap); gs = []; grp = []
    for it in cap.l:
        grp.append(it)
        if it[0].startswith("buffer_load"):
            gs.append(grp); grp = []
    gs[-1] += grp
    return gs
posted = False
for k in range(16):
    for b in (1, 0):
        I(f"v_mfma_f32_32x32x16_bf16 {sac[b]}, {GM[k]}, {yf[k%NY][b]}, {'0' if k == 0 else sac[b]}")
        n = 0
        while rd and n < 5 and rd[0][0] - NY < k: I(rd.pop(0)[1]); n += 1
S.bg_flush()
for g in range(4): I(f"ds_write_b128 {vSR}, {sac[1][4*g:4*g+4]} offset:{g*1024}")
post(S, "H_sx")
await_(S, GRP_H, "H_sx")
for g in range(4): I(f"ds_read_b128 {sac[1][4*g:4*g+4]}, {vSW} offset:{g*1024}")
for g in range(4):
    for e in range(2): I(f"v_pk_add_f32 {sac[0][4*g+2*e:4*g+2*e+2]}, {sac[0][4*g+2*e:4*g+2*e+2]}, {sac[1][4*g+2*e:4*g+2*e+2]}")
    I(f"ds_write_b128 {vSW}, {sac[0][4*g:4*g+4]} offset:{g*1024}")
S.wait_tag("xt"); post(S, "H_done")
diag_out(S)
I("s_endpgm")

S = G; V = VG; I = G.I
if OPT["prioG"]: I(f"s_setprio {OPT['prioG']}")
dma_addr_setup(S, 0)
I(f"s_lshr_b32 {sT[0]}, {sXCD}, 1"); I(f"s_lshl_b32 {sT[0]}, {sT[0]}, 4"); I(f"s_and_b32 {sT[1]}, {sJ}, 15"); I(f"s_add_u32 {sT[0]}, {sT[0]}, {sT[1]}")
I(f"s_and_b32 {sT[1]}, {sXCD}, 1"); I(f"s_lshl_b32 {sT[1]}, {sT[1]}, 1"); I(f"s_lshr_b32 {sT[2]}, {sJ}, 4"); I(f"s_add_u32 {sT[1]}, {sT[1]}, {sT[2]}")
I(f"s_lshl_b32 {sT[1]}, {sT[1]}, 9"); I(f"s_add_u32 {sT[0]}, {sT[0]}, {sT[1]}"); I(f"s_lshl_b32 {sT[1]}, {sW}, 7"); I(f"s_add_u32 {sT[0]}, {sT[0]}, {sT[1]}")
I(f"s_mul_i32 {sT[6]}, {sT[0]}, 514"); I(f"s_add_u32 {sT[7]}, {sT[6]}, {64*514}")
wq = V.alloc(8); wn = V.alloc(2); wo = V.alloc(8); vL8 = V.alloc(); vWN = V.alloc(); vWG = V.alloc(); vPs = V.alloc(2)
I(f"v_lshlrev_b32 {vL8}, 3, {vL}")
I(f"v_and_b32 {t[0]}, 1, {vL}"); I(f"v_mul_u32_u24 {vWN}, {64*514}, {t[0]}")
I(f"v_lshrrev_b32 {t[0]}, 2, {vL}"); I(f"v_lshl_add_u32 {t[0]}, {vL3}, 4, {t[0]}"); I(f"v_mul_u32_u24 {t[0]}, {GP}, {t[0]}")
I(f"s_lshl_b32 {sT[1]}, {sW}, 3"); I(f"s_add_u32 {sT[1]}, {sT[1]}, {L_GA + 32}"); I(f"v_add_u32 {vWG}, {sT[1]}, {t[0]}")
I(f"v_mov_b32 {vPs[0]}, 0x05040100"); I(f"v_mov_b32 {vPs[1]}, 0x07060302")
S.wait_all(vm=False, force=True)
stamp(S)
srd(S, SX, 66, 67, 2048 * 514); srd(S, SOUT, 68, 69, 2048 * 514)
srd(S, SWS, 80, 81, WS_SIZE)
srd(S, SA, 64, 65, 2048 * 1024); srd(S, SB, 72, 73, 512 * 3584); srd(S, SW2, 74, 75, 1792 * 1024)
I(f"s_cmp_lt_u32 {sJ}, 28"); I("s_cselect_b32 s14, s14, 0"); I("s_cselect_b32 s18, s18, 0")
I("s_barrier")
I(f"buffer_load_dword {vE}, {vZ}, {SWS}, 0 offen sc1")
for rho in range(2):
    I(f"buffer_load_dwordx2 {wq[4*rho:4*rho+2]}, {vL8}, {SX}, {sT[6+rho]} offen")
    I(f"buffer_load_dwordx2 {wq[4*rho+2:4*rho+4]}, {vL8}, {SOUT}, {sT[6+rho]} offen")
I("s_mov_b64 exec, 3")
I(f"buffer_load_ushort {wn[0]}, {vWN}, {SX}, {sT[6]} offen offset:512")
I(f"buffer_load_ushort {wn[1]}, {vWN}, {SOUT}, {sT[6]} offen offset:512")
I("s_mov_b64 exec, -1")
for cc in range(OPT.get("g0", 1)): g1_dma(S, cc, False)
def pretouch(st):
    I = st.I
    I(f"s_lshl_b32 {sT[0]}, s2, 2"); I(f"s_add_u32 {sT[0]}, {sT[0]}, {sW}"); I(f"s_mul_i32 {sT[0]}, {sT[0]}, {14*128}")
    I(f"v_lshlrev_b32 {t[7]}, 7, {vL}")
    I("s_mov_b64 exec, 0x3fff")
    I(f"buffer_load_dword v255, {t[7]}, {SW2}, {sT[0]} offen", counted=False)
    I("s_mov_b64 exec, -1")
if OPT["pretouch"] == 1: pretouch(S)
srd(S, SOUT, 76, 77, 2048 * 1024)
misc_lane(S)
make_tag(S)
for rho in range(2):
    for cc in range(4):
        I(f"v_perm_b32 {wo[2*cc+rho]}, {wq[4*rho+2+(cc>>1)]}, {wq[4*rho+(cc>>1)]}, {vPs[cc&1]}")
for cc in range(4): I(f"ds_write_b64 {vWG}, {wo[2*cc:2*cc+2]} offset:{64*cc}")
I(f"v_lshl_or_b32 {wn[0]}, {wn[1]}, 16, {wn[0]}")
I(f"s_lshl_b32 {sT[1]}, {sW}, 3"); I(f"s_add_u32 {sT[1]}, {sT[1]}, {L_WN}"); I(f"v_lshl_add_u32 {t[1]}, {vL}, 2, {sT[1]}")
I("s_mov_b64 exec, 3")
I(f"ds_write_b32 {t[1]}, {wn[0]}")
I("s_mov_b64 exec, -1")
post(S, "G_wp0")
I(f"s_getreg_b32 {sT[0]}, hwreg(HW_REG_XCC_ID, 0, 4)"); I(f"s_add_u32 {sT[0]}, {sT[0]}, {sTAG}"); I(f"v_mov_b32 {t[0]}, {sT[0]}")
I(f"s_lshl_b32 {sT[0]}, {sXCD}, 5"); I(f"s_add_u32 {sT[0]}, {sT[0]}, {sJ}"); I(f"s_lshl_b32 {sT[0]}, {sT[0]}, 4"); I(f"s_add_u32 {sT[0]}, {sT[0]}, {WS_XCC}")
I(f"s_cmp_lg_u32 {sW}, 0"); I("s_cbranch_scc1 L_noxcc")
I("s_mov_b64 exec, 1")
I(f"buffer_store_dword {t[0]}, {vZ}, {SWS}, {sT[0]} offen sc1", counted=False)
I("s_mov_b64 exec, -1")
S.label("L_noxcc")
for cc in range(OPT.get("g0", 1), GC): g1_dma(S, cc, False)
V.release(wq, wn, wo, vL8, vWN, vWG, vPs)
acc = [[V.alloc(16) for b in range(2)] for a in range(2)]
vW2R = V.alloc(4)
I(f"s_and_b32 {sT[0]}, {sW}, 1"); I(f"s_lshl_b32 {sT[0]}, {sT[0]}, 6")
I(f"v_xor_b32 {t[1]}, {sT[0]}, {vTRa}"); I(f"v_add_u32 {vW2R[0]}, {sW13}, {t[1]}"); I(f"v_xor_b32 {vW2R[1]}, 64, {vW2R[0]}")
I(f"v_add_u32 {vW2R[2]}, 0x10000, {vW2R[0]}"); I(f"v_add_u32 {vW2R[3]}, 0x10000, {vW2R[1]}")
w2_setup(S, NWH)
stamp(S)
I(f"s_cmp_ge_u32 {sJ}, 28")
I("s_cbranch_scc1 L_free_wprep")
Ffree = S.fork()
vXR = V.alloc(4); vWR = V.alloc(4)
sWRr, sWF = sM0A, sM0B
I(f"s_and_b32 {sWRr}, {sW}, 1"); I(f"s_lshr_b32 {sWF}, {sW}, 1")
I(f"s_lshl_b32 {sT[0]}, {sWRr}, 13"); I(f"v_lshlrev_b32 {t[0]}, 7, {vL31}"); I(f"v_add_u32 {t[0]}, {sT[0]}, {t[0]}")
I(f"v_bfe_u32 {t[1]}, {vL}, 1, 3"); I(f"v_xor_b32 {t[1]}, {t[1]}, {vHH}")
I(f"s_lshl_b32 {sT[1]}, {sWRr}, 2"); I(f"v_xor_b32 {t[1]}, {sT[1]}, {t[1]}")
I(f"v_lshl_add_u32 {vXR[0]}, {t[1]}, 4, {t[0]}")
I(f"v_lshl_add_u32 {t[0]}, {vHH}, 3, {vRp}"); I(f"v_lshl_add_u32 {t[0]}, {t[0]}, 8, {vTRL}")
I(f"s_lshl_b32 {sT[1]}, {sWF}, 1"); I(f"v_xor_b32 {t[1]}, {sT[1]}, {vRp}")
I(f"v_lshl_add_u32 {t[0]}, {t[1]}, 6, {t[0]}")
I(f"s_add_u32 {sT[1]}, {sT[0]}, 16384"); I(f"s_sub_u32 {sT[2]}, 16384, {sT[0]}")
I(f"v_add_u32 {vWR[0]}, {sT[1]}, {t[0]}"); I(f"v_xor_b32 {vWR[1]}, 64, {vWR[0]}")
I(f"v_add_u32 {vWR[2]}, {sT[2]}, {t[0]}"); I(f"v_xor_b32 {vWR[3]}, 64, {vWR[2]}")
for k in range(1, 4): I(f"v_xor_b32 {vXR[k]}, {k*32}, {vXR[0]}")
vXR2 = V.alloc(4); vWR2 = V.alloc(4)
for k in range(4): I(f"v_add_u32 {vXR2[k]}, 0x10000, {vXR[k]}"); I(f"v_add_u32 {vWR2[k]}, 0x10000, {vWR[k]}")
S.wait_tag("g1c0"); post(S, "G_c0")
csa = [V.alloc(4) for a in range(2)]
NS = 3
fx = [[V.alloc(4) for b in range(2)] for s in range(NS)]
fw_ = [[V.alloc(4) for a in range(2)] for s in range(NS)]
ONES = V.alloc(4)
aw_issue(S, GRP_G)
I(f"v_and_b32 {t[0]}, 1, {vH}"); I(f"v_cmp_eq_u32 vcc, {t[0]}, {vL15}")
I(f"v_mov_b32 {t[1]}, 0x3f803f80")
for r in range(4): I(f"v_cndmask_b32 {ONES[r]}, 0, {t[1]}, vcc")
def g1_reads(step):
    c, k = divmod(step, 4); s = step % NS
    sl = (c & 1) * 32768
    xr_, wr_ = (vXR2, vWR2) if c & 2 else (vXR, vWR)
    l = []
    def wr(a):
        for j in range(2):
            l.append(f"ds_read_b64_tr_b16 {fw_[s][a][2*j:2*j+2]}, {wr_[2*(k>>1)+a]} offset:{sl + k*4096 + j*1024}")
    def xr(b): l.append(f"ds_read_b128 {fx[s][b]}, {xr_[k]} offset:{sl + b*4096}")
    wr(0); xr(0); xr(1); wr(1)
    return l
vCSW = V.alloc(); vCSR = V.alloc(); vMR = V.alloc(); mm = V.alloc(4)
sH0 = sStep
eq = Q(); c = eq.I
c(f"v_lshlrev_b32 {t[0]}, 6, {vL15}"); c(f"v_lshl_add_u32 {t[0]}, {vH}, 4, {t[0]}")
c(f"s_lshl_b32 {sT[0]}, {sW}, 8"); c(f"s_add_u32 {sT[1]}, {sT[0]}, {L_CS}"); c(f"v_add_u32 {vCSW}, {sT[1]}, {t[0]}")
c(f"s_add_u32 {sT[1]}, {sT[0]}, {L_MEAN}"); c(f"v_lshl_add_u32 {vMR}, {vL31}, 2, {sT[1]}")
c(f"s_lshl_b32 {sT[0]}, {sWF}, 9"); c(f"s_add_u32 {sT[0]}, {sT[0]}, {L_CS}")
c(f"v_lshlrev_b32 {t[0]}, 4, {vHH}"); c(f"v_add_u32 {vCSR}, {sT[0]}, {t[0]}")
c(f"s_lshl_b32 {sT[0]}, {sAa}, 1"); c(f"s_add_u32 {sT[0]}, {sT[0]}, {sWRr}")
c(f"s_lshl_b32 {sTT}, {sO}, 2"); c(f"s_add_u32 {sTT}, {sTT}, {sT[0]}")
c(f"s_mul_i32 {sH0}, {sTT}, 229376"); c(f"s_lshl_b32 {sT[1]}, {sFB}, 14"); c(f"s_add_u32 {sH0}, {sH0}, {sT[1]}")
c(f"s_lshl_b32 {sT[1]}, {sWF}, 13"); c(f"s_add_u32 {sH0}, {sH0}, {sT[1]}"); c(f"s_add_u32 {sH0}, {sH0}, {WS_H}")
c(f"s_lshl_b32 {sF2}, {sTT}, 9"); c(f"s_lshl_b32 {sT[1]}, {sFB}, 5"); c(f"s_add_u32 {sF2}, {sF2}, {sT[1]}")
c(f"s_lshl_b32 {sT[1]}, {sWF}, 4"); c(f"s_add_u32 {sF2}, {sF2}, {sT[1]}"); c(f"s_add_u32 {sF2}, {sF2}, {WS_F2}")
S.fq = eq.l
aw_check(S, GRP_G, "G_c0")
if OPT.get("prioG0"): I("s_setprio %d" % OPT["prioG0"])
for st_ in range(NS - 1):
    for l in g1_reads(st_): I(l)
PFS = [OPT.get("pf0", 4) + OPT.get("pfd", 3) * i for i in range(7)]
csv = [V.alloc(4) for i in range(8)]; cst = [V.alloc(4) for i in range(6)] + [vXD, vW1D]
for step in range(32):
    c_, k = divmod(step, 4); s = step % NS
    nxt = step + NS - 1
    mf = [f"v_mfma_f32_32x32x16_bf16 {acc[a][b]}, {fw_[s][a]}, {fx[s][b]}, {'0' if step == 0 else acc[a][b]}" for a, b in ((0, 0), (0, 1), (1, 0), (1, 1))]
    if k < 2:
        cm = [f"v_mfma_f32_16x16x32_bf16 {csa[a]}, {fw_[s][a]}, {ONES}, {'0' if step == 0 else csa[a]}" for a in range(2)]
        mf = [mf[0], mf[1], cm[0], mf[2], mf[3], cm[1]]
    rd = g1_reads(nxt) if nxt < 32 else []
    acts = []
    cn = nxt // 4
    if nxt < 32 and nxt % 4 == 0:
        acts.append(lambda cn=cn: aw_check(S, GRP_G, f"G_rel{cn-1}") if cn < GC else aw_check(S, GRP_H, f"H_c{cn}"))
        if OPT.get("fine") and cn not in (1, 3): acts.append(lambda: stamp(S))
    post_after = []
    if nxt < 32 and nxt % 4 == 3:
        if cn + 1 < GC: post_after.append(lambda cn=cn: S.wait_tag(f"g1c{cn+1}"))
        if cn < 7:
            post_after.append(lambda cn=cn: post(S, f"G_rel{cn}"))
            post_after.append(lambda cn=cn: aw_issue(S, GRP_G if cn + 1 < GC else GRP_H))
    if step == 30:
        def csw():
            S.atomic += 1
            I("s_mov_b32 exec_lo, 0x00030003"); I("s_mov_b32 exec_hi, 0x00030003")
            for a in range(2): I(f"ds_write_b128 {vCSW}, {csa[a]} offset:{a*128}")
            I("s_mov_b64 exec, -1")
            S.atomic -= 1
            post(S, "G_cs")
            for b in range(2): I(f"ds_read_b32 {mm[2*b]}, {vMR} offset:{b*128}")
            I(f"ds_read_b32 {mm[1]}, {vMR} offset:1024")
        post_after.append(csw)
        post_after.append(lambda: aw_issue(S, GRP_G))
    if step == 31:
        def csr():
            aw_check(S, GRP_G, "G_cs")
            for i in range(8):
                I(f"ds_read_b128 {csv[i]}, {vCSR} offset:{(i>>2)*128 + (i&3)*32}")
                I(f"ds_read_b128 {cst[i]}, {vCSR} offset:{256 + (i>>2)*128 + (i&3)*32}")
        post_after.append(csr)
    for i, m in enumerate(mf):
        I(m)
        if i == 0:
            for a in acts: a()
        for _ in range(2):
            if rd: I(rd.pop(0))
        if not rd and post_after and i >= 2:
            for a in post_after: a()
            post_after = []
        S.fill(2)
stamp(S)
S.fill_flush()
S.bg_flush()
if OPT.get("prioG1"): I("s_setprio %d" % OPT["prioG1"])
I(f"s_add_u32 {sT[1]}, {sH0}, 4096")
sMODE = sIdx
I(f"v_readfirstlane_b32 {sMODE}, {mm[1]}")
if OPT.get("hmode", 1) == 0: I(f"s_mov_b32 {sMODE}, 1")
blocks = []
for a in range(2):
    for kp in range(2):
        for gg in range(2):
            i = a * 4 + kp * 2 + gg
            for e in range(2): I(f"v_pk_add_f32 {csv[i][2*e:2*e+2]}, {csv[i][2*e:2*e+2]}, {cst[i][2*e:2*e+2]}")
        for b in range(2):
            for e in range(4):
                rr = 8 * kp + 2 * e; cv = csv[a * 4 + kp * 2 + (e >> 1)][2*(e&1):2*(e&1)+2]
                I(f"v_pk_fma_f32 {acc[a][b][rr:rr+2]}, {cv}, {mm[2*b:2*b+2]}, {acc[a][b][rr:rr+2]} op_sel_hi:[1,0,1] neg_lo:[1,0,0] neg_hi:[1,0,0]")
        sts = []
        for b in range(2):
            o = cst[a * 4 + kp * 2 + b]
            for e in range(4):
                rr = 8 * kp + 2 * e
                I(f"v_cvt_pk_bf16_f32 {o[e]}, {acc[a][b][rr]}, {acc[a][b][rr+1]}")
            for e in range(4): I(f"v_pk_max_i16 {o[e]}, {o[e]}, 0")
            sts.append(f"buffer_store_dwordx4 {o}, {vL16}, {SWS}, {sH0 if a == 0 else sT[1]} offen offset:{kp*2048 + b*1024}")
        if OPT.get("hmode", 1) < 2:
            for x in sts: I(x + " sc1", tag="hst")
            continue
        k = nlab[0]; nlab[0] += 1
        I(f"s_cmp_lg_u32 {sMODE}, 0"); I(f"s_cbranch_scc1 L_hs{k}")
        for x in sts: I(x, tag="hst")
        S.label(f"L_hd{k}")
        Fs = Stream(); tail.append(Fs); Fs.label(f"L_hs{k}")
        for x in sts: Fs.I(x + " sc1")
        Fs.I(f"s_branch L_hd{k}")
V.release(vXR, vWR, vXR2, vWR2, ONES, csa[0], csa[1], vCSW, vCSR, vMR, mm, *cst, *csv)
for s in range(NS): V.release(fx[s][0], fx[s][1], fw_[s][0], fw_[s][1])
S.nop(2)
S.label("L_join")
stamp(S)
F = Ffree; tail.append(F)
F.label("L_free_wprep")
F.I(f"s_lshl_b32 {sF2}, s2, 6"); F.I(f"s_add_u32 {sF2}, {sF2}, 0x40000")
F.wait_all(force=True)
post(F, "G_rel3", alias=True)
F.I(f"s_cmp_eq_u32 s2, 224"); F.I("s_cbranch_scc1 L_spG")
await_(F, GRP_H, "H_c7")
F.label("L_spG_done")
post(F, "G_cs", alias=True)
Fg = Stream(); tail.append(Fg); Fg.label("L_spG")
ga = [acc[0][0], acc[0][1]]
sa = t; gk = acc[1][1][0]
Fg.I(f"s_lshl_b32 {sT[0]}, {sW}, 4"); Fg.I(f"v_lshl_add_u32 {gk}, {vH}, 8, {vL15}"); Fg.I(f"v_add_u32 {gk}, {sT[0]}, {gk}")
for k in range(8):
    c0 = 64 * (16 * (k >> 2) + (k & 3))
    for neg in range(2):
        if neg: Fg.I(f"v_sub_u32 {sa[0]}, {2048 - c0}, {gk}"); Fg.I(f"v_and_b32 {sa[0]}, 2047, {sa[0]}")
        else: Fg.I(f"v_add_u32 {sa[0]}, {c0}, {gk}")
        ks = sa[0]
        Fg.I(f"v_bfe_u32 {sa[1]}, {ks}, 4, 2"); Fg.I(f"v_lshrrev_b32 {sa[2]}, 9, {ks}"); Fg.I(f"v_lshl_add_u32 {sa[1]}, {sa[1]}, 2, {sa[2]}")
        Fg.I(f"v_and_b32 {sa[2]}, 15, {ks}"); Fg.I(f"v_lshl_add_u32 {sa[1]}, {sa[1]}, 4, {sa[2]}")
        Fg.I(f"v_bfe_u32 {sa[2]}, {ks}, 6, 3")
        Fg.I(f"v_lshlrev_b32 {sa[3]}, 2, {sa[2]}"); Fg.I(f"v_lshl_add_u32 {sa[3]}, {sa[1]}, 5, {sa[3]}"); Fg.I(f"v_add_u32 {ga[neg][8+k]}, {L_EX}, {sa[3]}")
        Fg.I(f"v_lshrrev_b32 {sa[3]}, 2, {sa[2]}"); Fg.I(f"v_bfe_u32 {sa[0]}, {sa[1]}, 2, 2"); Fg.I(f"v_xor_b32 {sa[3]}, {sa[3]}, {sa[0]}"); Fg.I(f"v_xor_b32 {sa[3]}, 2, {sa[3]}")
        Fg.I(f"v_and_b32 {sa[2]}, 3, {sa[2]}"); Fg.I(f"v_lshlrev_b32 {sa[2]}, 2, {sa[2]}"); Fg.I(f"v_lshl_add_u32 {sa[2]}, {sa[3]}, 4, {sa[2]}")
        Fg.I(f"v_lshl_add_u32 {sa[2]}, {sa[1]}, 6, {sa[2]}"); Fg.I(f"v_add_u32 {ga[neg][k]}, {L_XC}, {sa[2]}")
Fg.I(f"s_add_u32 {sT[0]}, {sW13}, {3*32768}"); Fg.I(f"v_add_u32 {gk}, {sT[0]}, {vL16}")
await_(Fg, GRP_H, "H_c7")
post(Fg, "G_rel5", alias=True)
await_(Fg, GRP_H, "H_xc")
for k in range(8):
    for r in (ga[0][k], ga[1][k], ga[0][8+k], ga[1][8+k]): Fg.I(f"ds_read_b32 {r}, {r}")
for k in range(8):
    o = acc[1][0][4*(k&3):4*(k&3)+4]
    a_, b_, c_, d_ = ga[0][k], ga[1][k], ga[0][8+k], ga[1][8+k]
    for i, r in enumerate((a_, b_, c_, d_)):
        Fg.I(f"v_lshlrev_b32 {t[2*i]}, 16, {r}"); Fg.I(f"v_and_b32 {t[2*i+1]}, 0xffff0000, {r}")
    Fg.I(f"v_add_f32 {t[0]}, {t[0]}, {t[2]}"); Fg.I(f"v_sub_f32 {t[1]}, {t[1]}, {t[3]}")
    Fg.I(f"v_add_f32 {t[4]}, {t[4]}, {t[6]}"); Fg.I(f"v_sub_f32 {t[5]}, {t[5]}, {t[7]}")
    Fg.I(f"v_add_f32 {o[0]}, {t[0]}, {t[4]}"); Fg.I(f"v_add_f32 {o[1]}, {t[1]}, {t[5]}")
    Fg.I(f"v_sub_f32 {o[2]}, {t[0]}, {t[4]}"); Fg.I(f"v_sub_f32 {o[3]}, {t[1]}, {t[5]}")
    for e in range(4): Fg.I(f"v_mul_f32 {o[e]}, {fl(0.125)}, {o[e]}")
    Fg.I(f"ds_write_b128 {gk}, {o} offset:{k*1024}")
post(Fg, "G_rel6", alias=True)
await_(Fg, GRP_H, "H_sp1")
Fg.wait_all(force=True)
Fg.I("s_branch L_spG_done")
F.wait_all(force=True)
F.nop(2)
F.I("s_branch L_join")
NREG = 3
W2F = [[V.alloc(4) for a in range(2)] for k in range(4 * NREG)]
def w2_reads(p, kl, dst):
    sl = W2SLOT[p]
    return [f"ds_read_b64_tr_b16 {dst[a][2*j:2*j+2]}, {vW2R[2*(sl>>1)+a]} offset:{(sl&1)*32768 + kl*2048 + j*1024}" for a in range(2) for j in range(2)]
S.wait_tag("hst")
S.atomic += 1
I("s_mov_b64 exec, 1")
I(f"s_cmp_lg_u32 {sMODE}, 0"); I("s_cbranch_scc1 L_f2s")
I(f"buffer_store_dword {vTAG}, {vZ}, {SWS}, {sF2} offen")
S.label("L_f2d")
I("s_mov_b64 exec, -1")
S.atomic -= 1
Fs = Stream(); tail.append(Fs); Fs.label("L_f2s")
Fs.I(f"buffer_store_dword {vTAG}, {vZ}, {SWS}, {sF2} offen sc1"); Fs.I("s_branch L_f2d")
if OPT.get("prioG1"): I("s_setprio 0")
stamp(S)
for p in range(NWH, 4): w2_dma(S, p)
sT2 = sTT; sH = sStep
vPF2 = V.alloc(); pf2 = V.alloc()
I(f"s_lshl_b32 {sT2}, {sXCD}, 2"); I(f"s_add_u32 {sT2}, {sT2}, {sHQ}")
I(f"s_lshl_b32 {sT[0]}, {sT2}, 9"); I(f"s_mul_i32 {sT[1]}, {sW}, 112"); I(f"s_add_u32 {sT[0]}, {sT[0]}, {sT[1]}"); I(f"s_add_u32 {sT[0]}, {sT[0]}, {WS_F2}")
I(f"v_min_u32 {vPF2}, 6, {vL}"); I(f"v_lshlrev_b32 {vPF2}, 4, {vPF2}"); I(f"v_add_u32 {vPF2}, {sT[0]}, {vPF2}")
LD_F2 = f"buffer_load_dword {pf2}, {vPF2}, {SWS}, 0 offen sc1"
for p in range(NREG):
    if p < NWH: await_(S, GRP_H, f"H_w{p}")
    else: S.wait_tag(f"w2p{p}")
    for kl in range(4):
        for l in w2_reads(p, kl, W2F[4*p+kl]): I(l, tag=f"w2d{p}")
for p in (2, 0, 1):
    S.wait_tag(f"w2d{p}")
    p2_set(S, p + 4)
    if p == 1: I(LD_F2)
    w2_dma(S, p + 4)
vOA = V.alloc(2)
out_addr(S, vOA, t)
vHb = V.alloc(2)
I(f"s_lshl_b32 {sT[0]}, {sKH}, 10"); I(f"v_add_u32 {vHb[0]}, {sT[0]}, {vL16}"); I(f"v_xor_b32 {vHb[1]}, 0x400, {vHb[0]}")
I(f"s_mul_i32 {sH}, {sT2}, 229376"); I(f"s_mul_i32 {sT[0]}, {sW}, 57344"); I(f"s_add_u32 {sH}, {sH}, {sT[0]}"); I(f"s_add_u32 {sH}, {sH}, {WS_H}")
V.release(vW2D)
yac = acc
NB = OPT["nb"]
HLD = ["sc1", "", "sc0", "nt"][OPT.get("hld", 0)]
order = [[3, 6, 4, 5, 0, 1, 2], [0, 3, 6, 4, 5, 1, 2], [3, 0, 6, 4, 5, 1, 2]][OPT.get('ord', 0)]
S01 = 4 * order.index(6) + 2
WB = 2
wb = [[V.alloc(4) for a in range(2)] for s in range(WB)]
vYW = V.alloc()
V.release(vTRL, vD8, vTRa)
vRS = vE
I(f"v_lshlrev_b32 {vRowOff}, 3, {vRowOff}")
hfree = []
while True:
    try: hfree.append([V.alloc(4), V.alloc(4)])
    except RuntimeError: break
sys.stderr.write("initial h buffers %d\n" % len(hfree))
hown = list(hfree)
hb = {}
nissued = [0]
def h_load():
    i = nissued[0]; nissued[0] += 1
    hb[i] = hfree.pop(0)
    p, kl = order[i // 4], i % 4
    if kl == 0:
        p2_set(S, p)
        I(f"s_lshl_b32 {sS0}, {sP2}, 13"); I(f"s_add_u32 {sS0}, {sS0}, {sH}")
    if kl == 2: I(f"s_add_u32 {sS0}, {sS0}, 4096")
    for b in range(2):
        I(f"buffer_load_dwordx4 {hb[i][b]}, {vHb[b]}, {SWS}, {sS0} offen offset:{(kl%2)*2048} {HLD}")
def h_top(done):
    while hfree and nissued[0] < 28 and nissued[0] - done < NB: h_load()
def wsrc(i):
    p, kl = order[i // 4], i % 4
    return W2F[4*p+kl] if p < NREG else wb[i % WB]
def wrd(i):
    p, kl = order[i // 4], i % 4
    return w2_reads(p, kl, wb[i % WB]) if p >= NREG else []
post(S, "G_hs")
poll_check(S, [LD_F2], [pf2], t[7])
stamp(S)
h_top(0)
for l in wrd(0): I(l)
I(f"buffer_load_dword {vRS}, {vRowOff}, {SWS}, {sT[3]} offen sc1")
vRd = [None] + [t[k] for k in (1, 2, 3)]
for i in range(28):
    rd = wrd(i + 1) if i + 1 < 28 else []
    if rd and (i + 1) % 4 == 0: S.wait_tag(f"w2p{order[(i+1)//4]}")
    for a, b in ((0, 0), (1, 0), (0, 1), (1, 1)):
        I(f"v_mfma_f32_32x32x16_bf16 {yac[a][b]}, {wsrc(i)[a]}, {hb[i][b]}, {'0' if i == 0 else yac[a][b]}")
        for _ in range(2):
            if rd: I(rd.pop(0))
    if i == S01: post(S, "G_s01")
    hfree.append(hb[i])
    if order[i // 4] < NREG: hfree.append(wsrc(i))
    h_top(i + 1)
    if i == 22:
        I(f"v_add_u32 {vYW}, {sW13}, {vL16}")
        for k in (1, 2, 3): I(f"v_xor_b32 {vRd[k]}, {k*8192}, {vYW}")
stamp(S)
slots = {1: yac[1][0], 2: yac[0][1], 3: yac[1][1]}
soff = {1: 0, 2: 4096, 3: 32768}
for k in (1, 2, 3):
    for g in range(4): I(f"ds_write_b128 {vYW}, {slots[k][4*g:4*g+4]} offset:{soff[k] + g*1024}")
post(S, "G_y")
for pr in hown + W2F + wb: V.release(pr[0], pr[1])
sv = V.alloc(16); xv = V.alloc(8); xe = V.alloc(16); vXT = V.alloc(); vXL = V.alloc(); ft = V.alloc(8)
await_(S, GRP_H, "H_done")
I(f"s_lshr_b32 {sT[0]}, {sW12}, 1"); I(f"s_add_u32 {sT[0]}, {sT[0]}, {L_XT}")
I(f"v_lshlrev_b32 {vXT}, 6, {vL31}"); I(f"v_lshl_add_u32 {vXT}, {vHH}, 3, {vXT}"); I(f"v_add_u32 {vXT}, {sT[0]}, {vXT}")
I(f"v_add_u32 {vXL}, {sT[0]}, {vL16}")
for g in range(4): I(f"ds_read_b64 {xv[2*g:2*g+2]}, {vXT} offset:{16*g}")
I(f"s_add_u32 {sT[0]}, {sW12}, {L_SX}"); I(f"v_add_u32 {t[0]}, {sT[0]}, {vL16}")
for g in range(4): I(f"ds_read_b128 {sv[4*g:4*g+4]}, {t[0]} offset:{g*1024}")
aw_issue(S, GRP_G)
I(f"v_lshlrev_b32 {vRS}, 16, {vRS}"); I(f"v_rcp_f32 {vRS}, {vRS}")
for e in range(8):
    I(f"v_lshlrev_b32 {xe[2*e]}, 16, {xv[e]}"); I(f"v_and_b32 {xe[2*e+1]}, 0xffff0000, {xv[e]}")
I(f"v_mul_f32 {ft[6]}, {fl(-1.4426950408889634)}, {vRS}"); I(f"v_mul_f32 {ft[4]}, {fl(2.0**-19)}, {vRS}")
aw_check(S, GRP_G, "G_y")
stamp(S)
for g in range(4):
    for k in (1, 2, 3): I(f"ds_read_b128 {slots[k][4*g:4*g+4]}, {vRd[k]} offset:{soff[k] + g*1024}")
for k in range(0, 16, 2): I(f"v_pk_mul_f32 {sv[k:k+2]}, {sv[k:k+2]}, {ft[4:6]} op_sel_hi:[1,0]")
gv = yac[0][0]
for g in range(4):
    for e in range(2):
        k = 4 * g + 2 * e
        I(f"v_pk_add_f32 {gv[k:k+2]}, {gv[k:k+2]}, {slots[1][k:k+2]}"); I(f"v_pk_add_f32 {slots[2][k:k+2]}, {slots[2][k:k+2]}, {slots[3][k:k+2]}")
    for e in range(2):
        k = 4 * g + 2 * e
        I(f"v_pk_add_f32 {gv[k:k+2]}, {gv[k:k+2]}, {slots[2][k:k+2]}")
    for e in range(2):
        k = 4 * g + 2 * e
        I(f"v_pk_mul_f32 {ft[2*e:2*e+2]}, {gv[k:k+2]}, {ft[6:8]} op_sel_hi:[1,0]")
    for e in range(4): I(f"v_exp_f32 {ft[e]}, {ft[e]}")
    for e in range(2):
        k = 4 * g + 2 * e
        I(f"v_pk_mul_f32 {gv[k:k+2]}, {gv[k:k+2]}, {sv[k:k+2]}")
    for e in range(4): I(f"v_add_f32 {ft[e]}, 1.0, {ft[e]}")
    for e in range(4): I(f"v_rcp_f32 {ft[e]}, {ft[e]}")
    for e in range(4): I(f"v_fmac_f32 {xe[4*g+e]}, {gv[4*g+e]}, {ft[e]}")
    for e in range(2): I(f"v_cvt_pk_bf16_f32 {xv[2*g+e]}, {xe[4*g+2*e]}, {xe[4*g+2*e+1]}")
    I(f"ds_write_b64 {vXT}, {xv[2*g:2*g+2]} offset:{16*g}")
for m in range(2): I(f"ds_read_b128 {sv[4*m:4*m+4]}, {vXL} offset:{m*1024}")
for m in range(2): I(f"buffer_store_dwordx4 {sv[4*m:4*m+4]}, {vOA[m]}, {SOUT}, {sOB} offen offset:{m*1024}")
diag_out(S)
S.label("L_end")
I("s_endpgm")

hdr = open("cdna_kernels/%s.s.ref" % NAME).read().split("; Override launch")[0]
out = [hdr.rstrip(), f"; @launch grid=(256,1,1) block=(512,1,1) lds={LDS_TOTAL}",
       '.amdgcn_target "amdgcn-amd-amdhsa--gfx950"']
out += [f".set EP_{k}, {v}" for k, v in EP.items()]
out += [".text", f".globl {NAME}_kernel", ".p2align 8", f".type {NAME}_kernel,@function", f"{NAME}_kernel:"]
out += C.lines + G.lines + H.lines
for f in tail: out += f.lines
out.append("L_code_end:")
out += ['.section .rodata,"a"', ".p2align 6", f".amdhsa_kernel {NAME}_kernel",
        "  .amdhsa_next_free_vgpr 256", "  .amdhsa_next_free_sgpr 102", "  .amdhsa_accum_offset 256",
        "  .amdhsa_group_segment_fixed_size 0", "  .amdhsa_kernarg_size 72", "  .amdhsa_user_sgpr_count 2",
        "  .amdhsa_user_sgpr_kernarg_segment_ptr 1", "  .amdhsa_system_sgpr_workgroup_id_x 1",
        "  .amdhsa_float_denorm_mode_32 3", ".end_amdhsa_kernel"]
print("\n".join(out))
sys.stderr.write("instrs G %d H %d, vgpr hw G %d H %d, stamps G %d H %d\nEP %s\n" % (G.ninstr, H.ninstr, VG.hw, VH.hw, G.nstamp, H.nstamp, EP))
```

```python
import sys, struct, copy
sys.path.insert(0, "dev")
from fw import *

NAME = "recurrent_scan__spectral_gfnet__dense_activation_relu__prompt"
DIAG = "--diag" in sys.argv
OPT = {"rot2": 2, "nb": 8, "asleep": 1, "psleep": 3, "gpre": 40, "hmode": 1, "pf": 1, "xat": 7,
       "pGa": 3, "pG1": 2, "pGe": 3, "pG2": 0, "pH": 1, "pHc": 3, "pH2": 3}
for a in sys.argv[1:]:
    if "=" in a:
        k, v = a.split("="); OPT[k] = int(v)

def f2u(x): return struct.unpack("<I", struct.pack("<f", x))[0]
def fl(x): return "0x%08x" % f2u(x)

WS_F1 = 0x4000; WS_F2 = 0x9000; WS_F3 = 0x10000; WS_ST = 0x18000; WS_XCC = 0x1c000; WS_GF = 0x1d000
WS_DIAG = 0x20000; WS_DUM = 0x40000; WS_WN = 0x50000
WS_X1 = 0x100000; WS_Y1 = 0x600000; WS_H = 0x800000; WS_SIZE = 0x1000000
S4 = 131072
L_XN = S4; L_GA = S4 + 8192; GP = 272
L_XC = S4; L_EX = S4 + 16384; L_SP = S4; L_SX = S4; L_XT = S4 + 16384
L_PROG = S4 + 25600; L_WN = L_PROG + 64; L_CS = S4 + 25856; L_MEAN = S4 + 26880
LDS_TOTAL = 163840

SX, SA, SB, SW2, SOUT, SWS = ("s[%d:%d]" % (b, b + 3) for b in (8, 12, 16, 24, 28, 32))
sXCD, sJ, sW, sTAG, sQ, sCB, sHQ, sSPIN = ("s%d" % i for i in range(36, 44))
sT = ["s%d" % i for i in range(44, 52)]
sB0, sIdx, sBaseA, sBaseB, sU0, sU1, sU2, sU3, sU4 = ("s%d" % i for i in range(52, 61))
sW12, sW13, sS0 = "s61", "s62", "s63"
sR2, sAa, sFB, sTT = "s20", "s21", "s22", "s23"
sF1, sF2, sMODE, sW2b, sW8 = "s4", "s5", "s6", "s7", "s3"

tail = []
EP = {}
class Q:
    def __init__(self): self.l = []
    def I(self, text, **kw): self.l.append((text, kw))
def groups_of(fn):
    cap = Q(); fn(cap); gs = []; grp = []
    for it in cap.l:
        grp.append(it)
        if it[0].startswith("buffer_load"):
            gs.append(grp); grp = []
    gs[-1] += grp
    return gs
def stamp(st, lvl=0):
    if DIAG and lvl <= OPT.get("fine", 1):
        k = st.nstamp; st.nstamp += 1
        assert k < 15
        st.I("%s s[%d:%d]" % ("s_memtime" if OPT.get("cyc") else "s_memrealtime", 100 - 2 * k, 101 - 2 * k), counted=False)
def prio(st, key): st.I("s_setprio %d" % OPT[key])
def srd(st, name, lo, hi, nbytes):
    b = int(name[2:name.index(":")])
    st.I(f"s_mov_b32 s{b}, s{lo}"); st.I(f"s_and_b32 s{b+1}, s{hi}, 0xffff")
    st.I(f"s_mov_b32 s{b+2}, {nbytes}"); st.I(f"s_mov_b32 s{b+3}, 0x20000")
nlab = [0]
def newlab():
    nlab[0] += 1; return nlab[0]
def side(label):
    F = Stream(); tail.append(F); F.label(label); return F

def poll_check(st, loads, reg):
    k = newlab()
    st.atomic += 1
    st.I(f"v_cmp_ne_u32 vcc, {sTAG}, {reg}")
    st.nop(1)
    st.I(f"s_cbranch_vccnz L_slow{k}")
    st.label(f"L_got{k}")
    st.atomic -= 1
    F = side(f"L_slow{k}")
    F.I(f"s_mov_b32 {sSPIN}, 0")
    F.label(f"L_spin{k}")
    F.I("s_mov_b64 exec, vcc")
    F.I("s_sleep %d" % OPT["psleep"])
    for l in loads: F.I(l)
    F.wait_all(vm=True, lg=False, force=True)
    F.I(f"v_cmp_ne_u32 vcc, {sTAG}, {reg}")
    F.I("s_mov_b64 exec, -1")
    F.I(f"s_cbranch_vccz L_got{k}")
    F.I(f"s_add_u32 {sSPIN}, {sSPIN}, 1")
    F.I(f"s_cmp_lt_u32 {sSPIN}, 200000")
    F.I(f"s_cbranch_scc1 L_spin{k}")
    F.I(f"s_branch L_got{k}")
def post(st, name, alias=False):
    if not alias:
        st.epoch += 1
        assert name not in EP
        EP[name] = st.epoch
    st.atomic += 1
    st.I(f"v_mov_b32 {vSY[1]}, EP_{name}")
    st.I("s_mov_b64 exec, 1")
    st.I(f"ds_write_b32 {vPME}, {vSY[1]}")
    st.I("s_mov_b64 exec, -1")
    st.atomic -= 1
def reserve(st, name):
    st.epoch += 1; EP[name] = st.epoch
def aw_issue(st, grp): st.I(f"ds_read_b32 {vSY[0]}, {vPG} offset:{16*grp}")
def aw_check(st, grp, name):
    k = newlab()
    st.atomic += 1
    st.I(f"v_cmp_gt_u32 vcc, EP_{name}, {vSY[0]}")
    st.nop(1)
    st.I(f"s_cbranch_vccnz L_aslow{k}")
    st.label(f"L_agot{k}")
    st.atomic -= 1
    F = side(f"L_aslow{k}")
    F.I(f"s_mov_b32 {sSPIN}, 0")
    F.label(f"L_aspin{k}")
    if OPT["asleep"]: F.I("s_sleep %d" % OPT["asleep"])
    F.I(f"ds_read_b32 {vSY[0]}, {vPG} offset:{16*grp}")
    F.wait_all(vm=False, lg=True, force=True)
    F.I(f"v_cmp_gt_u32 vcc, EP_{name}, {vSY[0]}")
    F.nop(1)
    F.I(f"s_cbranch_vccz L_agot{k}")
    F.I(f"s_add_u32 {sSPIN}, {sSPIN}, 1")
    F.I(f"s_cmp_lt_u32 {sSPIN}, 0x400000")
    F.I(f"s_cbranch_scc1 L_aspin{k}")
    F.I(f"s_branch L_agot{k}")
def await_(st, grp, name):
    aw_issue(st, grp); aw_check(st, grp, name)
GRP_G, GRP_H = 0, 1
def flag(st, soff, counted=True):
    st.atomic += 1
    st.I("s_mov_b64 exec, 1")
    st.I(f"buffer_store_dword {vTAG}, {vZ}, {SWS}, {soff} offen sc1", counted=counted)
    st.I("s_mov_b64 exec, -1")
    st.atomic -= 1
def flag_mode(st, soff):
    k = newlab()
    st.atomic += 1
    st.I("s_mov_b64 exec, 1")
    st.I(f"s_cmp_lg_u32 {sMODE}, 0"); st.I(f"s_cbranch_scc1 L_fm{k}")
    st.I(f"buffer_store_dword {vTAG}, {vZ}, {SWS}, {soff} offen")
    st.label(f"L_fmd{k}")
    st.I("s_mov_b64 exec, -1")
    st.atomic -= 1
    F = side(f"L_fm{k}")
    F.I(f"buffer_store_dword {vTAG}, {vZ}, {SWS}, {soff} offen sc1"); F.I(f"s_branch L_fmd{k}")
def cmul_tw(st, re, im, c, s, t0, out):
    st.I(f"v_mul_f32 {t0[0]}, {re}, {c}")
    st.I(f"v_mul_f32 {t0[1]}, {im}, {c}")
    st.I(f"v_fmac_f32 {t0[0]}, {im}, {s}")
    st.I(f"v_fma_f32 {t0[1]}, -{re}, {s}, {t0[1]}")
    st.I(f"v_cvt_pk_bf16_f32 {out}, {t0[0]}, {t0[1]}")
def make_tag(st):
    st.I(f"v_readfirstlane_b32 {sT[4]}, {vE}")
    st.I(f"s_mul_i32 {sTAG}, {sT[4]}, 0x9E3779B1"); st.I(f"s_add_u32 {sTAG}, {sTAG}, 0x7F4A7C15")
    st.I(f"v_mov_b32 {vTAG}, {sTAG}")
def part_idx(st, dst, p, tmp):
    if p == 0: st.I(f"s_mov_b32 {dst}, {sR2}"); return
    st.I(f"s_add_u32 {dst}, {sR2}, {p}"); st.I(f"s_sub_u32 {tmp}, {dst}, 7"); st.I(f"s_cmp_ge_u32 {dst}, 7"); st.I(f"s_cselect_b32 {dst}, {tmp}, {dst}")
W2SLOT = [0, 1, 2, 3, 1, 0, 1]
def w2_dma(st, p):
    for g in range(2):
        if g == 0:
            part_idx(st, sB0, p, "m0")
            st.I(f"s_lshl_b32 {sB0}, {sB0}, 16"); st.I(f"s_add_u32 {sB0}, {sB0}, {sW2b}")
        else:
            st.I(f"s_add_u32 {sB0}, {sB0}, 32768")
        st.I(f"s_add_u32 m0, {sW13}, {W2SLOT[p] * 32768 + g * 4096}")
        for m in range(4):
            st.I(f"buffer_load_dwordx4 {vW2D[m]}, {SW2}, {sB0} offen offset:{m*1024} lds", tag=f"w2p{p}")
def misc_lane(c, t):
    c(f"v_and_b32 {t[0]}, 1, {vH}"); c(f"v_lshlrev_b32 {t[1]}, 5, {t[0]}"); c(f"v_lshl_add_u32 {vTRL}, {vL3}, 3, {t[1]}")
    c(f"v_lshrrev_b32 {t[1]}, 3, {vL31}"); c(f"v_lshlrev_b32 {t[1]}, 5, {t[1]}")
    c(f"v_bfe_u32 {t[2]}, {vL}, 2, 1"); c(f"v_lshl_add_u32 {t[1]}, {t[2]}, 4, {t[1]}"); c(f"v_add_u32 {vRowOff}, {t[1]}, {vL3}")
    c(f"v_lshlrev_b32 {t[1]}, 2, {t[0]}"); c(f"v_and_b32 {t[2]}, 7, {vL}"); c(f"v_xor_b32 {t[1]}, {t[1]}, {t[2]}")
    c(f"v_lshlrev_b32 {vD8}, 4, {t[1]}"); c(f"v_lshrrev_b32 {t[2]}, 3, {vL}")
    c(f"v_lshl_add_u32 {vW2D[0]}, {t[2]}, 10, {vD8}")
    for m in range(1, 4): c(f"v_add_u32 {vW2D[m]}, {m*(8192-1024)}, {vW2D[0]}")
    c(f"v_lshl_add_u32 {t[1]}, {vHH}, 2, {vRp}"); c(f"v_lshl_add_u32 {t[1]}, {t[1]}, 7, {vTRL}")
    c(f"v_lshrrev_b32 {t[2]}, 1, {vRp}"); c(f"v_lshl_add_u32 {vTRa}, {t[2]}, 6, {t[1]}")
    c(f"s_mul_i32 {sW2b}, {sW}, {448*1024}"); c(f"s_lshl_b32 {sR2}, {sCB}, 7"); c(f"s_add_u32 {sW2b}, {sW2b}, {sR2}")
    if OPT["rot2"] == 3: c(f"s_add_u32 {sR2}, {sXCD}, {sCB}")
    elif OPT["rot2"] == 2: c(f"s_mov_b32 {sR2}, {sXCD}")
    else: c(f"s_mov_b32 {sR2}, 0")
    c(f"s_mul_i32 {sTT}, {sR2}, 37"); c(f"s_lshr_b32 {sTT}, {sTT}, 8"); c(f"s_mul_i32 {sTT}, {sTT}, 7"); c(f"s_sub_u32 {sR2}, {sR2}, {sTT}")
def h_base(c, dst, tmp):
    c(f"s_lshl_b32 {tmp}, {sAa}, 1"); c(f"s_and_b32 {sTT}, {sW}, 1"); c(f"s_add_u32 {tmp}, {tmp}, {sTT}")
    c(f"s_lshl_b32 {sTT}, {sXCD}, 2"); c(f"s_add_u32 {sTT}, {sTT}, {tmp}")
    c(f"s_mul_i32 {dst}, {sTT}, 229376"); c(f"s_lshl_b32 {tmp}, {sFB}, 14"); c(f"s_add_u32 {dst}, {dst}, {tmp}")
    c(f"s_lshr_b32 {tmp}, {sW}, 1"); c(f"s_lshl_b32 {tmp}, {tmp}, 13"); c(f"s_add_u32 {dst}, {dst}, {tmp}"); c(f"s_add_u32 {dst}, {dst}, {WS_H}")
def f32_consts(c, F, fq, fh4, tt, cs):
    c(f"v_mul_f32 {tt[0]}, {fl(1/32)}, {fq}"); c(f"v_mul_f32 {tt[1]}, {tt[0]}, {fh4}")
    c(f"v_and_b32 {tt[2]}, 1, {vL}"); c(f"v_mul_u32_u24 {tt[2]}, 0x8000, {tt[2]}"); c(f"v_lshl_or_b32 {tt[2]}, {tt[2]}, 16, {tt[2]}")
    for r in range(4):
        c(f"v_cos_f32 {cs[0]}, {tt[1]}"); c(f"v_sin_f32 {cs[1]}, {tt[1]}")
        if r < 3: c(f"v_add_f32 {tt[1]}, {tt[1]}, {tt[0]}")
        c(f"v_cvt_pk_bf16_f32 {F[0][0][r]}, {cs[0]}, {cs[1]}")
        c(f"v_cvt_pk_bf16_f32 {F[0][1][r]}, -{cs[1]}, {cs[0]}")
        for p in range(2): c(f"v_xor_b32 {F[1][p][r]}, {tt[2]}, {F[0][p][r]}")
sAD, sKH, sOB = sU2, sU3, sBaseA
def out_addr(c, vOA, tmp):
    c(f"s_and_b32 {sAD}, {sW}, 1"); c(f"s_lshr_b32 {sKH}, {sW}, 1")
    c(f"v_lshlrev_b32 {tmp[0]}, 5, {vHH}"); c(f"v_and_b32 {tmp[1]}, 1, {vH}"); c(f"v_lshl_add_u32 {tmp[0]}, {tmp[1]}, 4, {tmp[0]}"); c(f"v_add_u32 {tmp[0]}, {tmp[0]}, {vRp}")
    c(f"v_lshlrev_b32 {tmp[1]}, 4, {vL3}"); c(f"v_lshl_add_u32 {vOA[0]}, {tmp[0]}, 10, {tmp[1]}")
    c(f"v_add_u32 {vOA[1]}, {65536-1024}, {vOA[0]}")
    c(f"s_lshl_b32 {sOB}, {sXCD}, 8"); c(f"s_lshl_b32 {sT[0]}, {sKH}, 7"); c(f"s_add_u32 {sOB}, {sOB}, {sT[0]}"); c(f"s_lshl_b32 {sT[0]}, {sHQ}, 2"); c(f"s_add_u32 {sOB}, {sOB}, {sT[0]}")
    c(f"s_lshl_b32 {sT[3]}, {sOB}, 3"); c(f"s_add_u32 {sT[3]}, {sT[3]}, {WS_ST}")
    c(f"s_lshl_b32 {sOB}, {sOB}, 10"); c(f"s_lshl_b32 {sT[0]}, {sCB}, 7"); c(f"s_add_u32 {sOB}, {sOB}, {sT[0]}"); c(f"s_lshl_b32 {sT[0]}, {sAD}, 6"); c(f"s_add_u32 {sOB}, {sOB}, {sT[0]}")
def diag_out(st):
    if not DIAG: return
    st.wait_all(force=True)
    stamp(st)
    st.wait_all(force=True)
    st.I(f"s_lshl_b32 {sT[0]}, s2, 3"); st.I(f"s_add_u32 {sT[0]}, {sT[0]}, {sW8}"); st.I(f"s_lshl_b32 {sT[0]}, {sT[0]}, 6"); st.I(f"s_add_u32 {sT[0]}, {sT[0]}, {WS_DIAG}")
    st.I("s_mov_b64 exec, 1")
    for k in range(st.nstamp):
        st.I(f"v_mov_b32 {t[0]}, s{100-2*k}")
        st.I(f"buffer_store_dword {t[0]}, {vZ}, {SWS}, {sT[0]} offen offset:{4*k}")

C = Stream(); C.nstamp = 0
V = Pool("v", 1, 255)
I = C.I
I("s_cmp_ge_u32 s2, 256")
I("s_cbranch_scc1 L_end")
stamp(C)
I("s_load_dwordx16 s[64:79], s[0:1], 0")
I("s_load_dwordx2 s[80:81], s[0:1], 64")
vL = V.alloc(); vSY = V.alloc(2); t = V.alloc(8); vW2D = V.alloc(4)
vL15 = V.alloc(); vH = V.alloc(); vL16 = V.alloc(); vZ = V.alloc(); vTAG = V.alloc()
vHH = V.alloc(); vL31 = V.alloc(); vRp = V.alloc(); vTRL = V.alloc(); vRowOff = V.alloc(); vL3 = V.alloc()
vPG = V.alloc(); vPME = V.alloc(); vE = V.alloc(); vD8 = V.alloc(); vTRa = V.alloc()
I(f"v_lshrrev_b32 {t[0]}, 6, v0"); I(f"v_and_b32 {vL3}, 3, v0")
I(f"v_and_b32 {vL}, 63, v0")
I(f"v_readfirstlane_b32 {sW8}, {t[0]}")
I(f"v_mov_b32 {vZ}, 0")
I(f"v_lshlrev_b32 {vL16}, 4, {vL}")
I(f"v_lshlrev_b32 {vPME}, 2, {t[0]}"); I(f"v_add_u32 {vPME}, {L_PROG}, {vPME}")
I(f"ds_write_b32 {vPME}, {vZ}")
I(f"s_lshr_b32 {sJ}, s2, 3"); I(f"s_and_b32 {sXCD}, s2, 7")
I("s_getpc_b64 s[4:5]")
C.label("L_pc")
I("s_and_b32 s5, s5, 0xffff")
I("s_mov_b32 s6, L_code_end-L_pc"); I("s_mov_b32 s7, 0x20000")
I(f"s_lshl_b32 {sT[0]}, {sJ}, 11"); I(f"s_lshl_b32 {sT[1]}, {sW8}, 8"); I(f"s_add_u32 {sT[0]}, {sT[0]}, {sT[1]}")
I(f"v_lshlrev_b32 {t[1]}, 7, {vL}")
I("s_mov_b64 exec, 3")
I(f"buffer_load_dword v255, {t[1]}, s[4:7], {sT[0]} offen", nodef=True)
I("s_mov_b64 exec, -1")
I(f"s_and_b32 {sW}, {sW8}, 3")
I(f"s_lshr_b32 {sCB}, {sJ}, 2"); I(f"s_and_b32 {sHQ}, {sJ}, 3")
I(f"s_lshl_b32 {sW12}, {sW}, 12"); I(f"s_lshl_b32 {sW13}, {sW}, 13")
I(f"s_and_b32 {sAa}, {sJ}, 1"); I(f"s_lshr_b32 {sFB}, {sJ}, 1")
I(f"v_and_b32 {vL15}, 15, v0")
I(f"v_lshrrev_b32 {vH}, 4, {vL}")
I(f"v_lshrrev_b32 {vHH}, 5, {vL}"); I(f"v_and_b32 {vL31}, 31, {vL}"); I(f"v_bfe_u32 {vRp}, {vL}, 2, 2")
I(f"v_lshlrev_b32 {vPG}, 2, {vL3}"); I(f"v_add_u32 {vPG}, {L_PROG}, {vPG}")
I(f"s_cmp_lt_u32 {sW8}, 4")
I("s_cbranch_scc1 L_G")
VG = copy.deepcopy(V); VH = copy.deepcopy(V)
G = C.fork(); G.nstamp = C.nstamp; G.epoch = 0
H = C.fork(); H.nstamp = C.nstamp; H.epoch = 0

S = H; V = VH; I = H.I
prio(S, "pH")
vXD = V.alloc(4); vW1D = V.alloc(4)
I(f"v_lshlrev_b32 {t[0]}, 14, {vHH}")
I(f"v_bfe_u32 {t[1]}, {vL}, 3, 2"); I(f"v_lshl_add_u32 {t[0]}, {t[1]}, 10, {t[0]}")
I(f"v_and_b32 {t[3]}, 7, {vL}"); I(f"v_xor_b32 {t[1]}, {t[3]}, {vH}")
I(f"v_lshl_add_u32 {vXD[0]}, {t[1]}, 4, {t[0]}")
I(f"v_xor_b32 {t[2]}, 64, {vXD[0]}")
I(f"v_add_u32 {vXD[1]}, {31744}, {t[2]}"); I(f"v_add_u32 {vXD[2]}, {2*31744}, {vXD[0]}"); I(f"v_add_u32 {vXD[3]}, {3*31744}, {t[2]}")
I(f"v_mul_u32_u24 {t[0]}, 3584, {vH}")
I(f"v_xor_b32 {t[1]}, {vRp}, {vH}")
I(f"v_lshl_add_u32 {t[0]}, {t[1]}, 6, {t[0]}")
I(f"v_lshl_add_u32 {vW1D[0]}, {vL3}, 4, {t[0]}")
for m in range(1, 4): I(f"v_add_u32 {vW1D[m]}, {m*(4*3584-1024)}, {vW1D[0]}")
I(f"s_lshl_b32 {sBaseA}, {sXCD}, 8"); I(f"s_and_b32 {sT[0]}, {sW}, 1"); I(f"s_lshl_b32 {sT[0]}, {sT[0]}, 7"); I(f"s_add_u32 {sBaseA}, {sBaseA}, {sT[0]}")
I(f"s_lshl_b32 {sT[0]}, {sAa}, 3"); I(f"s_add_u32 {sBaseA}, {sBaseA}, {sT[0]}")
I(f"s_lshr_b32 {sT[0]}, {sW}, 1"); I(f"s_lshl_b32 {sT[0]}, {sT[0]}, 2"); I(f"s_add_u32 {sBaseA}, {sBaseA}, {sT[0]}")
I(f"s_lshl_b32 {sBaseA}, {sBaseA}, 10")
I(f"s_mul_i32 {sBaseB}, {sW}, {16*3584}"); I(f"s_lshl_b32 {sT[0]}, {sFB}, 8"); I(f"s_add_u32 {sBaseB}, {sBaseB}, {sT[0]}")
I(f"s_mov_b32 {sIdx}, {sXCD}")
I(f"s_lshr_b32 {sT[0]}, {sXCD}, 1"); I(f"s_lshl_b32 {sT[0]}, {sT[0]}, 4"); I(f"s_and_b32 {sT[1]}, {sJ}, 15"); I(f"s_add_u32 {sT[0]}, {sT[0]}, {sT[1]}")
I(f"s_and_b32 {sT[1]}, {sXCD}, 1"); I(f"s_lshl_b32 {sT[1]}, {sT[1]}, 1"); I(f"s_lshr_b32 {sT[2]}, {sJ}, 4"); I(f"s_add_u32 {sT[1]}, {sT[1]}, {sT[2]}")
I(f"s_lshl_b32 {sT[1]}, {sT[1]}, 9"); I(f"s_add_u32 {sT[0]}, {sT[0]}, {sT[1]}"); I(f"s_lshl_b32 {sT[1]}, {sW}, 7"); I(f"s_add_u32 {sT[0]}, {sT[0]}, {sT[1]}")
I(f"s_mul_i32 {sT[6]}, {sT[0]}, 514"); I(f"s_add_u32 {sT[7]}, {sT[6]}, {64*514}")
wq = V.alloc(8); wn = V.alloc(2); wo = V.alloc(8); vL8 = V.alloc(); vWN = V.alloc(); vWG = V.alloc(); vPs = V.alloc(2)
I(f"v_lshlrev_b32 {vL8}, 3, {vL}")
I(f"v_and_b32 {t[0]}, 1, {vL}"); I(f"v_mul_u32_u24 {vWN}, {64*514}, {t[0]}")
S.wait_all(vm=False, force=True)
stamp(S)
srd(S, SA, 64, 65, 2048 * 1024); srd(S, SB, 72, 73, 512 * 3584)
I(f"s_cmp_lt_u32 {sJ}, 28"); I("s_cselect_b32 s14, s14, 0"); I("s_cselect_b32 s18, s18, 0")
srd(S, SX, 66, 67, 2048 * 514); srd(S, SOUT, 68, 69, 2048 * 514)
srd(S, SWS, 80, 81, WS_SIZE)
I("s_barrier")
def g1_dma(st, c, between=None):
    for which, (vD, sr, base, cm) in enumerate(((vW1D, SB, sBaseB, 64 * 3584), (vXD, SA, sBaseA, 128))):
        st.I(f"s_mul_i32 {sB0}, {sIdx}, {cm}"); st.I(f"s_add_u32 {sB0}, {sB0}, {base}")
        st.I(f"s_add_u32 m0, {sW12}, {(c & 3) * 32768 + (1 - which) * 16384}")
        for m in range(4):
            st.I(f"buffer_load_dwordx4 {vD[m]}, {sr}, {sB0} offen offset:{m*1024} lds", tag=f"g1c{c}")
            if between: between()
    st.I(f"s_add_u32 {sIdx}, {sIdx}, 1"); st.I(f"s_and_b32 {sIdx}, {sIdx}, 7")
I(f"buffer_load_dword {vE}, {vZ}, {SWS}, 0 offen sc1")
def w_loads():
    for rho in range(2):
        I(f"buffer_load_dwordx2 {wq[4*rho:4*rho+2]}, {vL8}, {SX}, {sT[6+rho]} offen")
        I(f"buffer_load_dwordx2 {wq[4*rho+2:4*rho+4]}, {vL8}, {SOUT}, {sT[6+rho]} offen")
    I("s_mov_b64 exec, 3")
    I(f"buffer_load_ushort {wn[0]}, {vWN}, {SX}, {sT[6]} offen offset:512")
    I(f"buffer_load_ushort {wn[1]}, {vWN}, {SOUT}, {sT[6]} offen offset:512")
    I("s_mov_b64 exec, -1")
if OPT.get("wfirst", 0): w_loads()
g1_dma(S, 0)
if not OPT.get("wfirst", 0): w_loads()
g1_dma(S, 1)
Hstart_end = len(S.lines)
srd(S, SX, 64, 65, 2048 * 1024); srd(S, SW2, 74, 75, 1792 * 1024)
fq = V.alloc(); fh4 = V.alloc()
F32 = [[[V.alloc(4) for p in range(2)] for tt in range(2)] for tau in range(2)]
F64 = [[V.alloc(4) for p in range(2)] for u in range(4)]
TFc = V.alloc(8); TFs = V.alloc(8); TIc = V.alloc(8); TIs = V.alloc(8)
ft = V.alloc(8); vXCa = V.alloc(4); mm = V.alloc(4)
vXCr = V.alloc(); vKs = V.alloc(); vWr = V.alloc(); vST = V.alloc(); vMW = V.alloc(); vPXC = V.alloc(); vPF = V.alloc(); pf1 = V.alloc()
sXC0, sPFb, sGF, sHP = sU0, sU1, sU4, sU3
q = Q(); c = q.I
c(f"v_lshrrev_b32 {ft[0]}, 2, {vL}"); c(f"v_lshl_add_u32 {ft[0]}, {vL3}, 4, {ft[0]}"); c(f"v_mul_u32_u24 {ft[0]}, {GP}, {ft[0]}")
c(f"s_lshl_b32 {sT[1]}, {sW}, 3"); c(f"s_add_u32 {sT[1]}, {sT[1]}, {L_GA + 32}"); c(f"v_add_u32 {vWG}, {sT[1]}, {ft[0]}")
c(f"v_mov_b32 {vPs[0]}, 0x05040100"); c(f"v_mov_b32 {vPs[1]}, 0x07060302")
misc_lane(c, ft)
c(f"s_add_u32 {sQ}, {sJ}, 4"); c(f"s_and_b32 {sQ}, {sQ}, 31")
c(f"s_lshl_b32 {sT[0]}, {sXCD}, 5"); c(f"s_add_u32 {sQ}, {sQ}, {sT[0]}")
c(f"s_lshr_b32 {sPFb}, {sJ}, 3"); c(f"s_mul_i32 {sPFb}, {sPFb}, {448*1024}"); c(f"s_and_b32 {sT[0]}, {sJ}, 7"); c(f"s_lshl_b32 {sT[0]}, {sT[0]}, 13")
c(f"s_add_u32 {sPFb}, {sPFb}, {sT[0]}"); c(f"s_lshr_b32 {sT[0]}, {sW12}, 1"); c(f"s_add_u32 {sPFb}, {sPFb}, {sT[0]}")
c(f"v_lshlrev_b32 {vPF}, 7, {vL}")
h_base(c, sHP, sT[0])
c(f"s_lshl_b32 {sGF}, {sXCD}, 8"); c(f"s_add_u32 {sGF}, {sGF}, {WS_GF}")
n_addr1 = len(q.l)
fk, a0, fw16 = ft[5], ft[6], ft[7]
c(f"v_lshrrev_b32 {ft[0]}, 2, {vL}"); c(f"v_xor_b32 {ft[1]}, {vH}, {vL3}")
c(f"v_lshlrev_b32 {ft[0]}, 7, {ft[0]}"); c(f"v_lshl_add_u32 {vXCa[0]}, {ft[1]}, 4, {ft[0]}")
for m in range(1, 4): c(f"v_add_u32 {vXCa[m]}, {m*1024}, {vXCa[0]}")
c(f"s_lshr_b32 {sXC0}, {sQ}, 1"); c(f"s_lshl_b32 {sXC0}, {sXC0}, 15"); c(f"s_and_b32 {sT[0]}, {sQ}, 1"); c(f"s_lshl_b32 {sT[0]}, {sT[0]}, 6")
c(f"s_add_u32 {sXC0}, {sXC0}, {sT[0]}"); c(f"s_add_u32 {sXC0}, {sXC0}, {sW13}"); c(f"s_add_u32 {sXC0}, {sXC0}, {WS_X1}")
c(f"v_and_b32 {ft[1]}, 1, {vH}"); c(f"v_xor_b32 {ft[0]}, {vRp}, {ft[1]}")
c(f"v_lshlrev_b32 {ft[1]}, 6, {vL15}"); c(f"v_lshl_add_u32 {ft[1]}, {ft[0]}, 4, {ft[1]}"); c(f"v_add_u32 {ft[1]}, {L_XC}, {ft[1]}")
c(f"v_lshl_add_u32 {vXCr}, {vHH}, 11, {ft[1]}")
c(f"v_xor_b32 {ft[1]}, 32, {ft[1]}"); c(f"v_lshl_add_u32 {ft[1]}, {vHH}, 10, {ft[1]}"); c(f"v_add_u32 {vWr}, {sW12}, {ft[1]}")
c(f"s_lshl_b32 {sT[0]}, {sW}, 4")
c(f"v_lshl_add_u32 {vKs}, {vH}, 8, {vL15}"); c(f"v_add_u32 {vKs}, {sT[0]}, {vKs}")
c(f"v_cvt_f32_u32 {fw16}, {sT[0]}")
c(f"s_and_b32 {sT[0]}, {sTT}, 3"); c(f"s_lshl_b32 {sT[0]}, {sT[0]}, 2"); c(f"s_lshl_b32 {sT[1]}, {sXCD}, 8"); c(f"s_add_u32 {sT[0]}, {sT[0]}, {sT[1]}")
c(f"s_lshl_b32 {sT[0]}, {sT[0]}, 3"); c(f"s_add_u32 {sT[0]}, {sT[0]}, {WS_ST}")
c(f"v_lshlrev_b32 {ft[0]}, 3, {vRowOff}"); c(f"v_lshl_add_u32 {ft[0]}, {vHH}, 10, {ft[0]}"); c(f"v_add_u32 {vST}, {sT[0]}, {ft[0]}")
c(f"s_lshl_b32 {sT[0]}, {sW}, 8"); c(f"s_add_u32 {sT[0]}, {sT[0]}, {L_MEAN}"); c(f"v_lshl_add_u32 {vMW}, {vL}, 2, {sT[0]}")
c(f"s_lshl_b32 {sT[0]}, {sXCD}, 9"); c(f"s_add_u32 {sT[0]}, {sT[0]}, {WS_XCC}"); c(f"v_lshl_add_u32 {vPXC}, {vL31}, 4, {sT[0]}")
c(f"v_cvt_f32_u32 {fq}, {vL15}"); c(f"v_lshlrev_b32 {ft[0]}, 2, {vH}"); c(f"v_cvt_f32_u32 {fh4}, {ft[0]}")
f32_consts(c, F32[0], fq, fh4, ft[0:3], ft[3:5])
for tt in range(2):
    for p in range(2):
        for r in range(4):
            if r % 2 == 0: c(f"v_mov_b32 {F32[1][tt][p][r]}, {F32[0][tt][p][r]}")
            else: c(f"v_xor_b32 {F32[1][tt][p][r]}, 0x80008000, {F32[0][tt][p][r]}")
c(f"v_add_f32 {fk}, {fw16}, {fq}"); c(f"v_mul_f32 {fk}, {fl(1/64)}, {fk}")
c(f"v_mul_f32 {a0}, {fk}, {fh4}")
for u in range(4):
    for r in range(4):
        c(f"v_fmamk_f32 {ft[0]}, {fk}, {fl(16*u+r)}, {a0}")
        c(f"v_cos_f32 {ft[1]}, {ft[0]}"); c(f"v_sin_f32 {ft[2]}, {ft[0]}")
        c(f"v_mul_f32 {ft[3]}, {fl(1/32)}, {ft[0]}")
        c(f"v_cvt_pk_bf16_f32 {F64[u][0][r]}, {ft[1]}, {ft[2]}")
        c(f"v_cvt_pk_bf16_f32 {F64[u][1][r]}, -{ft[2]}, {ft[1]}")
        if u < 2:
            c(f"v_cos_f32 {TFc[4*u+r]}, {ft[3]}"); c(f"v_sin_f32 {TFs[4*u+r]}, {ft[3]}")
c(f"v_add_f32 {ft[4]}, {fw16}, {fh4}")
for tt in range(2):
    c(f"v_add_f32 {ft[5]}, {fl(16.0*tt)}, {fq}"); c(f"v_mul_f32 {ft[5]}, {fl(1/2048)}, {ft[5]}")
    c(f"v_mul_f32 {ft[6]}, {ft[5]}, {ft[4]}")
    for r in range(4):
        c(f"v_fmamk_f32 {ft[0]}, {ft[5]}, {fl(r)}, {ft[6]}")
        c(f"v_cos_f32 {TIc[4*tt+r]}, {ft[0]}"); c(f"v_sin_f32 {TIs[4*tt+r]}, {ft[0]}")
S.fq = q.l
S.fill(8)
stamp(S, 2)
fb = lambda: S.fill(OPT.get("hf", 5))
make_tag(S)
for rho in range(2):
    for cc in range(4):
        I(f"v_perm_b32 {wo[2*cc+rho]}, {wq[4*rho+2+(cc>>1)]}, {wq[4*rho+(cc>>1)]}, {vPs[cc&1]}")
for cc in range(4): I(f"ds_write_b64 {vWG}, {wo[2*cc:2*cc+2]} offset:{64*cc}")
I(f"v_lshl_or_b32 {wn[0]}, {wn[1]}, 16, {wn[0]}")
I(f"s_lshl_b32 {sT[3]}, {sW}, 3"); I(f"s_add_u32 {sT[3]}, {sT[3]}, {L_WN}"); I(f"v_lshl_add_u32 {t[1]}, {vL}, 2, {sT[3]}")
I("s_mov_b64 exec, 3")
I(f"ds_write_b32 {t[1]}, {wn[0]}")
I("s_mov_b64 exec, -1")
V.release(wq, wn, wo, vL8, vWN, vWG, vPs)
stamp(S, 2)
S.wait_tag("g1c0")
post(S, "H_c0")
stamp(S, 2)
g1_dma(S, 2, fb)
S.wait_tag("g1c1"); post(S, "H_c1")
g1_dma(S, 3, fb)
stamp(S)
npf = [0]
def pf(n):
    for _ in range(n):
        if OPT["pf"] and npf[0] < 7:
            I(f"s_add_u32 {sS0}, {sXCD}, {npf[0]}"); I(f"s_sub_u32 {sB0}, {sS0}, 7"); I(f"s_cmp_ge_u32 {sS0}, 7"); I(f"s_cselect_b32 {sS0}, {sB0}, {sS0}")
            I(f"s_lshl_b32 {sS0}, {sS0}, 16"); I(f"s_add_u32 {sS0}, {sS0}, {sPFb}")
            I("s_mov_b64 exec, 0xffff")
            I(f"buffer_load_dword v255, {vPF}, {SW2}, {sS0} offen", nodef=True)
            I("s_mov_b64 exec, -1")
            npf[0] += 1
S.wait_tag("g1c2"); post(S, "H_c2")
S.fill(max(0, n_addr1 - 8 - 16 * OPT.get("hf", 5)))
pf(OPT.get("pfa", 0))
if OPT.get("pt"):
    I(f"s_lshl_b32 {sS0}, s2, 2"); I(f"s_add_u32 {sS0}, {sS0}, {sW}"); I(f"s_mul_i32 {sS0}, {sS0}, {14*128}")
    I("s_mov_b64 exec, 0x3fff")
    I(f"buffer_load_dword v255, {vPF}, {SW2}, {sS0} offen", nodef=True)
    I("s_mov_b64 exec, -1")
stamp(S)
LD_L1 = f"buffer_load_dword {pf1}, {vZ}, {SWS}, {sGF} offen sc1"
LD_ST = f"buffer_load_dwordx2 {mm[0:2]}, {vST}, {SWS}, 0 offen sc1"
LD_XC = f"buffer_load_dword {mm[2]}, {vPXC}, {SWS}, 0 offen sc1"
def chunk(cc):
    await_(S, GRP_G, f"G_rel{cc-4}")
    g1_dma(S, cc, fb)
    pf(OPT.get("pfb", 2))
    if cc == 4 and OPT["hmode"] == 2: I(f"buffer_load_dword v255, {vPF}, {SWS}, {sHP} offen", nodef=True)
    S.wait_tag(f"g1c{cc-1}"); post(S, f"H_c{cc-1}")
chunk(4)
I(LD_ST); I(LD_XC)
chunk(5)
poll_check(S, [LD_ST], mm[1])
I(f"v_and_b32 {mm[0]}, 0xffff0000, {mm[0]}")
I(f"ds_write_b32 {vMW}, {mm[0]}")
k = newlab()
I(f"s_getreg_b32 {sT[3]}, hwreg(HW_REG_XCC_ID, 0, 4)")
I(f"s_mov_b32 {sSPIN}, 0")
I(f"v_mov_b32 {mm[3]}, {mm[2]}")
S.label(f"L_xc{k}")
I(f"v_subrev_u32 {mm[3]}, {sTAG}, {mm[2]}")
I(f"v_cmp_lt_u32 vcc, 15, {mm[3]}")
S.nop(1)
I(f"s_cbranch_vccnz L_xcslow{k}")
S.label(f"L_xcgo{k}")
Fx = side(f"L_xcslow{k}")
Fx.I("s_sleep 8"); Fx.I(LD_XC); Fx.wait_all(force=True)
Fx.I(f"s_add_u32 {sSPIN}, {sSPIN}, 1"); Fx.I(f"s_cmp_lt_u32 {sSPIN}, 100000"); Fx.I(f"s_cbranch_scc1 L_xc{k}"); Fx.I(f"s_branch L_xcgo{k}")
I(f"v_cmp_ne_u32 vcc, {sT[3]}, {mm[3]}")
S.nop(1)
I(f"s_cmp_lg_u64 vcc, 0"); I(f"s_cselect_b32 {sMODE}, 1, {OPT.get('forceslow', 0)}")
I(f"v_mov_b32 {mm[3]}, {sMODE}")
I(f"ds_write_b32 {vMW}, {mm[3]} offset:1024")
XAT = OPT["xat"]
if XAT == 7: chunk(6)
I(LD_L1)
chunk(XAT)
if XAT == 7: S.wait_tag("g1c7"); post(S, "H_c7")
stamp(S)
poll_check(S, [LD_L1], pf1)
I(f"s_cmp_lg_u32 {sQ}, 0"); I("s_cbranch_scc1 L_nown2")
I(f"s_lshr_b32 {sB0}, {sW12}, 1"); I(f"s_add_u32 m0, {sB0}, {L_EX}"); I(f"s_add_u32 {sB0}, {sB0}, {WS_WN}")
for m in range(2): I(f"buffer_load_dwordx4 {vL16}, {SWS}, {sB0} offen offset:{m*1024} sc1 lds", counted=False)
S.label("L_nown2")
I(f"s_add_u32 m0, {sW12}, {L_XC}")
for m in range(4): I(f"buffer_load_dwordx4 {vXCa[m]}, {SWS}, {sXC0} offen offset:{m*1024} sc1 lds", tag="xc")
stamp(S)
if XAT == 6: chunk(7)
S.fill_flush()
pf(7)
def h_w2(p):
    await_(S, GRP_G, f"G_rel{4+p}")
    w2_dma(S, p)
NWH = OPT.get("nwh", 1)
for p in range(NWH): h_w2(p)
S.wait_tag("xc")
post(S, "H_xc")
stamp(S)
V.release(vXD, vW1D, vXCa, mm, vST, vMW, vPXC, vPF)
FR = [[V.alloc(4) for u in range(4)] for tt in range(2)]
DD = [[V.alloc(4) for p in range(2)] for tt in range(2)]
PP = [V.alloc(4) for tt in range(2)]
Wv = V.alloc(8); vLX = V.alloc()
I(f"v_add_u32 {vLX}, {S4}, {vL16}")
await_(S, GRP_H, "H_xc")
prio(S, "pHc")
def big_step(base, mid=None):
    for u in range(4):
        for tt in range(2):
            if base == L_XC: I(f"ds_read_b128 {FR[tt][u]}, {vXCr} offset:{u*4096 + tt*1024}")
            else: I(f"ds_read_b128 {FR[tt][u]}, {vLX} offset:{base - S4 + (tt*4+u)*1024}")
    if mid: mid()
    for u in range(4):
        for tt in range(2):
            for p in range(2):
                I(f"v_mfma_f32_16x16x32_bf16 {DD[tt][p]}, {FR[tt][u]}, {F64[u][p]}, {'0' if u == 0 else DD[tt][p]}")
def mid1():
    I(f"s_or_b32 {sT[0]}, s2, {sW}"); I(f"s_cmp_lg_u32 {sT[0]}, 0"); I("s_cbranch_scc1 L_noepoch")
    flag(S, "0", counted=False)
    S.label("L_noepoch")
    for tau in range(2): I(f"ds_read_b128 {Wv[4*tau:4*tau+4]}, {vWr} offset:{tau*2048}")
big_step(L_XC, mid1)
if XAT == 6: S.wait_tag("g1c7"); post(S, "H_c7")
for tt in range(2):
    for r in range(4): cmul_tw(S, DD[tt][0][r], DD[tt][1][r], TFc[4*tt+r], TFs[4*tt+r], t[2*(r&1):2*(r&1)+2], PP[tt][r])
for tau in range(2):
    for p in range(2):
        for tt in range(2):
            I(f"v_mfma_f32_16x16x32_bf16 {DD[tau][p]}, {F32[tau][tt][p]}, {PP[tt]}, {'0' if tt == 0 else DD[tau][p]}")
stamp(S, 1)
reserve(S, "H_fr"); reserve(S, "H_sp1")
I(f"s_cmp_eq_u32 {sQ}, 0")
I("s_cbranch_scc1 L_special")
F = S.fork(); tail.append(F)
for tau in range(2):
    for r in range(4):
        wr_, wi_ = t[4+2*(r&1)], t[5+2*(r&1)]; o = t[2*(r&1):2*(r&1)+2]
        ur, ui = DD[tau][0][r], DD[tau][1][r]
        I(f"v_lshlrev_b32 {wr_}, 16, {Wv[4*tau+r]}"); I(f"v_and_b32 {wi_}, 0xffff0000, {Wv[4*tau+r]}")
        I(f"v_mul_f32 {o[0]}, {ur}, {wr_}"); I(f"v_mul_f32 {o[1]}, {ur}, {wi_}")
        I(f"v_fma_f32 {o[0]}, -{ui}, {wi_}, {o[0]}"); I(f"v_fmac_f32 {o[1]}, {ui}, {wr_}")
        I(f"v_cvt_pk_bf16_f32 {PP[tau][r]}, {o[0]}, -{o[1]}")
S.label("L_special_done")
F.label("L_special")
sa = ft
svp = [TFc[2*k:2*k+2] if k < 4 else TFs[2*k-8:2*k-6] for k in range(8)]
PQ = [FR[k>>2][k&3] for k in range(8)]
post(F, "H_fr", alias=True)
F.I(f"v_lshlrev_b32 {sa[0]}, 3, {vKs}"); F.I(f"v_add_u32 {sa[0]}, {L_SP}, {sa[0]}")
F.I(f"s_add_u32 {sT[0]}, {sW13}, {3*32768}"); F.I(f"v_add_u32 {sa[1]}, {sT[0]}, {vL16}")
await_(F, GRP_G, "G_rel6")
for k in range(8): F.I(f"ds_read_b128 {PQ[k]}, {sa[1]} offset:{k*1024}")
await_(F, GRP_H, "H_fr")
for tau in range(2):
    for r in range(4):
        F.I(f"ds_write2_b32 {sa[0]}, {DD[tau][0][r]}, {DD[tau][1][r]} offset0:0 offset1:1")
        if not (tau == 1 and r == 3): F.I(f"v_add_u32 {sa[0]}, {512 if r < 3 else 13*512}, {sa[0]}")
post(F, "H_sp1", alias=True)
for k in range(8):
    F.I(f"v_sub_u32 {Wv[k]}, {2048 - 64*(16*(k>>2)+(k&3))}, {vKs}"); F.I(f"v_and_b32 {Wv[k]}, 2047, {Wv[k]}")
    F.I(f"v_lshlrev_b32 {Wv[k]}, 3, {Wv[k]}"); F.I(f"v_add_u32 {Wv[k]}, {L_SP}, {Wv[k]}")
await_(F, GRP_H, "H_sp1")
for k in range(8): F.I(f"ds_read_b64 {svp[k]}, {Wv[k]}")
for k in range(8):
    ur, ui = DD[k>>2][0][k&3], DD[k>>2][1][k&3]; pr, pi = PQ[k][0], PQ[k][1]
    F.I(f"v_mul_f32 {Wv[k]}, {pr}, {ur}"); F.I(f"v_fma_f32 {Wv[k]}, -{pi}, {ui}, {Wv[k]}")
    F.I(f"v_mul_f32 {ur}, {pi}, {ur}"); F.I(f"v_fmac_f32 {ur}, {pr}, {ui}")
for k in range(8):
    yi = DD[k>>2][0][k&3]; vr, vi = svp[k][0], svp[k][1]; qr, qi = PQ[k][2], PQ[k][3]
    F.I(f"v_fmac_f32 {Wv[k]}, {qr}, {vr}"); F.I(f"v_fmac_f32 {Wv[k]}, {qi}, {vi}")
    F.I(f"v_fmac_f32 {yi}, {qi}, {vr}"); F.I(f"v_fma_f32 {yi}, -{qr}, {vi}, {yi}")
    F.I(f"v_cvt_pk_bf16_f32 {PP[k>>2][k&3]}, {Wv[k]}, -{yi}")
F.wait_all(vm=False, force=True)
F.nop(2)
F.I("s_branch L_special_done")
for tt in range(2):
    for p in range(2):
        for tau in range(2):
            I(f"v_mfma_f32_16x16x32_bf16 {DD[tt][p]}, {PP[tau]}, {F32[tt][tau][p]}, {'0' if tau == 0 else DD[tt][p]}")
if NWH: S.wait_tag(f"w2p{NWH-1}")
P3 = [FR[0][0], FR[0][1]]
I(f"s_lshr_b32 {sT[0]}, {sW12}, 2"); I(f"v_add_u32 {t[6]}, {sT[0]}, {vLX}")
for tt in range(2):
    for r in range(4): cmul_tw(S, DD[tt][0][r], DD[tt][1][r], TIc[4*tt+r], TIs[4*tt+r], t[2*(r&1):2*(r&1)+2], P3[tt][r])
    I(f"ds_write_b128 {t[6]}, {P3[tt]} offset:{L_EX - S4 + tt*4096}")
post(S, "H_ex")
aw_issue(S, GRP_H)
I(f"s_lshl_b32 {sT[0]}, {sQ}, 13"); I(f"s_lshr_b32 {sT[1]}, {sW12}, 2"); I(f"s_add_u32 {sT[0]}, {sT[0]}, {sT[1]}"); I(f"s_add_u32 {sT[0]}, {sT[0]}, {WS_Y1}")
I(f"s_add_u32 {sT[1]}, {sT[0]}, 4096")
sF3 = sF1
I(f"s_lshl_b32 {sF3}, {sW}, 8"); I(f"s_add_u32 {sF3}, {sF3}, {sQ}"); I(f"s_lshl_b32 {sF3}, {sF3}, 4"); I(f"s_add_u32 {sF3}, {sF3}, {WS_F3}")
aw_check(S, GRP_H, "H_ex")
big_step(L_EX)
prio(S, "pH2")
for p in range(2):
    for tt in range(2):
        for e in range(2): I(f"v_cvt_pk_bf16_f32 {PP[p][2*tt+e]}, {DD[tt][p][2*e]}, {DD[tt][p][2*e+1]}")
    I(f"buffer_store_dwordx4 {PP[p]}, {vL16}, {SWS}, {sT[p]} offen sc1", tag="y1st")
stamp(S)
V.release(TFc, TFs, TIc, TIs, Wv, vKs, vWr, fq, fh4, vXCr)
for u in range(4): V.release(F64[u][0], F64[u][1], FR[0][u], FR[1][u])
for a in range(2):
    for b in range(2): V.release(DD[a][b], F32[a][b][0], F32[a][b][1])
sY = sBaseB
GM = [V.alloc(4) for k in range(16)]
vYD = V.alloc(4); vOA = V.alloc(2); vYR = V.alloc(2); vPF3 = V.alloc()
gq = Q(); c = gq.I
out_addr(c, vOA, ft)
fd, ab, vSel, vMsk = ft[4], ft[5], ft[6], ft[7]
c(f"s_lshr_b32 {sT[0]}, {sXCD}, 1"); c(f"s_lshl_b32 {sT[1]}, {sT[0]}, 12"); c(f"s_lshr_b32 {sT[2]}, {sW12}, 2"); c(f"s_add_u32 {sT[1]}, {sT[1]}, {sT[2]}"); c(f"s_add_u32 {sT[1]}, {sT[1]}, {WS_F3}")
c(f"v_add_u32 {vPF3}, {sT[1]}, {vL16}")
c(f"s_lshl_b32 {sY}, {sT[0]}, 10"); c(f"s_lshl_b32 {sT[2]}, {sHQ}, 8"); c(f"s_add_u32 {sY}, {sY}, {sT[2]}")
c(f"s_and_b32 {sT[2]}, {sXCD}, 1"); c(f"s_lshl_b32 {sT[2]}, {sT[2]}, 7"); c(f"s_add_u32 {sY}, {sY}, {sT[2]}")
c(f"s_lshl_b32 {sT[2]}, {sW}, 19"); c(f"s_add_u32 {sY}, {sY}, {sT[2]}"); c(f"s_add_u32 {sY}, {sY}, {WS_Y1}")
c(f"v_lshrrev_b32 {ft[0]}, 3, {vL}"); c(f"v_lshl_add_u32 {vYD[0]}, {ft[0]}, 12, {vD8}")
for m in range(1, 4): c(f"v_add_u32 {vYD[m]}, {m*(32768-1024)}, {vYD[0]}")
c(f"s_lshl_b32 {sT[0]}, {sKH}, 14"); c(f"s_add_u32 {sT[0]}, {sT[0]}, 65536"); c(f"s_lshl_b32 {sT[1]}, {sKH}, 6")
c(f"v_xor_b32 {ft[0]}, {sT[1]}, {vTRa}"); c(f"v_add_u32 {vYR[0]}, {sT[0]}, {ft[0]}"); c(f"v_xor_b32 {vYR[1]}, 64, {vYR[0]}")
c(f"s_lshl_b32 {sT[0]}, {sCB}, 6"); c(f"s_lshl_b32 {sT[2]}, {sAD}, 5"); c(f"s_add_u32 {sT[0]}, {sT[0]}, {sT[2]}")
c(f"v_add_u32 {ft[0]}, {sT[0]}, {vL31}"); c(f"v_cvt_f32_u32 {fd}, {ft[0]}"); c(f"v_mul_f32 {fd}, {fl(1/512)}, {fd}")
c(f"v_lshl_add_u32 {ft[1]}, {vHH}, 1, {sT[1]}"); c(f"v_cvt_f32_u32 {ft[1]}, {ft[1]}"); c(f"v_mul_f32 {ab}, {fd}, {ft[1]}")
c(f"v_and_b32 {ft[0]}, 1, {vL}"); c(f"v_mul_u32_u24 {ft[1]}, 0x0202, {ft[0]}"); c(f"v_lshl_or_b32 {ft[1]}, {ft[1]}, 16, {ft[1]}"); c(f"v_xor_b32 {vSel}, 0x03020100, {ft[1]}")
c(f"v_bfe_u32 {ft[1]}, {vL}, 1, 1"); c(f"v_xor_b32 {ft[2]}, {ft[1]}, {ft[0]}"); c(f"v_lshlrev_b32 {ft[1]}, 31, {ft[1]}"); c(f"v_lshl_or_b32 {vMsk}, {ft[2]}, 15, {ft[1]}")
for kl in range(8):
    for rho in range(4):
        c(f"v_fmamk_f32 {ft[0]}, {fd}, {fl(8*kl + 4*(rho>>1) + (rho&1))}, {ab}")
        c(f"v_cos_f32 {ft[1]}, {ft[0]}"); c(f"v_sin_f32 {ft[2]}, {ft[0]}")
        if not (kl == 0 and rho == 0):
            pk, pr = (kl, rho - 1) if rho else (kl - 1, 3)
            c(f"v_perm_b32 {ft[3]}, {GM[pk][pr]}, {GM[pk][pr]}, {vSel}")
            c(f"v_cvt_pk_bf16_f32 {GM[kl][rho]}, {ft[1]}, {ft[2]}")
            c(f"v_xor_b32 {GM[8+pk][pr]}, {vMsk}, {ft[3]}")
        else:
            c(f"v_cvt_pk_bf16_f32 {GM[kl][rho]}, {ft[1]}, {ft[2]}")
c(f"v_perm_b32 {ft[3]}, {GM[7][3]}, {GM[7][3]}, {vSel}"); c(f"v_xor_b32 {GM[15][3]}, {vMsk}, {ft[3]}")
c(f"v_and_b32 {ft[0]}, 1, {vL}"); c(f"v_lshlrev_b32 {ft[0]}, 31, {ft[0]}"); c(f"v_xor_b32 {ft[0]}, 0xbf803f80, {ft[0]}")
c(f"s_sub_u32 {sT[4]}, {sKH}, 1"); c(f"s_mov_b32 {sT[5]}, 0")
c(f"v_cndmask_b32 {GM[0][0]}, {GM[0][0]}, {ft[0]}, s[48:49]")
S.fq = gq.l
post(S, "H_cd")
S.fill(OPT["gpre"])
S.wait_tag("y1st"); flag(S, sF3)
prio(S, "pH")
V.release(PP[0], PP[1])
await_(S, GRP_H, "H_cd")
I(f"s_lshr_b32 {sB0}, {sW12}, 1"); I(f"s_add_u32 m0, {sB0}, {L_XT}")
for m in range(2): I(f"buffer_load_dwordx4 {vOA[m]}, {SX}, {sOB} offen offset:{m*1024} lds", tag="xt")
S.fill_flush()
prio(S, "pH2")
I(f"s_add_u32 {sGF}, {sGF}, 128")
I(LD_L1)
S.wait_tag("xt"); post(S, "H_xt")
LD_F3 = f"buffer_load_dword {pf1}, {vPF3}, {SWS}, 0 offen sc1"
reserve(S, "H_g3")
I(f"v_mov_b32 {vSY[1]}, {pf1}")
I(f"s_cmp_eq_u32 {sJ}, 29"); I("s_cbranch_scc1 L_sent3")
poll_check(S, [LD_L1], pf1)
S.label("L_sent3d")
F = side("L_sent3")
F.I(LD_F3)
poll_check(F, [LD_F3], pf1)
post(F, "H_g3", alias=True)
await_(F, GRP_H, "H_g3")
F.I(f"s_cmp_lg_u32 {sW}, 0"); F.I("s_cbranch_scc1 L_sent3d")
flag_mode(F, sGF)
F.I("s_branch L_sent3d")
stamp(S)
await_(S, GRP_G, "G_s01")
for g in range(4):
    I(f"s_lshl_b32 {sB0}, {sW}, 14"); I(f"s_add_u32 m0, {sB0}, {65536 + g*4096}")
    I(f"s_add_u32 {sB0}, {sY}, {g*32*4096}")
    for m in range(4): I(f"buffer_load_dwordx4 {vYD[m]}, {SWS}, {sB0} offen offset:{m*1024} sc1 lds", tag="yb")
S.wait_tag("yb"); post(S, "H_yb")
sac = [V.alloc(16), V.alloc(16)]
NY = 6
yf = [[V.alloc(4) for b in range(2)] for s in range(NY)]
vSW = V.alloc(); vSR = V.alloc()
I(f"v_add_u32 {vSW}, {sW12}, {vLX}"); I(f"v_xor_b32 {vSR}, 0x2000, {vSW}")
await_(S, GRP_H, "H_yb")
if "pHi" in OPT: prio(S, "pHi")
stamp(S)
def y_reads(k):
    kk = k if k < 8 else k + 8
    return [f"ds_read_b64_tr_b16 {yf[k%NY][b][2*j:2*j+2]}, {vYR[b]} offset:{kk*2048 + j*1024}" for b in (1, 0) for j in range(2)]
rd = []
for k in range(16): rd += [(k, l) for l in y_reads(k)]
for _ in range(12): I(rd.pop(0)[1])
for k in range(16):
    for b in (1, 0):
        I(f"v_mfma_f32_32x32x16_bf16 {sac[b]}, {GM[k]}, {yf[k%NY][b]}, {'0' if k == 0 else sac[b]}")
        n = 0
        while rd and n < 2 and rd[0][0] - NY < k: I(rd.pop(0)[1]); n += 1
for g in range(4): I(f"ds_write_b128 {vSR}, {sac[1][4*g:4*g+4]} offset:{g*1024}")
post(S, "H_sx")
await_(S, GRP_H, "H_sx")
for g in range(4): I(f"ds_read_b128 {sac[1][4*g:4*g+4]}, {vSW} offset:{g*1024}")
for g in range(4):
    for e in range(2): I(f"v_pk_add_f32 {sac[0][4*g+2*e:4*g+2*e+2]}, {sac[0][4*g+2*e:4*g+2*e+2]}, {sac[1][4*g+2*e:4*g+2*e+2]}")
    I(f"ds_write_b128 {vSW}, {sac[0][4*g:4*g+4]} offset:{g*1024}")
post(S, "H_done")
diag_out(S)
I("s_endpgm")

S = G; V = VG; I = G.I
G.label("L_G")
prio(S, "pGa")
I(f"s_lshl_b32 {sT[0]}, {sXCD}, 8"); I(f"s_lshl_b32 {sT[1]}, {sW}, 6"); I(f"s_add_u32 {sT[0]}, {sT[0]}, {sT[1]}"); I(f"s_add_u32 {sS0}, {sT[0]}, {sJ}")
I(f"s_lshl_b32 {sT[6]}, {sS0}, 10"); I(f"s_add_u32 {sT[7]}, {sT[6]}, 32768")
vW2R = V.alloc(4); vXR = V.alloc(4); vWR = V.alloc(4); vXR2 = V.alloc(4); vWR2 = V.alloc(4); ONES = V.alloc(4)
CQ = Q(); c = CQ.I
fq = V.alloc(); fh4 = V.alloc(); ang = V.alloc(4)
C1 = V.alloc(4); TWc = V.alloc(8); TWs = V.alloc(8)
C2 = [[V.alloc(4) for p in range(2)] for tt in range(2)]
CN = V.alloc(4); cs = V.alloc(8); kN = V.alloc()
vXNW = V.alloc(); vTR = V.alloc(); vGW = V.alloc(); vGR = V.alloc(); vGS = V.alloc()
sX1s = sBaseB
c(f"v_mov_b32 {kN}, {fl(-1/512)}")
c(f"s_lshr_b32 {sT[5]}, {sW12}, 1"); c(f"s_add_u32 {sT[5]}, {sT[5]}, {L_XN}")
c(f"v_add_u32 {vXNW}, {sT[5]}, {vL16}")
c(f"v_lshrrev_b32 {t[1]}, 2, {vL}"); c(f"v_lshlrev_b32 {t[2]}, 3, {vL3}")
c(f"v_lshl_add_u32 {t[1]}, {t[1]}, 6, {t[2]}"); c(f"v_add_u32 {vTR}, {sT[5]}, {t[1]}")
c(f"v_mul_u32_u24 {t[0]}, {GP}, {vL}")
c(f"s_lshl_b32 {sT[5]}, {sW}, 3"); c(f"s_add_u32 {sT[5]}, {sT[5]}, {L_GA}")
c(f"v_add_u32 {vGW}, {sT[5]}, {t[0]}")
c(f"v_cvt_f32_u32 {fq}, {vL15}")
c(f"v_lshlrev_b32 {t[0]}, 2, {vH}"); c(f"v_cvt_f32_u32 {fh4}, {t[0]}")
c(f"v_mul_f32 {t[1]}, {fl(1/16)}, {fq}")
c(f"v_mul_f32 {ang[0]}, {t[1]}, {fh4}")
for e in range(1, 4): c(f"v_add_f32 {ang[e]}, {ang[e-1]}, {t[1]}")
for e in range(4):
    c(f"v_cos_f32 {cs[e]}, {ang[e]}"); c(f"v_sin_f32 {cs[4+e]}, {ang[e]}")
c(f"v_mul_f32 {t[2]}, {fl(1/32)}, {fq}")
c(f"v_cvt_pk_bf16_f32 {C1[0]}, {cs[0]}, {cs[1]}"); c(f"v_cvt_pk_bf16_f32 {C1[1]}, {cs[2]}, {cs[3]}")
c(f"v_cvt_pk_bf16_f32 {C1[2]}, -{cs[4]}, -{cs[5]}"); c(f"v_cvt_pk_bf16_f32 {C1[3]}, -{cs[6]}, -{cs[7]}")
for r in range(4):
    c(f"v_mul_f32 {t[3]}, {fl(1/32)}, {ang[r]}")
    c(f"v_add_f32 {t[4]}, {t[3]}, {t[2]}")
    c(f"v_cos_f32 {TWc[r]}, {t[3]}"); c(f"v_sin_f32 {TWs[r]}, {t[3]}")
    c(f"v_cos_f32 {TWc[4+r]}, {t[4]}"); c(f"v_sin_f32 {TWs[4+r]}, {t[4]}")
f32_consts(c, C2, fq, fh4, t[0:3], cs[0:2])
for r in range(4): c(f"v_mov_b32 {CN[r]}, {'0x3f80' if r % 2 == 0 else '0xbf80'}")
misc_lane(c, t)
c(f"s_lshl_b32 {sT[0]}, {sXCD}, 5"); c(f"s_add_u32 {sT[0]}, {sT[0]}, {sJ}")
c(f"s_lshl_b32 {sX1s}, {sT[0]}, 7"); c(f"s_add_u32 {sX1s}, {sX1s}, {WS_X1}")
c(f"s_lshl_b32 {sIdx}, {sT[0]}, 5"); c(f"s_add_u32 {sIdx}, {sIdx}, {WS_WN}")
c(f"s_lshl_b32 {sBaseA}, {sT[0]}, 4"); c(f"s_add_u32 {sBaseA}, {sBaseA}, {WS_XCC}")
c(f"s_lshl_b32 {sF1}, {sW}, 8"); c(f"s_add_u32 {sF1}, {sF1}, {sT[0]}"); c(f"s_lshl_b32 {sF1}, {sF1}, 4"); c(f"s_add_u32 {sF1}, {sF1}, {WS_F1}")
c(f"s_lshl_b32 {sT[1]}, {sW}, 2"); c(f"v_add_u32 {t[1]}, {sT[1]}, {vH}")
c(f"v_mul_u32_u24 {t[3]}, {GP}, {t[1]}"); c(f"v_lshl_add_u32 {t[3]}, {vL15}, 4, {t[3]}"); c(f"v_add_u32 {vGR}, {L_GA}, {t[3]}")
c(f"v_lshlrev_b32 {t[4]}, 18, {t[1]}"); c(f"v_lshrrev_b32 {t[5]}, 3, {vL15}"); c(f"v_lshl_add_u32 {t[4]}, {t[5]}, 15, {t[4]}")
c(f"v_and_b32 {t[2]}, 7, {vL}"); c(f"v_lshl_add_u32 {vGS}, {t[2]}, 4, {t[4]}")
sWRr, sWF = sU0, sU1
c(f"s_and_b32 {sWRr}, {sW}, 1"); c(f"s_lshr_b32 {sWF}, {sW}, 1")
c(f"s_lshl_b32 {sT[0]}, {sWRr}, 13"); c(f"v_lshlrev_b32 {t[0]}, 7, {vL31}"); c(f"v_add_u32 {t[0]}, {sT[0]}, {t[0]}")
c(f"v_bfe_u32 {t[1]}, {vL}, 1, 3"); c(f"v_xor_b32 {t[1]}, {t[1]}, {vHH}")
c(f"s_lshl_b32 {sT[1]}, {sWRr}, 2"); c(f"v_xor_b32 {t[1]}, {sT[1]}, {t[1]}")
c(f"v_lshl_add_u32 {vXR[0]}, {t[1]}, 4, {t[0]}")
c(f"v_lshl_add_u32 {t[0]}, {vHH}, 3, {vRp}"); c(f"v_lshl_add_u32 {t[0]}, {t[0]}, 8, {vTRL}")
c(f"s_lshl_b32 {sT[1]}, {sWF}, 1"); c(f"v_xor_b32 {t[1]}, {sT[1]}, {vRp}")
c(f"v_lshl_add_u32 {t[0]}, {t[1]}, 6, {t[0]}")
c(f"s_add_u32 {sT[1]}, {sT[0]}, 16384"); c(f"s_sub_u32 {sT[2]}, 16384, {sT[0]}")
c(f"v_add_u32 {vWR[0]}, {sT[1]}, {t[0]}"); c(f"v_xor_b32 {vWR[1]}, 64, {vWR[0]}")
c(f"v_add_u32 {vWR[2]}, {sT[2]}, {t[0]}"); c(f"v_xor_b32 {vWR[3]}, 64, {vWR[2]}")
for k in range(1, 4): c(f"v_xor_b32 {vXR[k]}, {k*32}, {vXR[0]}")
c(f"v_and_b32 {t[0]}, 1, {vH}"); c(f"v_cmp_eq_u32 vcc, {t[0]}, {vL15}")
c(f"v_mov_b32 {t[1]}, 0x3f803f80")
for r in range(4): c(f"v_cndmask_b32 {ONES[r]}, 0, {t[1]}, vcc")
S.fq = CQ.l
S.fill(OPT.get("pre", 24))
S.wait_all(vm=False, force=True)
stamp(S)
srd(S, SX, 64, 65, 2048 * 1024)
xa = [V.alloc(4), V.alloc(4)]
I(f"buffer_load_dwordx4 {xa[0]}, {vL16}, {SX}, {sT[6]} offen")
I(f"buffer_load_dwordx4 {xa[1]}, {vL16}, {SX}, {sT[7]} offen")
srd(S, SWS, 80, 81, WS_SIZE)
I(f"buffer_load_dword {vE}, {vZ}, {SWS}, 0 offen sc1")
I("s_barrier")
srd(S, SW2, 74, 75, 1792 * 1024); srd(S, SOUT, 76, 77, 2048 * 1024)
S.fill_flush()
xf = [V.alloc(8), V.alloc(8)]
red = V.alloc(2)
for p in range(2):
    for e in range(4):
        I(f"v_lshlrev_b32 {xf[p][2*e]}, 16, {xa[p][e]}")
        I(f"v_and_b32 {xf[p][2*e+1]}, 0xffff0000, {xa[p][e]}")
stamp(S)
def tree(dst, src, tmp):
    I(f"v_pk_add_f32 {tmp[0:2]}, {src[0:2]}, {src[2:4]}"); I(f"v_pk_add_f32 {tmp[2:4]}, {src[4:6]}, {src[6:8]}")
    I(f"v_pk_add_f32 {tmp[0:2]}, {tmp[0:2]}, {tmp[2:4]}")
    I(f"v_add_f32 {dst}, {tmp[0]}, {tmp[1]}")
def wave_reduce(regs, sdst):
    for mod in ("row_shr:1 row_mask:0xf bank_mask:0xf bound_ctrl:0", "row_shr:2 row_mask:0xf bank_mask:0xf bound_ctrl:0",
                "row_shr:4 row_mask:0xf bank_mask:0xf bound_ctrl:0", "row_shr:8 row_mask:0xf bank_mask:0xf bound_ctrl:0",
                "row_bcast:15 row_mask:0xa bank_mask:0xf", "row_bcast:31 row_mask:0xc bank_mask:0xf"):
        for r in regs: I(f"v_add_f32_dpp {r}, {r}, {r} {mod}")
    for r, s in zip(regs, sdst): I(f"v_readlane_b32 {s}, {r}, 63")
tree(red[0], xf[0], t[0:4]); tree(red[1], xf[1], t[4:8])
wave_reduce([red[0], red[1]], [sT[0], sT[1]])
dv = V.alloc(8); nm = V.alloc(4)
for p in range(2): I(f"v_mul_f32 {nm[2*p]}, {sT[p]}, {kN}")
for p in range(2):
    for e in range(0, 8, 2): I(f"v_pk_add_f32 {dv[e:e+2]}, {xf[p][e:e+2]}, {nm[2*p:2*p+2]} op_sel_hi:[1,0]")
    I(f"v_pk_mul_f32 {t[2*p:2*p+2]}, {dv[0:2]}, {dv[0:2]}")
    for e in range(2, 8, 2): I(f"v_pk_fma_f32 {t[2*p:2*p+2]}, {dv[e:e+2]}, {dv[e:e+2]}, {t[2*p:2*p+2]}")
    I(f"v_add_f32 {red[p]}, {t[2*p]}, {t[2*p+1]}")
wave_reduce([red[0], red[1]], [sT[2], sT[3]])
stt = V.alloc(2); rs = V.alloc(4); mo = V.alloc(4)
seqs = []
for p in range(2):
    q = Q(); a, b = t[4*p], t[4*p+1]
    q.I(f"v_mul_f32 {a}, {sT[2+p]}, {kN}")
    q.I(f"v_cvt_pk_bf16_f32 {a}, -{a}, -{a}")
    q.I(f"v_lshlrev_b32 {a}, 16, {a}")
    q.I(f"v_add_f32 {a}, {fl(1e-5)}, {a}")
    q.I(f"v_cvt_pk_bf16_f32 {a}, {a}, {a}")
    q.I(f"v_lshlrev_b32 {a}, 16, {a}")
    q.I(f"v_sqrt_f32 {a}, {a}")
    q.I(f"v_cvt_pk_bf16_f32 {stt[p]}, {a}, -{nm[2*p]}")
    q.I(f"v_lshlrev_b32 {a}, 16, {stt[p]}")
    q.I(f"v_rcp_f32 {rs[2*p]}, {a}")
    q.I(f"v_and_b32 {b}, 0xffff0000, {stt[p]}")
    q.I(f"v_mul_f32 {mo[2*p]}, {b}, {rs[2*p]}")
    seqs.append(q.l)
for x, y in zip(*seqs): I(x[0]); I(y[0])
Aop = [[V.alloc(2) for tt in range(2)] for p in range(2)]
for p in range(2):
    for e in range(0, 8, 2):
        I(f"v_pk_fma_f32 {xf[p][e:e+2]}, {xf[p][e:e+2]}, {rs[2*p:2*p+2]}, {mo[2*p:2*p+2]} op_sel_hi:[1,0,0] neg_lo:[0,0,1] neg_hi:[0,0,1]")
    for e in range(4): I(f"v_cvt_pk_bf16_f32 {xa[p][e]}, {xf[p][2*e]}, {xf[p][2*e+1]}")
    I(f"ds_write_b128 {vXNW}, {xa[p]} offset:{p*1024}")
    for tt in range(2): I(f"ds_read_b64_tr_b16 {Aop[p][tt]}, {vTR} offset:{p*1024 + tt*32}")
V.release(xf[0], xf[1], dv, nm, rs, mo, red, cs, ang, kN, fq, fh4)
make_tag(S)
gr = V.alloc(2); vGa = V.alloc()
I(f"v_cmp_eq_u32 vcc, 0, {vL}")
I(f"v_mov_b32 {gr[1]}, {sTAG}")
I(f"v_lshlrev_b32 {vGa}, 8, {vL}")
I(f"v_cndmask_b32 {gr[0]}, {stt[1]}, {stt[0]}, vcc")
I(f"s_lshl_b32 {sT[6]}, {sS0}, 3"); I(f"s_add_u32 {sT[6]}, {sT[6]}, {WS_ST}")
D1 = [[[V.alloc(4) for c in range(2)] for tt in range(2)] for p in range(2)]
for p in range(2):
    for tt in range(2):
        for c in range(2): I(f"v_mfma_f32_16x16x16_bf16 {D1[p][tt][c]}, {Aop[p][tt]}, {C1[2*c:2*c+2]}, 0")
P = [[V.alloc(4) for tt in range(2)] for p in range(2)]
D2 = [[V.alloc(4) for c in range(3)] for p in range(2)]
for p in range(2):
    for tt in range(2):
        for r in range(4):
            cmul_tw(S, D1[p][tt][0][r], D1[p][tt][1][r], TWc[4*tt+r], TWs[4*tt+r], t[2*(r&1):2+2*(r&1)], P[p][tt][r])
    for c in range(3):
        for tt in range(2):
            B = C2[tt][c] if c < 2 else CN
            I(f"v_mfma_f32_16x16x32_bf16 {D2[p][c]}, {P[p][tt]}, {B}, {'0' if tt == 0 else D2[p][c]}")
O = V.alloc(8)
for k in range(4): I(f"v_add_u32 {vXR2[k]}, 0x10000, {vXR[k]}"); I(f"v_add_u32 {vWR2[k]}, 0x10000, {vWR[k]}")
for p in range(2):
    I(f"v_cndmask_b32 {D2[p][1][0]}, {D2[p][1][0]}, {D2[p][2][0]}, vcc")
    for r in range(4): I(f"v_cvt_pk_bf16_f32 {O[2*r+p]}, {D2[p][0][r]}, {D2[p][1][r]}")
for r in range(4): I(f"ds_write_b64 {vGW}, {O[2*r:2*r+2]} offset:{64*r}")
post(S, "G_ga")
aw_issue(S, GRP_G)
I(f"s_getreg_b32 {sT[3]}, hwreg(HW_REG_XCC_ID, 0, 4)"); I(f"s_add_u32 {sT[3]}, {sT[3]}, {sTAG}"); I(f"v_mov_b32 {t[0]}, {sT[3]}")
I("s_mov_b64 exec, 3")
I(f"buffer_store_dwordx2 {gr}, {vGa}, {SWS}, {sT[6]} offen sc1")
I("s_mov_b64 exec, 1")
I(f"s_cmp_lg_u32 {sW}, 0"); I("s_cbranch_scc1 L_noxcc")
I(f"buffer_store_dword {t[0]}, {vZ}, {SWS}, {sBaseA} offen sc1", counted=False)
S.label("L_noxcc")
I("s_mov_b64 exec, -1")
aw_check(S, GRP_G, "G_ga")
await_(S, GRP_H, "H_c0")
stamp(S)
V.release(xa[0], xa[1], stt, vXNW, gr, vGa, vTR, C1, TWc, TWs, CN, vGW, O)
for p in range(2):
    for c in range(3): V.release(D2[p][c])
    for tt in range(2): V.release(Aop[p][tt], P[p][tt], D1[p][tt][0], D1[p][tt][1], C2[p][tt])
acc = [[V.alloc(16) for b in range(2)] for a in range(2)]
csv = [V.alloc(4) for i in range(8)]; cst = [V.alloc(4) for i in range(8)]
def pub_reads(st):
    for m in range(4): st.I(f"ds_read_b128 {csv[m]}, {vGR} offset:{16*GP*m}")
    st.I(f"v_add_u32 {csv[5][0]}, {L_WN}, {vL16}")
    st.I(f"ds_read_b128 {csv[4]}, {csv[5][0]}")
def pub_wn(st):
    k = newlab()
    st.I(f"v_mov_b32 {csv[5][0]}, {csv[4][0]}")
    st.atomic += 1
    st.I(f"s_cmp_lg_u32 {sW}, 0"); st.I(f"s_cbranch_scc1 L_nown{k}")
    st.I("s_mov_b64 exec, 3")
    st.I(f"buffer_store_dwordx4 {csv[4]}, {vL16}, {SWS}, {sIdx} offen sc1", counted=False)
    st.I("s_mov_b64 exec, -1")
    st.label(f"L_nown{k}")
    st.atomic -= 1
def pub_store(st, m):
    st.I(f"buffer_store_dwordx4 {csv[m]}, {vGS}, {SWS}, {sX1s} offen sc1", tag="x1st")
    if m < 3: st.I(f"s_add_u32 {sX1s}, {sX1s}, 65536")
def w2r_setup(c):
    c(f"s_lshl_b32 {sT[0]}, {sWRr}, 6")
    c(f"v_xor_b32 {t[1]}, {sT[0]}, {vTRa}"); c(f"v_add_u32 {vW2R[0]}, {sW13}, {t[1]}"); c(f"v_xor_b32 {vW2R[1]}, 64, {vW2R[0]}")
    c(f"v_add_u32 {vW2R[2]}, 0x10000, {vW2R[0]}"); c(f"v_add_u32 {vW2R[3]}, 0x10000, {vW2R[1]}")
I(f"s_cmp_ge_u32 {sJ}, 28")
I("s_cbranch_scc1 L_free")
Ffree = S.fork()
prio(S, "pG1")
csa = [V.alloc(4) for a in range(2)]
NS = 3
fx = [[V.alloc(4) for b in range(2)] for s in range(NS)]
fw_ = [[V.alloc(4) for a in range(2)] for s in range(NS)]
def g1_reads(step):
    c, k = divmod(step, 4); s = step % NS
    sl = (c & 1) * 32768
    xr_, wr_ = (vXR2, vWR2) if c & 2 else (vXR, vWR)
    l = []
    def wr(a):
        for j in range(2):
            l.append(f"ds_read_b64_tr_b16 {fw_[s][a][2*j:2*j+2]}, {wr_[2*(k>>1)+a]} offset:{sl + k*4096 + j*1024}")
    def xr(b): l.append(f"ds_read_b128 {fx[s][b]}, {xr_[k]} offset:{sl + b*4096}")
    wr(0); xr(0); xr(1); wr(1)
    return l
for l in g1_reads(0): I(l)
pub_reads(S)
for l in g1_reads(1): I(l)
vCSW = V.alloc(); vCSR = V.alloc(); vMR = V.alloc(); mm = V.alloc(4)
sH0 = sU4
eq = Q(); c = eq.I
c(f"v_lshlrev_b32 {t[0]}, 6, {vL15}"); c(f"v_lshl_add_u32 {t[0]}, {vH}, 4, {t[0]}")
c(f"s_lshl_b32 {sT[0]}, {sW}, 8"); c(f"s_add_u32 {sT[1]}, {sT[0]}, {L_CS}"); c(f"v_add_u32 {vCSW}, {sT[1]}, {t[0]}")
c(f"s_add_u32 {sT[1]}, {sT[0]}, {L_MEAN}"); c(f"v_lshl_add_u32 {vMR}, {vL31}, 2, {sT[1]}")
c(f"s_lshl_b32 {sT[0]}, {sWF}, 9"); c(f"s_add_u32 {sT[0]}, {sT[0]}, {L_CS}")
c(f"v_lshlrev_b32 {t[0]}, 4, {vHH}"); c(f"v_add_u32 {vCSR}, {sT[0]}, {t[0]}")
h_base(c, sH0, sT[0])
c(f"s_lshl_b32 {sF2}, {sTT}, 9"); c(f"s_lshl_b32 {sT[1]}, {sFB}, 5"); c(f"s_add_u32 {sF2}, {sF2}, {sT[1]}")
c(f"s_lshl_b32 {sT[1]}, {sWF}, 4"); c(f"s_add_u32 {sF2}, {sF2}, {sT[1]}"); c(f"s_add_u32 {sF2}, {sF2}, {WS_F2}")
w2r_setup(c)
S.fq = [pub_wn, ("s_nop 0", {})] + sum([[(lambda st, m=m: pub_store(st, m)), ("s_nop 0", {})] for m in range(4)], []) + eq.l
for step in range(32):
    c_, k = divmod(step, 4); s = step % NS
    nxt = step + NS - 1
    mf = [f"v_mfma_f32_32x32x16_bf16 {acc[a][b]}, {fw_[s][a]}, {fx[s][b]}, {'0' if step == 0 else acc[a][b]}" for a, b in ((0, 0), (0, 1), (1, 0), (1, 1))]
    if k < 2:
        cm = [f"v_mfma_f32_16x16x32_bf16 {csa[a]}, {fw_[s][a]}, {ONES}, {'0' if step == 0 else csa[a]}" for a in range(2)]
        mf = [mf[0], mf[1], cm[0], mf[2], mf[3], cm[1]]
    rd = g1_reads(nxt) if nxt < 32 else []
    acts = []; post_after = []
    cn = nxt // 4
    if nxt < 32 and nxt % 4 == 0:
        acts.append(lambda cn=cn: aw_check(S, GRP_H, f"H_c{cn}"))
        if cn in (2, 4, 6, 7): acts.append(lambda: stamp(S, 1))
    if nxt < 28 and nxt % 4 == 3:
        post_after.append(lambda cn=cn: post(S, f"G_rel{cn}"))
        post_after.append(lambda: aw_issue(S, GRP_H))
    if step == OPT.get("f1at", 7): post_after.append(lambda: (S.wait_tag("x1st"), flag(S, sF1)))
    if step == 30:
        def csw():
            S.atomic += 1
            I("s_mov_b32 exec_lo, 0x00030003"); I("s_mov_b32 exec_hi, 0x00030003")
            for a in range(2): I(f"ds_write_b128 {vCSW}, {csa[a]} offset:{a*128}")
            I("s_mov_b64 exec, -1")
            S.atomic -= 1
            post(S, "G_cs")
            for b in range(2): I(f"ds_read_b32 {mm[2*b]}, {vMR} offset:{b*128}")
            I(f"ds_read_b32 {mm[1]}, {vMR} offset:1024")
        post_after.append(csw)
        post_after.append(lambda: aw_issue(S, GRP_G))
    if step == 31:
        def csr():
            aw_check(S, GRP_G, "G_cs")
            for i in range(8):
                I(f"ds_read_b128 {csv[i]}, {vCSR} offset:{(i>>2)*128 + (i&3)*32}")
                I(f"ds_read_b128 {cst[i]}, {vCSR} offset:{256 + (i>>2)*128 + (i&3)*32}")
        post_after.append(csr)
    for i, m in enumerate(mf):
        I(m)
        if i == 0:
            for a in acts: a()
        for _ in range(2):
            if rd: I(rd.pop(0))
        if not rd and post_after and i >= 2:
            for a in post_after: a()
            post_after = []
        S.fill(2)
stamp(S)
S.fill_flush()
prio(S, "pGe")
I(f"s_add_u32 {sT[1]}, {sH0}, 4096")
I(f"v_readfirstlane_b32 {sMODE}, {mm[1]}")
if OPT["hmode"] == 0: I(f"s_mov_b32 {sMODE}, 1")
for a in range(2):
    for kp in range(2):
        for gg in range(2):
            i = a * 4 + kp * 2 + gg
            for e in range(2): I(f"v_pk_add_f32 {csv[i][2*e:2*e+2]}, {csv[i][2*e:2*e+2]}, {cst[i][2*e:2*e+2]}")
        for b in range(2):
            for e in range(4):
                rr = 8 * kp + 2 * e; cv = csv[a * 4 + kp * 2 + (e >> 1)][2*(e&1):2*(e&1)+2]
                I(f"v_pk_fma_f32 {acc[a][b][rr:rr+2]}, {cv}, {mm[2*b:2*b+2]}, {acc[a][b][rr:rr+2]} op_sel_hi:[1,0,1] neg_lo:[1,0,0] neg_hi:[1,0,0]")
        sts = []
        for b in range(2):
            o = cst[a * 4 + kp * 2 + b]
            for e in range(4):
                rr = 8 * kp + 2 * e
                I(f"v_cvt_pk_bf16_f32 {o[e]}, {acc[a][b][rr]}, {acc[a][b][rr+1]}")
            for e in range(4): I(f"v_pk_max_i16 {o[e]}, {o[e]}, 0")
            sts.append(f"buffer_store_dwordx4 {o}, {vL16}, {SWS}, {sH0 if a == 0 else sT[1]} offen offset:{kp*2048 + b*1024}")
        if OPT["hmode"] < 2:
            for x in sts: I(x + " sc1", tag="hst")
            continue
        k = newlab()
        I(f"s_cmp_lg_u32 {sMODE}, 0"); I(f"s_cbranch_scc1 L_hs{k}")
        for x in sts: I(x, tag="hst")
        S.label(f"L_hd{k}")
        Fs = side(f"L_hs{k}")
        for x in sts: Fs.I(x + " sc1")
        Fs.I(f"s_branch L_hd{k}")
V.release(vGR, vGS, vXR, vWR, vXR2, vWR2, ONES, csa[0], csa[1], vCSW, vCSR, vMR, mm, *cst, *csv)
for s in range(NS): V.release(fx[s][0], fx[s][1], fw_[s][0], fw_[s][1])
S.nop(2)
S.label("L_join")
stamp(S)
F = Ffree; tail.append(F)
F.label("L_free")
F.I(f"s_lshl_b32 {sF2}, s2, 6"); F.I(f"s_add_u32 {sF2}, {sF2}, {WS_DUM}"); F.I(f"s_mov_b32 {sMODE}, 0")
pub_reads(F); pub_wn(F)
for m in range(4): pub_store(F, m)
post(F, "G_rel2", alias=True)
w2r_setup(F.I)
F.wait_all(force=True)
flag(F, sF1)
F.I(f"s_cmp_eq_u32 {sJ}, 29"); F.I("s_cbranch_scc1 L_sentG")
F.label("L_sentG_done")
Fz = side("L_sentG")
za = acc[0][0]
Fz.I(f"s_lshr_b32 {sT[0]}, {sXCD}, 1"); Fz.I(f"s_lshl_b32 {sT[0]}, {sT[0]}, 12"); Fz.I(f"s_lshr_b32 {sT[1]}, {sW12}, 2"); Fz.I(f"s_add_u32 {sT[0]}, {sT[0]}, {sT[1]}"); Fz.I(f"s_add_u32 {sT[0]}, {sT[0]}, {WS_F1}")
Fz.I(f"v_add_u32 {za[0]}, {sT[0]}, {vL16}")
Fz.I(f"s_lshl_b32 {sT[0]}, {sXCD}, 9"); Fz.I(f"s_add_u32 {sT[0]}, {sT[0]}, {WS_XCC}"); Fz.I(f"v_lshl_add_u32 {za[1]}, {vL31}, 4, {sT[0]}")
Fz.I(f"s_lshl_b32 {sT[2]}, {sXCD}, 8"); Fz.I(f"s_add_u32 {sT[2]}, {sT[2]}, {WS_GF}")
Fz.I(f"s_getreg_b32 {sT[3]}, hwreg(HW_REG_XCC_ID, 0, 4)"); Fz.I(f"s_add_u32 {sT[3]}, {sT[3]}, {sTAG}")
Fz.I(f"buffer_load_dword {za[4]}, {vZ}, {SWS}, {sT[2]} offen sc1")
Fz.I(f"buffer_load_dword {za[3]}, {za[1]}, {SWS}, 0 offen sc1")
if OPT.get("sentw", 1): await_(Fz, GRP_H, "H_c%d" % OPT.get("sentw", 4))
ZL = f"buffer_load_dword {za[2]}, {za[0]}, {SWS}, 0 offen sc1"
Fz.I(ZL)
poll_check(Fz, [ZL], za[2])
post(Fz, "G_rel3", alias=True)
await_(Fz, GRP_G, "G_rel3")
Fz.I(f"s_cmp_lg_u32 {sW}, 0"); Fz.I("s_cbranch_scc1 L_sentG_done")
Fz.I(f"v_cmp_ne_u32 vcc, {sT[3]}, {za[3]}")
Fz.I("s_mov_b64 exec, 1")
Fz.I("s_cbranch_vccnz L_sentG_s")
Fz.I(f"buffer_store_dword {vTAG}, {vZ}, {SWS}, {sT[2]} offen" + (" sc1" if OPT.get("forceslow") else ""))
Fz.I("s_mov_b64 exec, -1"); Fz.I("s_branch L_sentG_done")
Fz.label("L_sentG_s")
Fz.I(f"buffer_store_dword {vTAG}, {vZ}, {SWS}, {sT[2]} offen sc1")
Fz.I("s_mov_b64 exec, -1"); Fz.I("s_branch L_sentG_done")
post(F, "G_rel3", alias=True)
F.I(f"s_cmp_eq_u32 s2, 224"); F.I("s_cbranch_scc1 L_spG")
await_(F, GRP_H, "H_c6")
post(F, "G_rel5", alias=True)
await_(F, GRP_H, "H_c7")
F.label("L_spG_done")
post(F, "G_cs", alias=True)
Fg = side("L_spG")
ga = [acc[0][0], acc[0][1]]
sa = t; gk = acc[1][1][0]
Fg.I(f"s_lshl_b32 {sT[0]}, {sW}, 4"); Fg.I(f"v_lshl_add_u32 {gk}, {vH}, 8, {vL15}"); Fg.I(f"v_add_u32 {gk}, {sT[0]}, {gk}")
for k in range(8):
    c0 = 64 * (16 * (k >> 2) + (k & 3))
    for neg in range(2):
        if neg: Fg.I(f"v_sub_u32 {sa[0]}, {2048 - c0}, {gk}"); Fg.I(f"v_and_b32 {sa[0]}, 2047, {sa[0]}")
        else: Fg.I(f"v_add_u32 {sa[0]}, {c0}, {gk}")
        ks = sa[0]
        Fg.I(f"v_bfe_u32 {sa[1]}, {ks}, 4, 2"); Fg.I(f"v_lshrrev_b32 {sa[2]}, 9, {ks}"); Fg.I(f"v_lshl_add_u32 {sa[1]}, {sa[1]}, 2, {sa[2]}")
        Fg.I(f"v_and_b32 {sa[2]}, 15, {ks}"); Fg.I(f"v_lshl_add_u32 {sa[1]}, {sa[1]}, 4, {sa[2]}")
        Fg.I(f"v_bfe_u32 {sa[2]}, {ks}, 6, 3")
        Fg.I(f"v_lshlrev_b32 {sa[3]}, 2, {sa[2]}"); Fg.I(f"v_lshl_add_u32 {sa[3]}, {sa[1]}, 5, {sa[3]}"); Fg.I(f"v_add_u32 {ga[neg][8+k]}, {L_EX}, {sa[3]}")
        Fg.I(f"v_lshrrev_b32 {sa[3]}, 2, {sa[2]}"); Fg.I(f"v_bfe_u32 {sa[0]}, {sa[1]}, 2, 2"); Fg.I(f"v_xor_b32 {sa[3]}, {sa[3]}, {sa[0]}"); Fg.I(f"v_xor_b32 {sa[3]}, 2, {sa[3]}")
        Fg.I(f"v_and_b32 {sa[2]}, 3, {sa[2]}"); Fg.I(f"v_lshlrev_b32 {sa[2]}, 2, {sa[2]}"); Fg.I(f"v_lshl_add_u32 {sa[2]}, {sa[3]}, 4, {sa[2]}")
        Fg.I(f"v_lshl_add_u32 {sa[2]}, {sa[1]}, 6, {sa[2]}"); Fg.I(f"v_add_u32 {ga[neg][k]}, {L_XC}, {sa[2]}")
Fg.I(f"s_add_u32 {sT[0]}, {sW13}, {3*32768}"); Fg.I(f"v_add_u32 {gk}, {sT[0]}, {vL16}")
await_(Fg, GRP_H, "H_c6")
post(Fg, "G_rel5", alias=True)
await_(Fg, GRP_H, "H_xc")
for k in range(8):
    for r in (ga[0][k], ga[1][k], ga[0][8+k], ga[1][8+k]): Fg.I(f"ds_read_b32 {r}, {r}")
await_(Fg, GRP_H, "H_c7")
for k in range(8):
    o = acc[1][0][4*(k&3):4*(k&3)+4]
    a_, b_, c_, d_ = ga[0][k], ga[1][k], ga[0][8+k], ga[1][8+k]
    for i, r in enumerate((a_, b_, c_, d_)):
        Fg.I(f"v_lshlrev_b32 {t[2*i]}, 16, {r}"); Fg.I(f"v_and_b32 {t[2*i+1]}, 0xffff0000, {r}")
    Fg.I(f"v_add_f32 {t[0]}, {t[0]}, {t[2]}"); Fg.I(f"v_sub_f32 {t[1]}, {t[1]}, {t[3]}")
    Fg.I(f"v_add_f32 {t[4]}, {t[4]}, {t[6]}"); Fg.I(f"v_sub_f32 {t[5]}, {t[5]}, {t[7]}")
    Fg.I(f"v_add_f32 {o[0]}, {t[0]}, {t[4]}"); Fg.I(f"v_add_f32 {o[1]}, {t[1]}, {t[5]}")
    Fg.I(f"v_sub_f32 {o[2]}, {t[0]}, {t[4]}"); Fg.I(f"v_sub_f32 {o[3]}, {t[1]}, {t[5]}")
    for e in range(4): Fg.I(f"v_mul_f32 {o[e]}, {fl(0.125)}, {o[e]}")
    Fg.I(f"ds_write_b128 {gk}, {o} offset:{k*1024}")
post(Fg, "G_rel6", alias=True)
await_(Fg, GRP_H, "H_sp1")
Fg.wait_all(force=True)
Fg.I("s_branch L_spG_done")
F.wait_all(force=True)
F.nop(2)
F.I("s_branch L_join")
REGP = (2, 3, 1)
W2F = {(p, kl): [V.alloc(4) for a in range(2)] for p in REGP for kl in range(4)}
def w2_reads(p, kl, dst):
    sl = W2SLOT[p]
    return [f"ds_read_b64_tr_b16 {dst[a][2*j:2*j+2]}, {vW2R[2*(sl>>1)+a]} offset:{(sl&1)*32768 + kl*2048 + j*1024}" for a in range(2) for j in range(2)]
if OPT.get("p2first", 1): w2_dma(S, 2)
S.wait_tag("hst")
flag_mode(S, sF2)
prio(S, "pG2")
stamp(S)
w2_dma(S, 3)
for p in (1, 0):
    if p >= NWH: w2_dma(S, p)
sT2 = sTT; sH = sU4
vPF2 = vL15; pf2 = vTRL
I(f"s_lshl_b32 {sT2}, {sXCD}, 2"); I(f"s_add_u32 {sT2}, {sT2}, {sHQ}")
I(f"s_lshl_b32 {sT[0]}, {sT2}, 9"); I(f"s_mul_i32 {sT[1]}, {sW}, 112"); I(f"s_add_u32 {sT[0]}, {sT[0]}, {sT[1]}"); I(f"s_add_u32 {sT[0]}, {sT[0]}, {WS_F2}")
I(f"v_min_u32 {vPF2}, 6, {vL}"); I(f"v_lshlrev_b32 {vPF2}, 4, {vPF2}"); I(f"v_add_u32 {vPF2}, {sT[0]}, {vPF2}")
LD_F2 = f"buffer_load_dword {pf2}, {vPF2}, {SWS}, 0 offen sc1"
vOA = [vD8, vTRa]
out_addr(I, vOA, t)
vHb = [vRp, vL3]
I(f"s_lshl_b32 {sT[0]}, {sKH}, 10"); I(f"v_add_u32 {vHb[0]}, {sT[0]}, {vL16}"); I(f"v_xor_b32 {vHb[1]}, 0x400, {vHb[0]}")
I(f"s_mul_i32 {sH}, {sT2}, 229376"); I(f"s_mul_i32 {sT[0]}, {sW}, 57344"); I(f"s_add_u32 {sH}, {sH}, {sT[0]}"); I(f"s_add_u32 {sH}, {sH}, {WS_H}")
I(f"v_lshlrev_b32 {vRowOff}, 3, {vRowOff}")
for p in REGP:
    if p == 1 and NWH: await_(S, GRP_H, "H_ex")
    S.wait_tag(f"w2p{p}")
    for kl in range(4):
        for l in w2_reads(p, kl, W2F[p, kl]): I(l, tag=f"w2d{p}")
    if p == 2: I(LD_F2)
    if p == 3: post(S, "G_s01")
S.wait_tag("w2d1")
for g in groups_of(lambda st: w2_dma(st, 4)): S.bg_push(g)
if OPT.get("p4early", 1): S.bg_flush()
yac = acc
NB = OPT["nb"]
order = [1, 0, 4, 2, 3, 5, 6]
WB = 2
wb = [[V.alloc(4) for a in range(2)] for s in range(WB)]
vYW = vH; vRS = vE
hfree = []
while True:
    try: hfree.append([V.alloc(4), V.alloc(4)])
    except RuntimeError: break
sys.stderr.write("initial h buffers %d\n" % len(hfree))
hb = {}
nissued = [0]
def h_load():
    i = nissued[0]; nissued[0] += 1
    hb[i] = hfree.pop(0)
    p, kl = order[i // 4], i % 4
    if kl == 0:
        part_idx(S, sS0, p, sU0)
        I(f"s_lshl_b32 {sS0}, {sS0}, 13"); I(f"s_add_u32 {sS0}, {sS0}, {sH}")
    if kl == 2: I(f"s_add_u32 {sS0}, {sS0}, 4096")
    for b in range(2):
        I(f"buffer_load_dwordx4 {hb[i][b]}, {vHb[b]}, {SWS}, {sS0} offen offset:{(kl%2)*2048} sc1")
def h_top(done):
    while hfree and nissued[0] < 28 and nissued[0] - done < NB: h_load()
def wsrc(i):
    p, kl = order[i // 4], i % 4
    return W2F[p, kl] if p in REGP else wb[i % WB]
def wrd(i):
    p, kl = order[i // 4], i % 4
    return w2_reads(p, kl, wb[i % WB]) if p not in REGP else []
poll_check(S, [LD_F2], pf2)
stamp(S)
h_top(0)
I(f"buffer_load_dword {vRS}, {vRowOff}, {SWS}, {sT[3]} offen sc1")
vRd = [None] + [t[k] for k in (1, 2, 3)]
slots = {1: yac[1][0], 2: yac[0][1], 3: yac[1][1]}
soff = {1: 0, 2: 4096, 3: 32768}
def take(n):
    out = []
    while len(out) < n:
        pr = hfree.pop(); out += [pr[0], pr[1]]
    return out
for i in range(26):
    rd = wrd(i + 1)
    if rd and (i + 1) % 4 == 0:
        p = order[(i + 1) // 4]
        assert not any(it[1].get("tag") == f"w2p{p}" for g in S.bg for it in g)
        S.wait_tag(f"w2p{p}")
    for a, b in ((0, 0), (1, 0), (0, 1), (1, 1)):
        I(f"v_mfma_f32_32x32x16_bf16 {yac[a][b]}, {wsrc(i)[a]}, {hb[i][b]}, {'0' if i == 0 else yac[a][b]}")
        for _ in range(2):
            if rd: I(rd.pop(0))
        S.fill(3)
    if i in (8, 12):
        for g in groups_of(lambda st, i=i: w2_dma(st, 5 if i == 8 else 6)): S.bg_push(g)
    if i == 19: aw_issue(S, GRP_H)
    if i == 20: aw_check(S, GRP_H, "H_xt")
    hfree.append(hb[i])
    if order[i // 4] in REGP: hfree.append(wsrc(i))
    h_top(i + 1)
    S.bg_pop(2)
    if i == 20:
        assert nissued[0] == 28
        g4 = take(14)
        sv = g4[0:4]; xe = g4[4:8]; xv = g4[8:10]; ft = g4[10:12]; ex = g4[12]
        vXT, vXL, vSa = ex[0], ex[1], ex[2]
        q = Q(); c = q.I
        c(f"v_add_u32 {vYW}, {sW13}, {vL16}")
        for k in (1, 2, 3): c(f"v_xor_b32 {vRd[k]}, {k*8192}, {vYW}")
        c(f"s_lshr_b32 {sT[0]}, {sW12}, 1"); c(f"s_add_u32 {sT[0]}, {sT[0]}, {L_XT}")
        c(f"v_lshlrev_b32 {vXT}, 6, {vL31}"); c(f"v_lshl_add_u32 {vXT}, {vHH}, 3, {vXT}"); c(f"v_add_u32 {vXT}, {sT[0]}, {vXT}")
        c(f"v_add_u32 {vXL}, {sT[0]}, {vL16}")
        for g in range(4): c(f"ds_read_b64 {xv[g>>1][2*(g&1):2*(g&1)+2]}, {vXT} offset:{16*g}")
        c(f"s_add_u32 {sT[0]}, {sW12}, {L_SX}"); c(f"v_add_u32 {vSa}, {sT[0]}, {vL16}")
        c(f"v_lshlrev_b32 {vRS}, 16, {vRS}"); c(f"v_rcp_f32 {vRS}, {vRS}")
        for e in range(8):
            c(f"v_lshlrev_b32 {xe[e>>1][2*(e&1)]}, 16, {xv[e>>2][e&3]}"); c(f"v_and_b32 {xe[e>>1][2*(e&1)+1]}, 0xffff0000, {xv[e>>2][e&3]}")
        c(f"v_mul_f32 {ft[1][2]}, {fl(-1.4426950408889634)}, {vRS}"); c(f"v_mul_f32 {ft[1][0]}, {fl(2.0**-19)}, {vRS}")
        S.fq = q.l
for l in wrd(27): I(l)
S.fill_flush()
def ywr(k):
    for g in range(4): I(f"ds_write_b128 {vYW}, {slots[k][4*g:4*g+4]} offset:{soff[k] + g*1024}")
for n, (a, b) in enumerate([(1, 1), (0, 1), (1, 0), (0, 0)]):
    for i in (26, 27):
        I(f"v_mfma_f32_32x32x16_bf16 {yac[a][b]}, {wsrc(i)[a]}, {hb[i][b]}, {yac[a][b]}")
    if n >= 2: ywr(5 - n)
stamp(S)
ywr(1)
post(S, "G_y")
await_(S, GRP_G, "G_y")
stamp(S)
for g in range(4):
    for k in (1, 2, 3): I(f"ds_read_b128 {slots[k][4*g:4*g+4]}, {vRd[k]} offset:{soff[k] + g*1024}")
gv = yac[0][0]; f0 = ft[0]
aw_issue(S, GRP_H)
for g in range(4):
    for e in range(2):
        k = 4 * g + 2 * e
        I(f"v_pk_add_f32 {gv[k:k+2]}, {gv[k:k+2]}, {slots[1][k:k+2]}"); I(f"v_pk_add_f32 {slots[2][k:k+2]}, {slots[2][k:k+2]}, {slots[3][k:k+2]}")
    for e in range(2):
        k = 4 * g + 2 * e
        I(f"v_pk_add_f32 {gv[k:k+2]}, {gv[k:k+2]}, {slots[2][k:k+2]}")
    for e in range(2):
        k = 4 * g + 2 * e
        I(f"v_pk_mul_f32 {f0[2*e:2*e+2]}, {gv[k:k+2]}, {ft[1][2:4]} op_sel_hi:[1,0]")
    for e in range(4): I(f"v_exp_f32 {f0[e]}, {f0[e]}")
    for e in range(2):
        k = 4 * g + 2 * e
        I(f"v_pk_mul_f32 {gv[k:k+2]}, {gv[k:k+2]}, {ft[1][0:2]} op_sel_hi:[1,0]")
    for e in range(4): I(f"v_add_f32 {f0[e]}, 1.0, {f0[e]}")
    for e in range(4): I(f"v_rcp_f32 {f0[e]}, {f0[e]}")
    if g == 2:
        aw_check(S, GRP_H, "H_done")
        for gg in range(4): I(f"ds_read_b128 {sv[gg]}, {vSa} offset:{gg*1024}")
    for e in range(2):
        k = 4 * g + 2 * e
        I(f"v_pk_mul_f32 {gv[k:k+2]}, {gv[k:k+2]}, {f0[2*e:2*e+2]}")
for g in range(4):
    for e in range(2): I(f"v_pk_fma_f32 {xe[g][2*e:2*e+2]}, {gv[4*g+2*e:4*g+2*e+2]}, {sv[g][2*e:2*e+2]}, {xe[g][2*e:2*e+2]}")
    o2 = xv[g>>1][2*(g&1):2*(g&1)+2]
    for e in range(2): I(f"v_cvt_pk_bf16_f32 {o2[e]}, {xe[g][2*e]}, {xe[g][2*e+1]}")
    I(f"ds_write_b64 {vXT}, {o2} offset:{16*g}")
for m in range(2): I(f"ds_read_b128 {sv[m]}, {vXL} offset:{m*1024}")
for m in range(2): I(f"buffer_store_dwordx4 {sv[m]}, {vOA[m]}, {SOUT}, {sOB} offen offset:{m*1024}")
diag_out(S)
S.label("L_end")
I("s_endpgm")

hdr = open("cdna_kernels/%s.s.ref" % NAME).read().split("; Override launch")[0]
out = [hdr.rstrip(), f"; @launch grid=(256,1,1) block=(512,1,1) lds={LDS_TOTAL}",
       '.amdgcn_target "amdgcn-amd-amdhsa--gfx950"']
out += [f".set EP_{k}, {v}" for k, v in EP.items()]
out += [".text", f".globl {NAME}_kernel", ".p2align 8", f".type {NAME}_kernel,@function", f"{NAME}_kernel:"]
out += C.lines + H.lines[:Hstart_end] + ["  s_branch L_H2"] + G.lines + ["L_H2:"] + H.lines[Hstart_end:]
for f in tail: out += f.lines
out.append("L_code_end:")
out += ['.section .rodata,"a"', ".p2align 6", f".amdhsa_kernel {NAME}_kernel",
        "  .amdhsa_next_free_vgpr 256", "  .amdhsa_next_free_sgpr 102", "  .amdhsa_accum_offset 256",
        "  .amdhsa_group_segment_fixed_size 0", "  .amdhsa_kernarg_size 72", "  .amdhsa_user_sgpr_count 2",
        "  .amdhsa_user_sgpr_kernarg_segment_ptr 1", "  .amdhsa_system_sgpr_workgroup_id_x 1",
        "  .amdhsa_float_denorm_mode_32 3", ".end_amdhsa_kernel"]
print("\n".join(out))
sys.stderr.write("instrs G %d H %d, vgpr hw G %d H %d, stamps G %d H %d\nEP %s\n" % (G.ninstr, H.ninstr, VG.hw, VH.hw, G.nstamp, H.nstamp, EP))
```

```python
import sys, struct, copy
sys.path.insert(0, "dev")
from fw import *

NAME = "recurrent_scan__spectral_gfnet__dense_activation_relu__prompt"
DIAG = "--diag" in sys.argv
OPT = {"rot2": 2, "nb": 8, "asleep": 1, "psleep": 3, "gpre": 40, "hmode": 1, "pf": 1, "xat": 7,
       "pGa": 3, "pG1": 2, "pGe": 3, "pG2": 0, "pH": 1, "pHc": 3, "pH2": 3}
for a in sys.argv[1:]:
    if "=" in a:
        k, v = a.split("="); OPT[k] = int(v)

def f2u(x): return struct.unpack("<I", struct.pack("<f", x))[0]
def fl(x): return "0x%08x" % f2u(x)

WS_F1 = 0x4000; WS_F2 = 0x9000; WS_F3 = 0x10000; WS_ST = 0x18000; WS_XCC = 0x1c000; WS_GF = 0x1d000
WS_DIAG = 0x20000; WS_DUM = 0x40000; WS_WN = 0x50000
WS_X1 = 0x100000; WS_Y1 = 0x600000; WS_H = 0x800000; WS_SIZE = 0x1000000
S4 = 131072
L_XN = S4; L_GA = S4 + 8192; GP = 272
L_XC = S4; L_EX = S4 + 16384; L_SP = S4; L_SX = S4; L_XT = S4 + 16384
L_PROG = S4 + 25600; L_WN = L_PROG + 64; L_CS = S4 + 25856; L_MEAN = S4 + 26880
LDS_TOTAL = 163840

SX, SA, SB, SW2, SOUT, SWS = ("s[%d:%d]" % (b, b + 3) for b in (8, 12, 16, 24, 28, 32))
sXCD, sJ, sW, sTAG, sQ, sCB, sHQ, sSPIN = ("s%d" % i for i in range(36, 44))
sT = ["s%d" % i for i in range(44, 52)]
sB0, sIdx, sBaseA, sBaseB, sU0, sU1, sU2, sU3, sU4 = ("s%d" % i for i in range(52, 61))
sW12, sW13, sS0 = "s61", "s62", "s63"
sR2, sAa, sFB, sTT = "s20", "s21", "s22", "s23"
sF1, sF2, sMODE, sW2b, sW8 = "s4", "s5", "s6", "s7", "s3"

tail = []
EP = {}
class Q:
    def __init__(self): self.l = []
    def I(self, text, **kw): self.l.append((text, kw))
def groups_of(fn):
    cap = Q(); fn(cap); gs = []; grp = []
    for it in cap.l:
        grp.append(it)
        if it[0].startswith("buffer_load"):
            gs.append(grp); grp = []
    gs[-1] += grp
    return gs
def stamp(st, lvl=0):
    if DIAG and lvl <= OPT.get("fine", 1):
        k = st.nstamp; st.nstamp += 1
        assert k < 15
        st.I("%s s[%d:%d]" % ("s_memtime" if OPT.get("cyc") else "s_memrealtime", 100 - 2 * k, 101 - 2 * k), counted=False)
def prio(st, key): st.I("s_setprio %d" % OPT[key])
def srd(st, name, lo, hi, nbytes):
    b = int(name[2:name.index(":")])
    st.I(f"s_mov_b32 s{b}, s{lo}"); st.I(f"s_and_b32 s{b+1}, s{hi}, 0xffff")
    st.I(f"s_mov_b32 s{b+2}, {nbytes}"); st.I(f"s_mov_b32 s{b+3}, 0x20000")
nlab = [0]
def newlab():
    nlab[0] += 1; return nlab[0]
def side(label):
    F = Stream(); tail.append(F); F.label(label); return F

def poll_check(st, loads, reg):
    k = newlab()
    st.atomic += 1
    st.I(f"v_cmp_ne_u32 vcc, {sTAG}, {reg}")
    st.nop(1)
    st.I(f"s_cbranch_vccnz L_slow{k}")
    st.label(f"L_got{k}")
    st.atomic -= 1
    F = side(f"L_slow{k}")
    F.I(f"s_mov_b32 {sSPIN}, 0")
    F.label(f"L_spin{k}")
    F.I("s_mov_b64 exec, vcc")
    F.I("s_sleep %d" % OPT["psleep"])
    for l in loads: F.I(l)
    F.wait_all(vm=True, lg=False, force=True)
    F.I(f"v_cmp_ne_u32 vcc, {sTAG}, {reg}")
    F.I("s_mov_b64 exec, -1")
    F.I(f"s_cbranch_vccz L_got{k}")
    F.I(f"s_add_u32 {sSPIN}, {sSPIN}, 1")
    F.I(f"s_cmp_lt_u32 {sSPIN}, 200000")
    F.I(f"s_cbranch_scc1 L_spin{k}")
    F.I(f"s_branch L_got{k}")
def post(st, name, alias=False):
    if not alias:
        st.epoch += 1
        assert name not in EP
        EP[name] = st.epoch
    st.atomic += 1
    st.I(f"v_mov_b32 {vSY[1]}, EP_{name}")
    st.I("s_mov_b64 exec, 1")
    st.I(f"ds_write_b32 {vPME}, {vSY[1]}")
    st.I("s_mov_b64 exec, -1")
    st.atomic -= 1
def reserve(st, name):
    st.epoch += 1; EP[name] = st.epoch
def aw_issue(st, grp): st.I(f"ds_read_b32 {vSY[0]}, {vPG} offset:{16*grp}")
def aw_check(st, grp, name):
    k = newlab()
    st.atomic += 1
    st.I(f"v_cmp_gt_u32 vcc, EP_{name}, {vSY[0]}")
    st.nop(1)
    st.I(f"s_cbranch_vccnz L_aslow{k}")
    st.label(f"L_agot{k}")
    st.atomic -= 1
    F = side(f"L_aslow{k}")
    F.I(f"s_mov_b32 {sSPIN}, 0")
    F.label(f"L_aspin{k}")
    if OPT["asleep"]: F.I("s_sleep %d" % OPT["asleep"])
    F.I(f"ds_read_b32 {vSY[0]}, {vPG} offset:{16*grp}")
    F.wait_all(vm=False, lg=True, force=True)
    F.I(f"v_cmp_gt_u32 vcc, EP_{name}, {vSY[0]}")
    F.nop(1)
    F.I(f"s_cbranch_vccz L_agot{k}")
    F.I(f"s_add_u32 {sSPIN}, {sSPIN}, 1")
    F.I(f"s_cmp_lt_u32 {sSPIN}, 0x400000")
    F.I(f"s_cbranch_scc1 L_aspin{k}")
    F.I(f"s_branch L_agot{k}")
def await_(st, grp, name):
    aw_issue(st, grp); aw_check(st, grp, name)
GRP_G, GRP_H = 0, 1
def flag(st, soff, counted=True):
    st.atomic += 1
    st.I("s_mov_b64 exec, 1")
    st.I(f"buffer_store_dword {vTAG}, {vZ}, {SWS}, {soff} offen sc1", counted=counted)
    st.I("s_mov_b64 exec, -1")
    st.atomic -= 1
def flag_mode(st, soff):
    k = newlab()
    st.atomic += 1
    st.I("s_mov_b64 exec, 1")
    st.I(f"s_cmp_lg_u32 {sMODE}, 0"); st.I(f"s_cbranch_scc1 L_fm{k}")
    st.I(f"buffer_store_dword {vTAG}, {vZ}, {SWS}, {soff} offen")
    st.label(f"L_fmd{k}")
    st.I("s_mov_b64 exec, -1")
    st.atomic -= 1
    F = side(f"L_fm{k}")
    F.I(f"buffer_store_dword {vTAG}, {vZ}, {SWS}, {soff} offen sc1"); F.I(f"s_branch L_fmd{k}")
def cmul_tw(st, re, im, c, s, t0, out):
    st.I(f"v_mul_f32 {t0[0]}, {re}, {c}")
    st.I(f"v_mul_f32 {t0[1]}, {im}, {c}")
    st.I(f"v_fmac_f32 {t0[0]}, {im}, {s}")
    st.I(f"v_fma_f32 {t0[1]}, -{re}, {s}, {t0[1]}")
    st.I(f"v_cvt_pk_bf16_f32 {out}, {t0[0]}, {t0[1]}")
def make_tag(st):
    st.I(f"v_readfirstlane_b32 {sT[4]}, {vE}")
    st.I(f"s_mul_i32 {sTAG}, {sT[4]}, 0x9E3779B1"); st.I(f"s_add_u32 {sTAG}, {sTAG}, 0x7F4A7C15")
    st.I(f"v_mov_b32 {vTAG}, {sTAG}")
def part_idx(st, dst, p, tmp):
    if p == 0: st.I(f"s_mov_b32 {dst}, {sR2}"); return
    st.I(f"s_add_u32 {dst}, {sR2}, {p}"); st.I(f"s_sub_u32 {tmp}, {dst}, 7"); st.I(f"s_cmp_ge_u32 {dst}, 7"); st.I(f"s_cselect_b32 {dst}, {tmp}, {dst}")
W2SLOT = [0, 1, 2, 3, 1, 0, 1]
def w2_dma(st, p):
    for g in range(2):
        if g == 0:
            part_idx(st, sB0, p, "m0")
            st.I(f"s_lshl_b32 {sB0}, {sB0}, 16"); st.I(f"s_add_u32 {sB0}, {sB0}, {sW2b}")
        else:
            st.I(f"s_add_u32 {sB0}, {sB0}, 32768")
        st.I(f"s_add_u32 m0, {sW13}, {W2SLOT[p] * 32768 + g * 4096}")
        for m in range(4):
            st.I(f"buffer_load_dwordx4 {vW2D[m]}, {SW2}, {sB0} offen offset:{m*1024} lds", tag=f"w2p{p}")
def misc_lane(c, t):
    c(f"v_and_b32 {t[0]}, 1, {vH}"); c(f"v_lshlrev_b32 {t[1]}, 5, {t[0]}"); c(f"v_lshl_add_u32 {vTRL}, {vL3}, 3, {t[1]}")
    c(f"v_lshrrev_b32 {t[1]}, 3, {vL31}"); c(f"v_lshlrev_b32 {t[1]}, 5, {t[1]}")
    c(f"v_bfe_u32 {t[2]}, {vL}, 2, 1"); c(f"v_lshl_add_u32 {t[1]}, {t[2]}, 4, {t[1]}"); c(f"v_add_u32 {vRowOff}, {t[1]}, {vL3}")
    c(f"v_lshlrev_b32 {t[1]}, 2, {t[0]}"); c(f"v_and_b32 {t[2]}, 7, {vL}"); c(f"v_xor_b32 {t[1]}, {t[1]}, {t[2]}")
    c(f"v_lshlrev_b32 {vD8}, 4, {t[1]}"); c(f"v_lshrrev_b32 {t[2]}, 3, {vL}")
    c(f"v_lshl_add_u32 {vW2D[0]}, {t[2]}, 10, {vD8}")
    for m in range(1, 4): c(f"v_add_u32 {vW2D[m]}, {m*(8192-1024)}, {vW2D[0]}")
    c(f"v_lshl_add_u32 {t[1]}, {vHH}, 2, {vRp}"); c(f"v_lshl_add_u32 {t[1]}, {t[1]}, 7, {vTRL}")
    c(f"v_lshrrev_b32 {t[2]}, 1, {vRp}"); c(f"v_lshl_add_u32 {vTRa}, {t[2]}, 6, {t[1]}")
    c(f"s_mul_i32 {sW2b}, {sW}, {448*1024}"); c(f"s_lshl_b32 {sR2}, {sCB}, 7"); c(f"s_add_u32 {sW2b}, {sW2b}, {sR2}")
    if OPT["rot2"] == 3: c(f"s_add_u32 {sR2}, {sXCD}, {sCB}")
    elif OPT["rot2"] == 2: c(f"s_mov_b32 {sR2}, {sXCD}")
    else: c(f"s_mov_b32 {sR2}, 0")
    c(f"s_mul_i32 {sTT}, {sR2}, 37"); c(f"s_lshr_b32 {sTT}, {sTT}, 8"); c(f"s_mul_i32 {sTT}, {sTT}, 7"); c(f"s_sub_u32 {sR2}, {sR2}, {sTT}")
def h_base(c, dst, tmp):
    c(f"s_lshl_b32 {tmp}, {sAa}, 1"); c(f"s_and_b32 {sTT}, {sW}, 1"); c(f"s_add_u32 {tmp}, {tmp}, {sTT}")
    c(f"s_lshl_b32 {sTT}, {sXCD}, 2"); c(f"s_add_u32 {sTT}, {sTT}, {tmp}")
    c(f"s_mul_i32 {dst}, {sTT}, 229376"); c(f"s_lshl_b32 {tmp}, {sFB}, 14"); c(f"s_add_u32 {dst}, {dst}, {tmp}")
    c(f"s_lshr_b32 {tmp}, {sW}, 1"); c(f"s_lshl_b32 {tmp}, {tmp}, 13"); c(f"s_add_u32 {dst}, {dst}, {tmp}"); c(f"s_add_u32 {dst}, {dst}, {WS_H}")
def f32_consts(c, F, fq, fh4, tt, cs):
    c(f"v_mul_f32 {tt[0]}, {fl(1/32)}, {fq}"); c(f"v_mul_f32 {tt[1]}, {tt[0]}, {fh4}")
    c(f"v_and_b32 {tt[2]}, 1, {vL}"); c(f"v_mul_u32_u24 {tt[2]}, 0x8000, {tt[2]}"); c(f"v_lshl_or_b32 {tt[2]}, {tt[2]}, 16, {tt[2]}")
    for r in range(4):
        c(f"v_cos_f32 {cs[0]}, {tt[1]}"); c(f"v_sin_f32 {cs[1]}, {tt[1]}")
        if r < 3: c(f"v_add_f32 {tt[1]}, {tt[1]}, {tt[0]}")
        c(f"v_cvt_pk_bf16_f32 {F[0][0][r]}, {cs[0]}, {cs[1]}")
        c(f"v_cvt_pk_bf16_f32 {F[0][1][r]}, -{cs[1]}, {cs[0]}")
        for p in range(2): c(f"v_xor_b32 {F[1][p][r]}, {tt[2]}, {F[0][p][r]}")
sAD, sKH, sOB = sU2, sU3, sBaseA
def out_addr(c, vOA, tmp):
    c(f"s_and_b32 {sAD}, {sW}, 1"); c(f"s_lshr_b32 {sKH}, {sW}, 1")
    c(f"v_lshlrev_b32 {tmp[0]}, 5, {vHH}"); c(f"v_and_b32 {tmp[1]}, 1, {vH}"); c(f"v_lshl_add_u32 {tmp[0]}, {tmp[1]}, 4, {tmp[0]}"); c(f"v_add_u32 {tmp[0]}, {tmp[0]}, {vRp}")
    c(f"v_lshlrev_b32 {tmp[1]}, 4, {vL3}"); c(f"v_lshl_add_u32 {vOA[0]}, {tmp[0]}, 10, {tmp[1]}")
    c(f"v_add_u32 {vOA[1]}, {65536-1024}, {vOA[0]}")
    c(f"s_lshl_b32 {sOB}, {sXCD}, 8"); c(f"s_lshl_b32 {sT[0]}, {sKH}, 7"); c(f"s_add_u32 {sOB}, {sOB}, {sT[0]}"); c(f"s_lshl_b32 {sT[0]}, {sHQ}, 2"); c(f"s_add_u32 {sOB}, {sOB}, {sT[0]}")
    c(f"s_lshl_b32 {sT[3]}, {sOB}, 3"); c(f"s_add_u32 {sT[3]}, {sT[3]}, {WS_ST}")
    c(f"s_lshl_b32 {sOB}, {sOB}, 10"); c(f"s_lshl_b32 {sT[0]}, {sCB}, 7"); c(f"s_add_u32 {sOB}, {sOB}, {sT[0]}"); c(f"s_lshl_b32 {sT[0]}, {sAD}, 6"); c(f"s_add_u32 {sOB}, {sOB}, {sT[0]}")
def diag_out(st):
    if not DIAG: return
    st.wait_all(force=True)
    stamp(st)
    st.wait_all(force=True)
    st.I(f"s_lshl_b32 {sT[0]}, s2, 3"); st.I(f"s_add_u32 {sT[0]}, {sT[0]}, {sW8}"); st.I(f"s_lshl_b32 {sT[0]}, {sT[0]}, 6"); st.I(f"s_add_u32 {sT[0]}, {sT[0]}, {WS_DIAG}")
    st.I("s_mov_b64 exec, 1")
    for k in range(st.nstamp):
        st.I(f"v_mov_b32 {t[0]}, s{100-2*k}")
        st.I(f"buffer_store_dword {t[0]}, {vZ}, {SWS}, {sT[0]} offen offset:{4*k}")

C = Stream(); C.nstamp = 0
V = Pool("v", 1, 254)
I = C.I
I("s_cmp_ge_u32 s2, 256")
I("s_cbranch_scc1 L_end")
stamp(C)
if OPT.get("badmap") == 2:
    I("s_lshr_b32 s3, s2, 3"); I("s_lshr_b32 s4, s2, 5"); I("s_add_u32 s3, s3, s4"); I("s_and_b32 s3, s3, 7"); I("s_xor_b32 s2, s2, s3")
if OPT.get("badmap") == 1:
    I("s_lshr_b32 s3, s2, 5"); I("s_and_b32 s2, s2, 31"); I("s_lshl_b32 s2, s2, 3"); I("s_or_b32 s2, s2, s3")
I("s_load_dwordx16 s[64:79], s[0:1], 0")
I("s_load_dwordx2 s[80:81], s[0:1], 64")
vL = V.alloc(); vSY = V.alloc(2); t = V.alloc(8); vW2D = V.alloc(4)
vL15 = V.alloc(); vH = V.alloc(); vL16 = V.alloc(); vZ = V.alloc(); vTAG = V.alloc()
vHH = V.alloc(); vL31 = V.alloc(); vRp = V.alloc(); vTRL = V.alloc(); vRowOff = V.alloc(); vL3 = V.alloc()
vPG = V.alloc(); vPME = V.alloc(); vE = V.alloc(); vD8 = V.alloc(); vTRa = V.alloc()
I(f"v_lshrrev_b32 {t[0]}, 6, v0"); I(f"v_and_b32 {vL3}, 3, v0")
I(f"v_and_b32 {vL}, 63, v0")
I(f"v_readfirstlane_b32 {sW8}, {t[0]}")
I(f"v_mov_b32 {vZ}, 0")
I(f"v_lshlrev_b32 {vL16}, 4, {vL}")
I(f"v_lshlrev_b32 {vPME}, 2, {t[0]}"); I(f"v_add_u32 {vPME}, {L_PROG}, {vPME}")
I(f"ds_write_b32 {vPME}, {vZ}")
I(f"s_lshr_b32 {sJ}, s2, 3"); I(f"s_and_b32 {sXCD}, s2, 7")
I("s_getpc_b64 s[4:5]")
C.label("L_pc")
I("s_and_b32 s5, s5, 0xffff")
I("s_mov_b32 s6, L_code_end-L_pc"); I("s_mov_b32 s7, 0x20000")
I(f"s_lshl_b32 {sT[0]}, {sJ}, 11"); I(f"s_lshl_b32 {sT[1]}, {sW8}, 8"); I(f"s_add_u32 {sT[0]}, {sT[0]}, {sT[1]}")
I(f"v_lshlrev_b32 {t[1]}, 7, {vL}")
I("s_mov_b64 exec, 3")
I(f"buffer_load_dword v255, {t[1]}, s[4:7], {sT[0]} offen", nodef=True)
I("s_mov_b64 exec, -1")
I(f"s_and_b32 {sW}, {sW8}, 3")
I(f"s_lshr_b32 {sCB}, {sJ}, 2"); I(f"s_and_b32 {sHQ}, {sJ}, 3")
I(f"s_lshl_b32 {sW12}, {sW}, 12"); I(f"s_lshl_b32 {sW13}, {sW}, 13")
I(f"s_and_b32 {sAa}, {sJ}, 1"); I(f"s_lshr_b32 {sFB}, {sJ}, 1")
I(f"v_and_b32 {vL15}, 15, v0")
I(f"v_lshrrev_b32 {vH}, 4, {vL}")
I(f"v_lshrrev_b32 {vHH}, 5, {vL}"); I(f"v_and_b32 {vL31}, 31, {vL}"); I(f"v_bfe_u32 {vRp}, {vL}, 2, 2")
I(f"v_lshlrev_b32 {vPG}, 2, {vL3}"); I(f"v_add_u32 {vPG}, {L_PROG}, {vPG}")
I(f"s_cmp_lt_u32 {sW8}, 4")
I("s_cbranch_scc1 L_G")
VG = copy.deepcopy(V); VH = copy.deepcopy(V)
G = C.fork(); G.nstamp = C.nstamp; G.epoch = 0
H = C.fork(); H.nstamp = C.nstamp; H.epoch = 0

S = H; V = VH; I = H.I
prio(S, "pH")
vXD = V.alloc(4); vW1D = V.alloc(4)
I(f"v_lshlrev_b32 {t[0]}, 14, {vHH}")
I(f"v_bfe_u32 {t[1]}, {vL}, 3, 2"); I(f"v_lshl_add_u32 {t[0]}, {t[1]}, 10, {t[0]}")
I(f"v_and_b32 {t[3]}, 7, {vL}"); I(f"v_xor_b32 {t[1]}, {t[3]}, {vH}")
I(f"v_lshl_add_u32 {vXD[0]}, {t[1]}, 4, {t[0]}")
I(f"v_xor_b32 {t[2]}, 64, {vXD[0]}")
I(f"v_add_u32 {vXD[1]}, {31744}, {t[2]}"); I(f"v_add_u32 {vXD[2]}, {2*31744}, {vXD[0]}"); I(f"v_add_u32 {vXD[3]}, {3*31744}, {t[2]}")
I(f"v_mul_u32_u24 {t[0]}, 3584, {vH}")
I(f"v_xor_b32 {t[1]}, {vRp}, {vH}")
I(f"v_lshl_add_u32 {t[0]}, {t[1]}, 6, {t[0]}")
I(f"v_lshl_add_u32 {vW1D[0]}, {vL3}, 4, {t[0]}")
for m in range(1, 4): I(f"v_add_u32 {vW1D[m]}, {m*(4*3584-1024)}, {vW1D[0]}")
I(f"s_lshl_b32 {sBaseA}, {sXCD}, 8"); I(f"s_and_b32 {sT[0]}, {sW}, 1"); I(f"s_lshl_b32 {sT[0]}, {sT[0]}, 7"); I(f"s_add_u32 {sBaseA}, {sBaseA}, {sT[0]}")
I(f"s_lshl_b32 {sT[0]}, {sAa}, 3"); I(f"s_add_u32 {sBaseA}, {sBaseA}, {sT[0]}")
I(f"s_lshr_b32 {sT[0]}, {sW}, 1"); I(f"s_lshl_b32 {sT[0]}, {sT[0]}, 2"); I(f"s_add_u32 {sBaseA}, {sBaseA}, {sT[0]}")
I(f"s_lshl_b32 {sBaseA}, {sBaseA}, 10")
I(f"s_mul_i32 {sBaseB}, {sW}, {16*3584}"); I(f"s_lshl_b32 {sT[0]}, {sFB}, 8"); I(f"s_add_u32 {sBaseB}, {sBaseB}, {sT[0]}")
I(f"s_mov_b32 {sIdx}, {sXCD}")
I(f"s_lshr_b32 {sT[0]}, {sXCD}, 1"); I(f"s_lshl_b32 {sT[0]}, {sT[0]}, 4"); I(f"s_and_b32 {sT[1]}, {sJ}, 15"); I(f"s_add_u32 {sT[0]}, {sT[0]}, {sT[1]}")
I(f"s_and_b32 {sT[1]}, {sXCD}, 1"); I(f"s_lshl_b32 {sT[1]}, {sT[1]}, 1"); I(f"s_lshr_b32 {sT[2]}, {sJ}, 4"); I(f"s_add_u32 {sT[1]}, {sT[1]}, {sT[2]}")
I(f"s_lshl_b32 {sT[1]}, {sT[1]}, 9"); I(f"s_add_u32 {sT[0]}, {sT[0]}, {sT[1]}"); I(f"s_lshl_b32 {sT[1]}, {sW}, 7"); I(f"s_add_u32 {sT[0]}, {sT[0]}, {sT[1]}")
I(f"s_mul_i32 {sT[6]}, {sT[0]}, 514"); I(f"s_add_u32 {sT[7]}, {sT[6]}, {64*514}")
wq = V.alloc(8); wn = V.alloc(2); wo = V.alloc(8); vL8 = V.alloc(); vWN = V.alloc(); vWG = V.alloc(); vPs = V.alloc(2)
I(f"v_lshlrev_b32 {vL8}, 3, {vL}")
I(f"v_and_b32 {t[0]}, 1, {vL}"); I(f"v_mul_u32_u24 {vWN}, {64*514}, {t[0]}")
S.wait_all(vm=False, force=True)
stamp(S)
srd(S, SA, 64, 65, 2048 * 1024); srd(S, SB, 72, 73, 512 * 3584)
I(f"s_cmp_lt_u32 {sJ}, 28"); I("s_cselect_b32 s14, s14, 0"); I("s_cselect_b32 s18, s18, 0")
srd(S, SX, 66, 67, 2048 * 514); srd(S, SOUT, 68, 69, 2048 * 514)
srd(S, SWS, 80, 81, WS_SIZE)
I("s_barrier")
def g1_dma(st, c, between=None):
    for which, (vD, sr, base, cm) in enumerate(((vW1D, SB, sBaseB, 64 * 3584), (vXD, SA, sBaseA, 128))):
        st.I(f"s_mul_i32 {sB0}, {sIdx}, {cm}"); st.I(f"s_add_u32 {sB0}, {sB0}, {base}")
        st.I(f"s_add_u32 m0, {sW12}, {(c & 3) * 32768 + (1 - which) * 16384}")
        for m in range(4):
            st.I(f"buffer_load_dwordx4 {vD[m]}, {sr}, {sB0} offen offset:{m*1024} lds", tag=f"g1c{c}")
            if between: between()
    st.I(f"s_add_u32 {sIdx}, {sIdx}, 1"); st.I(f"s_and_b32 {sIdx}, {sIdx}, 7")
I(f"buffer_load_dword {vE}, {vZ}, {SWS}, 0 offen sc1")
def w_loads():
    for rho in range(2):
        I(f"buffer_load_dwordx2 {wq[4*rho:4*rho+2]}, {vL8}, {SX}, {sT[6+rho]} offen")
        I(f"buffer_load_dwordx2 {wq[4*rho+2:4*rho+4]}, {vL8}, {SOUT}, {sT[6+rho]} offen")
    I("s_mov_b64 exec, 3")
    I(f"buffer_load_ushort {wn[0]}, {vWN}, {SX}, {sT[6]} offen offset:512")
    I(f"buffer_load_ushort {wn[1]}, {vWN}, {SOUT}, {sT[6]} offen offset:512")
    I("s_mov_b64 exec, -1")
if OPT.get("wfirst", 0): w_loads()
g1_dma(S, 0)
if not OPT.get("wfirst", 0): w_loads()
g1_dma(S, 1)
Hstart_end = len(S.lines)
srd(S, SX, 64, 65, 2048 * 1024); srd(S, SW2, 74, 75, 1792 * 1024)
fq = V.alloc(); fh4 = V.alloc()
F32 = [[[V.alloc(4) for p in range(2)] for tt in range(2)] for tau in range(2)]
F64 = [[V.alloc(4) for p in range(2)] for u in range(4)]
TFc = V.alloc(8); TFs = V.alloc(8); TIc = V.alloc(8); TIs = V.alloc(8)
ft = V.alloc(8); vXCa = V.alloc(4); mm = V.alloc(4)
vXCr = V.alloc(); vKs = V.alloc(); vWr = V.alloc(); vST = V.alloc(); vMW = V.alloc(); vPXC = V.alloc(); vPF = V.alloc(); pf1 = V.alloc()
sXC0, sPFb, sGF, sHP = sU0, sU1, sU4, sU3
q = Q(); c = q.I
c(f"v_lshrrev_b32 {ft[0]}, 2, {vL}"); c(f"v_lshl_add_u32 {ft[0]}, {vL3}, 4, {ft[0]}"); c(f"v_mul_u32_u24 {ft[0]}, {GP}, {ft[0]}")
c(f"s_lshl_b32 {sT[1]}, {sW}, 3"); c(f"s_add_u32 {sT[1]}, {sT[1]}, {L_GA + 32}"); c(f"v_add_u32 {vWG}, {sT[1]}, {ft[0]}")
c(f"v_mov_b32 {vPs[0]}, 0x05040100"); c(f"v_mov_b32 {vPs[1]}, 0x07060302")
misc_lane(c, ft)
c(f"s_add_u32 {sQ}, {sJ}, 4"); c(f"s_and_b32 {sQ}, {sQ}, 31")
c(f"s_lshl_b32 {sT[0]}, {sXCD}, 5"); c(f"s_add_u32 {sQ}, {sQ}, {sT[0]}")
c(f"s_lshr_b32 {sPFb}, {sJ}, 3"); c(f"s_mul_i32 {sPFb}, {sPFb}, {448*1024}"); c(f"s_and_b32 {sT[0]}, {sJ}, 7"); c(f"s_lshl_b32 {sT[0]}, {sT[0]}, 13")
c(f"s_add_u32 {sPFb}, {sPFb}, {sT[0]}"); c(f"s_lshr_b32 {sT[0]}, {sW12}, 1"); c(f"s_add_u32 {sPFb}, {sPFb}, {sT[0]}")
c(f"v_lshlrev_b32 {vPF}, 7, {vL}")
h_base(c, sHP, sT[0])
c(f"s_lshl_b32 {sGF}, {sXCD}, 8"); c(f"s_add_u32 {sGF}, {sGF}, {WS_GF}")
n_addr1 = len(q.l)
fk, a0, fw16 = ft[5], ft[6], ft[7]
c(f"v_lshrrev_b32 {ft[0]}, 2, {vL}"); c(f"v_xor_b32 {ft[1]}, {vH}, {vL3}")
c(f"v_lshlrev_b32 {ft[0]}, 7, {ft[0]}"); c(f"v_lshl_add_u32 {vXCa[0]}, {ft[1]}, 4, {ft[0]}")
for m in range(1, 4): c(f"v_add_u32 {vXCa[m]}, {m*1024}, {vXCa[0]}")
c(f"s_lshr_b32 {sXC0}, {sQ}, 1"); c(f"s_lshl_b32 {sXC0}, {sXC0}, 15"); c(f"s_and_b32 {sT[0]}, {sQ}, 1"); c(f"s_lshl_b32 {sT[0]}, {sT[0]}, 6")
c(f"s_add_u32 {sXC0}, {sXC0}, {sT[0]}"); c(f"s_add_u32 {sXC0}, {sXC0}, {sW13}"); c(f"s_add_u32 {sXC0}, {sXC0}, {WS_X1}")
c(f"v_and_b32 {ft[1]}, 1, {vH}"); c(f"v_xor_b32 {ft[0]}, {vRp}, {ft[1]}")
c(f"v_lshlrev_b32 {ft[1]}, 6, {vL15}"); c(f"v_lshl_add_u32 {ft[1]}, {ft[0]}, 4, {ft[1]}"); c(f"v_add_u32 {ft[1]}, {L_XC}, {ft[1]}")
c(f"v_lshl_add_u32 {vXCr}, {vHH}, 11, {ft[1]}")
c(f"v_xor_b32 {ft[1]}, 32, {ft[1]}"); c(f"v_lshl_add_u32 {ft[1]}, {vHH}, 10, {ft[1]}"); c(f"v_add_u32 {vWr}, {sW12}, {ft[1]}")
c(f"s_lshl_b32 {sT[0]}, {sW}, 4")
c(f"v_lshl_add_u32 {vKs}, {vH}, 8, {vL15}"); c(f"v_add_u32 {vKs}, {sT[0]}, {vKs}")
c(f"v_cvt_f32_u32 {fw16}, {sT[0]}")
c(f"s_and_b32 {sT[0]}, {sTT}, 3"); c(f"s_lshl_b32 {sT[0]}, {sT[0]}, 2"); c(f"s_lshl_b32 {sT[1]}, {sXCD}, 8"); c(f"s_add_u32 {sT[0]}, {sT[0]}, {sT[1]}")
c(f"s_lshl_b32 {sT[0]}, {sT[0]}, 3"); c(f"s_add_u32 {sT[0]}, {sT[0]}, {WS_ST}")
c(f"v_lshlrev_b32 {ft[0]}, 3, {vRowOff}"); c(f"v_lshl_add_u32 {ft[0]}, {vHH}, 10, {ft[0]}"); c(f"v_add_u32 {vST}, {sT[0]}, {ft[0]}")
c(f"s_lshl_b32 {sT[0]}, {sW}, 8"); c(f"s_add_u32 {sT[0]}, {sT[0]}, {L_MEAN}"); c(f"v_lshl_add_u32 {vMW}, {vL}, 2, {sT[0]}")
c(f"s_lshl_b32 {sT[0]}, {sXCD}, 9"); c(f"s_add_u32 {sT[0]}, {sT[0]}, {WS_XCC}"); c(f"v_lshl_add_u32 {vPXC}, {vL31}, 4, {sT[0]}")
c(f"v_cvt_f32_u32 {fq}, {vL15}"); c(f"v_lshlrev_b32 {ft[0]}, 2, {vH}"); c(f"v_cvt_f32_u32 {fh4}, {ft[0]}")
f32_consts(c, F32[0], fq, fh4, ft[0:3], ft[3:5])
for tt in range(2):
    for p in range(2):
        for r in range(4):
            if r % 2 == 0: c(f"v_mov_b32 {F32[1][tt][p][r]}, {F32[0][tt][p][r]}")
            else: c(f"v_xor_b32 {F32[1][tt][p][r]}, 0x80008000, {F32[0][tt][p][r]}")
c(f"v_add_f32 {fk}, {fw16}, {fq}"); c(f"v_mul_f32 {fk}, {fl(1/64)}, {fk}")
c(f"v_mul_f32 {a0}, {fk}, {fh4}")
for u in range(4):
    for r in range(4):
        c(f"v_fmamk_f32 {ft[0]}, {fk}, {fl(16*u+r)}, {a0}")
        c(f"v_cos_f32 {ft[1]}, {ft[0]}"); c(f"v_sin_f32 {ft[2]}, {ft[0]}")
        c(f"v_mul_f32 {ft[3]}, {fl(1/32)}, {ft[0]}")
        c(f"v_cvt_pk_bf16_f32 {F64[u][0][r]}, {ft[1]}, {ft[2]}")
        c(f"v_cvt_pk_bf16_f32 {F64[u][1][r]}, -{ft[2]}, {ft[1]}")
        if u < 2:
            c(f"v_cos_f32 {TFc[4*u+r]}, {ft[3]}"); c(f"v_sin_f32 {TFs[4*u+r]}, {ft[3]}")
c(f"v_add_f32 {ft[4]}, {fw16}, {fh4}")
for tt in range(2):
    c(f"v_add_f32 {ft[5]}, {fl(16.0*tt)}, {fq}"); c(f"v_mul_f32 {ft[5]}, {fl(1/2048)}, {ft[5]}")
    c(f"v_mul_f32 {ft[6]}, {ft[5]}, {ft[4]}")
    for r in range(4):
        c(f"v_fmamk_f32 {ft[0]}, {ft[5]}, {fl(r)}, {ft[6]}")
        c(f"v_cos_f32 {TIc[4*tt+r]}, {ft[0]}"); c(f"v_sin_f32 {TIs[4*tt+r]}, {ft[0]}")
S.fq = q.l
S.fill(8)
stamp(S, 2)
fb = lambda: S.fill(OPT.get("hf", 5))
make_tag(S)
for rho in range(2):
    for cc in range(4):
        I(f"v_perm_b32 {wo[2*cc+rho]}, {wq[4*rho+2+(cc>>1)]}, {wq[4*rho+(cc>>1)]}, {vPs[cc&1]}")
for cc in range(4): I(f"ds_write_b64 {vWG}, {wo[2*cc:2*cc+2]} offset:{64*cc}")
I(f"v_lshl_or_b32 {wn[0]}, {wn[1]}, 16, {wn[0]}")
I(f"s_lshl_b32 {sT[3]}, {sW}, 3"); I(f"s_add_u32 {sT[3]}, {sT[3]}, {L_WN}"); I(f"v_lshl_add_u32 {t[1]}, {vL}, 2, {sT[3]}")
I("s_mov_b64 exec, 3")
I(f"ds_write_b32 {t[1]}, {wn[0]}")
I("s_mov_b64 exec, -1")
V.release(wq, wn, wo, vL8, vWN, vWG, vPs)
stamp(S, 2)
S.wait_tag("g1c0")
post(S, "H_c0")
stamp(S, 2)
g1_dma(S, 2, fb)
S.wait_tag("g1c1"); post(S, "H_c1")
g1_dma(S, 3, fb)
stamp(S)
npf = [0]
def pf(n):
    for _ in range(n):
        if OPT["pf"] and npf[0] < 7:
            I(f"s_add_u32 {sS0}, {sXCD}, {npf[0]}"); I(f"s_sub_u32 {sB0}, {sS0}, 7"); I(f"s_cmp_ge_u32 {sS0}, 7"); I(f"s_cselect_b32 {sS0}, {sB0}, {sS0}")
            I(f"s_lshl_b32 {sS0}, {sS0}, 16"); I(f"s_add_u32 {sS0}, {sS0}, {sPFb}")
            I("s_mov_b64 exec, 0xffff")
            I(f"buffer_load_dword v255, {vPF}, {SW2}, {sS0} offen", nodef=True)
            I("s_mov_b64 exec, -1")
            npf[0] += 1
S.wait_tag("g1c2"); post(S, "H_c2")
S.fill(max(0, n_addr1 - 8 - 16 * OPT.get("hf", 5)))
pf(OPT.get("pfa", 0))
if OPT.get("pt"):
    I(f"s_lshl_b32 {sS0}, s2, 2"); I(f"s_add_u32 {sS0}, {sS0}, {sW}"); I(f"s_mul_i32 {sS0}, {sS0}, {14*128}")
    I("s_mov_b64 exec, 0x3fff")
    I(f"buffer_load_dword v255, {vPF}, {SW2}, {sS0} offen", nodef=True)
    I("s_mov_b64 exec, -1")
stamp(S)
LD_L1 = f"buffer_load_dword {pf1}, {vZ}, {SWS}, {sGF} offen sc1"
LD_ST = f"buffer_load_dwordx2 {mm[0:2]}, {vST}, {SWS}, 0 offen sc1"
LD_XC = f"buffer_load_dword {mm[2]}, {vPXC}, {SWS}, 0 offen sc1"
def chunk(cc):
    await_(S, GRP_G, f"G_rel{cc-4}")
    g1_dma(S, cc, fb)
    pf(OPT.get("pfb", 2))
    if cc == 4 and OPT["hmode"] == 2: I(f"buffer_load_dword v255, {vPF}, {SWS}, {sHP} offen", nodef=True)
    S.wait_tag(f"g1c{cc-1}"); post(S, f"H_c{cc-1}")
chunk(4)
I(LD_ST); I(LD_XC)
chunk(5)
poll_check(S, [LD_ST], mm[1])
I(f"v_and_b32 {mm[0]}, 0xffff0000, {mm[0]}")
I(f"ds_write_b32 {vMW}, {mm[0]}")
k = newlab()
I(f"s_getreg_b32 {sT[3]}, hwreg(HW_REG_XCC_ID, 0, 4)")
I(f"s_mov_b32 {sSPIN}, 0")
I(f"v_mov_b32 {mm[3]}, {mm[2]}")
S.label(f"L_xc{k}")
I(f"v_subrev_u32 {mm[3]}, {sTAG}, {mm[2]}")
I(f"v_cmp_lt_u32 vcc, 15, {mm[3]}")
S.nop(1)
I(f"s_cbranch_vccnz L_xcslow{k}")
S.label(f"L_xcgo{k}")
Fx = side(f"L_xcslow{k}")
Fx.I("s_sleep 8"); Fx.I(LD_XC); Fx.wait_all(force=True)
Fx.I(f"s_add_u32 {sSPIN}, {sSPIN}, 1"); Fx.I(f"s_cmp_lt_u32 {sSPIN}, 100000"); Fx.I(f"s_cbranch_scc1 L_xc{k}"); Fx.I(f"s_branch L_xcgo{k}")
I(f"v_cmp_ne_u32 vcc, {sT[3]}, {mm[3]}")
S.nop(1)
I(f"s_cmp_lg_u64 vcc, 0"); I(f"s_cselect_b32 {sMODE}, 1, {OPT.get('forceslow', 0)}")
I(f"v_mov_b32 {mm[3]}, {sMODE}")
I(f"ds_write_b32 {vMW}, {mm[3]} offset:1024")
XAT = OPT["xat"]
if XAT == 7: chunk(6)
I(LD_L1)
chunk(XAT)
if XAT == 7: S.wait_tag("g1c7"); post(S, "H_c7")
stamp(S)
poll_check(S, [LD_L1], pf1)
I(f"s_cmp_lg_u32 {sQ}, 0"); I("s_cbranch_scc1 L_nown2")
I(f"s_lshr_b32 {sB0}, {sW12}, 1"); I(f"s_add_u32 m0, {sB0}, {L_EX}"); I(f"s_add_u32 {sB0}, {sB0}, {WS_WN}")
for m in range(2): I(f"buffer_load_dwordx4 {vL16}, {SWS}, {sB0} offen offset:{m*1024} sc1 lds", counted=False)
S.label("L_nown2")
I(f"s_add_u32 m0, {sW12}, {L_XC}")
for m in range(4): I(f"buffer_load_dwordx4 {vXCa[m]}, {SWS}, {sXC0} offen offset:{m*1024} sc1 lds", tag="xc")
stamp(S)
if XAT == 6: chunk(7)
S.fill_flush()
pf(7)
def h_w2(p):
    await_(S, GRP_G, f"G_rel{4+p}")
    w2_dma(S, p)
NWH = OPT.get("nwh", 1)
for p in range(NWH): h_w2(p)
S.wait_tag("xc")
post(S, "H_xc")
stamp(S)
V.release(vXD, vW1D, vXCa, mm, vST, vMW, vPXC, vPF)
FR = [[V.alloc(4) for u in range(4)] for tt in range(2)]
DD = [[V.alloc(4) for p in range(2)] for tt in range(2)]
PP = [V.alloc(4) for tt in range(2)]
Wv = V.alloc(8); vLX = V.alloc()
I(f"v_add_u32 {vLX}, {S4}, {vL16}")
await_(S, GRP_H, "H_xc")
prio(S, "pHc")
def big_step(base, mid=None):
    for u in range(4):
        for tt in range(2):
            if base == L_XC: I(f"ds_read_b128 {FR[tt][u]}, {vXCr} offset:{u*4096 + tt*1024}")
            else: I(f"ds_read_b128 {FR[tt][u]}, {vLX} offset:{base - S4 + (tt*4+u)*1024}")
    if mid: mid()
    for u in range(4):
        for tt in range(2):
            for p in range(2):
                I(f"v_mfma_f32_16x16x32_bf16 {DD[tt][p]}, {FR[tt][u]}, {F64[u][p]}, {'0' if u == 0 else DD[tt][p]}")
def mid1():
    I(f"s_or_b32 {sT[0]}, s2, {sW}"); I(f"s_cmp_lg_u32 {sT[0]}, 0"); I("s_cbranch_scc1 L_noepoch")
    flag(S, "0", counted=False)
    S.label("L_noepoch")
    for tau in range(2): I(f"ds_read_b128 {Wv[4*tau:4*tau+4]}, {vWr} offset:{tau*2048}")
big_step(L_XC, mid1)
if XAT == 6: S.wait_tag("g1c7"); post(S, "H_c7")
for tt in range(2):
    for r in range(4): cmul_tw(S, DD[tt][0][r], DD[tt][1][r], TFc[4*tt+r], TFs[4*tt+r], t[2*(r&1):2*(r&1)+2], PP[tt][r])
for tau in range(2):
    for p in range(2):
        for tt in range(2):
            I(f"v_mfma_f32_16x16x32_bf16 {DD[tau][p]}, {F32[tau][tt][p]}, {PP[tt]}, {'0' if tt == 0 else DD[tau][p]}")
stamp(S, 1)
reserve(S, "H_fr"); reserve(S, "H_sp1")
I(f"s_cmp_eq_u32 {sQ}, 0")
I("s_cbranch_scc1 L_special")
F = S.fork(); tail.append(F)
for tau in range(2):
    for r in range(4):
        wr_, wi_ = t[4+2*(r&1)], t[5+2*(r&1)]; o = t[2*(r&1):2*(r&1)+2]
        ur, ui = DD[tau][0][r], DD[tau][1][r]
        I(f"v_lshlrev_b32 {wr_}, 16, {Wv[4*tau+r]}"); I(f"v_and_b32 {wi_}, 0xffff0000, {Wv[4*tau+r]}")
        I(f"v_mul_f32 {o[0]}, {ur}, {wr_}"); I(f"v_mul_f32 {o[1]}, {ur}, {wi_}")
        I(f"v_fma_f32 {o[0]}, -{ui}, {wi_}, {o[0]}"); I(f"v_fmac_f32 {o[1]}, {ui}, {wr_}")
        I(f"v_cvt_pk_bf16_f32 {PP[tau][r]}, {o[0]}, -{o[1]}")
S.label("L_special_done")
F.label("L_special")
sa = ft
svp = [TFc[2*k:2*k+2] if k < 4 else TFs[2*k-8:2*k-6] for k in range(8)]
PQ = [FR[k>>2][k&3] for k in range(8)]
post(F, "H_fr", alias=True)
F.I(f"v_lshlrev_b32 {sa[0]}, 3, {vKs}"); F.I(f"v_add_u32 {sa[0]}, {L_SP}, {sa[0]}")
F.I(f"s_add_u32 {sT[0]}, {sW13}, {3*32768}"); F.I(f"v_add_u32 {sa[1]}, {sT[0]}, {vL16}")
await_(F, GRP_G, "G_rel6")
for k in range(8): F.I(f"ds_read_b128 {PQ[k]}, {sa[1]} offset:{k*1024}")
await_(F, GRP_H, "H_fr")
for tau in range(2):
    for r in range(4):
        F.I(f"ds_write2_b32 {sa[0]}, {DD[tau][0][r]}, {DD[tau][1][r]} offset0:0 offset1:1")
        if not (tau == 1 and r == 3): F.I(f"v_add_u32 {sa[0]}, {512 if r < 3 else 13*512}, {sa[0]}")
post(F, "H_sp1", alias=True)
for k in range(8):
    F.I(f"v_sub_u32 {Wv[k]}, {2048 - 64*(16*(k>>2)+(k&3))}, {vKs}"); F.I(f"v_and_b32 {Wv[k]}, 2047, {Wv[k]}")
    F.I(f"v_lshlrev_b32 {Wv[k]}, 3, {Wv[k]}"); F.I(f"v_add_u32 {Wv[k]}, {L_SP}, {Wv[k]}")
await_(F, GRP_H, "H_sp1")
for k in range(8): F.I(f"ds_read_b64 {svp[k]}, {Wv[k]}")
for k in range(8):
    ur, ui = DD[k>>2][0][k&3], DD[k>>2][1][k&3]; pr, pi = PQ[k][0], PQ[k][1]
    F.I(f"v_mul_f32 {Wv[k]}, {pr}, {ur}"); F.I(f"v_fma_f32 {Wv[k]}, -{pi}, {ui}, {Wv[k]}")
    F.I(f"v_mul_f32 {ur}, {pi}, {ur}"); F.I(f"v_fmac_f32 {ur}, {pr}, {ui}")
for k in range(8):
    yi = DD[k>>2][0][k&3]; vr, vi = svp[k][0], svp[k][1]; qr, qi = PQ[k][2], PQ[k][3]
    F.I(f"v_fmac_f32 {Wv[k]}, {qr}, {vr}"); F.I(f"v_fmac_f32 {Wv[k]}, {qi}, {vi}")
    F.I(f"v_fmac_f32 {yi}, {qi}, {vr}"); F.I(f"v_fma_f32 {yi}, -{qr}, {vi}, {yi}")
    F.I(f"v_cvt_pk_bf16_f32 {PP[k>>2][k&3]}, {Wv[k]}, -{yi}")
F.wait_all(vm=False, force=True)
F.nop(2)
F.I("s_branch L_special_done")
for tt in range(2):
    for p in range(2):
        for tau in range(2):
            I(f"v_mfma_f32_16x16x32_bf16 {DD[tt][p]}, {PP[tau]}, {F32[tt][tau][p]}, {'0' if tau == 0 else DD[tt][p]}")
if NWH: S.wait_tag(f"w2p{NWH-1}")
P3 = [FR[0][0], FR[0][1]]
I(f"s_lshr_b32 {sT[0]}, {sW12}, 2"); I(f"v_add_u32 {t[6]}, {sT[0]}, {vLX}")
for tt in range(2):
    for r in range(4): cmul_tw(S, DD[tt][0][r], DD[tt][1][r], TIc[4*tt+r], TIs[4*tt+r], t[2*(r&1):2*(r&1)+2], P3[tt][r])
    I(f"ds_write_b128 {t[6]}, {P3[tt]} offset:{L_EX - S4 + tt*4096}")
post(S, "H_ex")
aw_issue(S, GRP_H)
I(f"s_lshl_b32 {sT[0]}, {sQ}, 13"); I(f"s_lshr_b32 {sT[1]}, {sW12}, 2"); I(f"s_add_u32 {sT[0]}, {sT[0]}, {sT[1]}"); I(f"s_add_u32 {sT[0]}, {sT[0]}, {WS_Y1}")
I(f"s_add_u32 {sT[1]}, {sT[0]}, 4096")
sF3 = sF1
I(f"s_lshl_b32 {sF3}, {sW}, 8"); I(f"s_add_u32 {sF3}, {sF3}, {sQ}"); I(f"s_lshl_b32 {sF3}, {sF3}, 4"); I(f"s_add_u32 {sF3}, {sF3}, {WS_F3}")
aw_check(S, GRP_H, "H_ex")
big_step(L_EX)
prio(S, "pH2")
for p in range(2):
    for tt in range(2):
        for e in range(2): I(f"v_cvt_pk_bf16_f32 {PP[p][2*tt+e]}, {DD[tt][p][2*e]}, {DD[tt][p][2*e+1]}")
    I(f"buffer_store_dwordx4 {PP[p]}, {vL16}, {SWS}, {sT[p]} offen sc1", tag="y1st")
stamp(S)
V.release(TFc, TFs, TIc, TIs, Wv, vKs, vWr, fq, fh4, vXCr)
for u in range(4): V.release(F64[u][0], F64[u][1], FR[0][u], FR[1][u])
for a in range(2):
    for b in range(2): V.release(DD[a][b], F32[a][b][0], F32[a][b][1])
sY = sBaseB
GM = [V.alloc(4) for k in range(16)]
vYD = V.alloc(4); vOA = V.alloc(2); vYR = V.alloc(2); vPF3 = V.alloc()
gq = Q(); c = gq.I
out_addr(c, vOA, ft)
fd, ab, vSel, vMsk = ft[4], ft[5], ft[6], ft[7]
c(f"s_lshr_b32 {sT[0]}, {sXCD}, 1"); c(f"s_lshl_b32 {sT[1]}, {sT[0]}, 12"); c(f"s_lshr_b32 {sT[2]}, {sW12}, 2"); c(f"s_add_u32 {sT[1]}, {sT[1]}, {sT[2]}"); c(f"s_add_u32 {sT[1]}, {sT[1]}, {WS_F3}")
c(f"v_add_u32 {vPF3}, {sT[1]}, {vL16}")
c(f"s_lshl_b32 {sY}, {sT[0]}, 10"); c(f"s_lshl_b32 {sT[2]}, {sHQ}, 8"); c(f"s_add_u32 {sY}, {sY}, {sT[2]}")
c(f"s_and_b32 {sT[2]}, {sXCD}, 1"); c(f"s_lshl_b32 {sT[2]}, {sT[2]}, 7"); c(f"s_add_u32 {sY}, {sY}, {sT[2]}")
c(f"s_lshl_b32 {sT[2]}, {sW}, 19"); c(f"s_add_u32 {sY}, {sY}, {sT[2]}"); c(f"s_add_u32 {sY}, {sY}, {WS_Y1}")
c(f"v_lshrrev_b32 {ft[0]}, 3, {vL}"); c(f"v_lshl_add_u32 {vYD[0]}, {ft[0]}, 12, {vD8}")
for m in range(1, 4): c(f"v_add_u32 {vYD[m]}, {m*(32768-1024)}, {vYD[0]}")
c(f"s_lshl_b32 {sT[0]}, {sKH}, 14"); c(f"s_add_u32 {sT[0]}, {sT[0]}, 65536"); c(f"s_lshl_b32 {sT[1]}, {sKH}, 6")
c(f"v_xor_b32 {ft[0]}, {sT[1]}, {vTRa}"); c(f"v_add_u32 {vYR[0]}, {sT[0]}, {ft[0]}"); c(f"v_xor_b32 {vYR[1]}, 64, {vYR[0]}")
c(f"s_lshl_b32 {sT[0]}, {sCB}, 6"); c(f"s_lshl_b32 {sT[2]}, {sAD}, 5"); c(f"s_add_u32 {sT[0]}, {sT[0]}, {sT[2]}")
c(f"v_add_u32 {ft[0]}, {sT[0]}, {vL31}"); c(f"v_cvt_f32_u32 {fd}, {ft[0]}"); c(f"v_mul_f32 {fd}, {fl(1/512)}, {fd}")
c(f"v_lshl_add_u32 {ft[1]}, {vHH}, 1, {sT[1]}"); c(f"v_cvt_f32_u32 {ft[1]}, {ft[1]}"); c(f"v_mul_f32 {ab}, {fd}, {ft[1]}")
c(f"v_and_b32 {ft[0]}, 1, {vL}"); c(f"v_mul_u32_u24 {ft[1]}, 0x0202, {ft[0]}"); c(f"v_lshl_or_b32 {ft[1]}, {ft[1]}, 16, {ft[1]}"); c(f"v_xor_b32 {vSel}, 0x03020100, {ft[1]}")
c(f"v_bfe_u32 {ft[1]}, {vL}, 1, 1"); c(f"v_xor_b32 {ft[2]}, {ft[1]}, {ft[0]}"); c(f"v_lshlrev_b32 {ft[1]}, 31, {ft[1]}"); c(f"v_lshl_or_b32 {vMsk}, {ft[2]}, 15, {ft[1]}")
for kl in range(8):
    for rho in range(4):
        c(f"v_fmamk_f32 {ft[0]}, {fd}, {fl(8*kl + 4*(rho>>1) + (rho&1))}, {ab}")
        c(f"v_cos_f32 {ft[1]}, {ft[0]}"); c(f"v_sin_f32 {ft[2]}, {ft[0]}")
        if not (kl == 0 and rho == 0):
            pk, pr = (kl, rho - 1) if rho else (kl - 1, 3)
            c(f"v_perm_b32 {ft[3]}, {GM[pk][pr]}, {GM[pk][pr]}, {vSel}")
            c(f"v_cvt_pk_bf16_f32 {GM[kl][rho]}, {ft[1]}, {ft[2]}")
            c(f"v_xor_b32 {GM[8+pk][pr]}, {vMsk}, {ft[3]}")
        else:
            c(f"v_cvt_pk_bf16_f32 {GM[kl][rho]}, {ft[1]}, {ft[2]}")
c(f"v_perm_b32 {ft[3]}, {GM[7][3]}, {GM[7][3]}, {vSel}"); c(f"v_xor_b32 {GM[15][3]}, {vMsk}, {ft[3]}")
c(f"v_and_b32 {ft[0]}, 1, {vL}"); c(f"v_lshlrev_b32 {ft[0]}, 31, {ft[0]}"); c(f"v_xor_b32 {ft[0]}, 0xbf803f80, {ft[0]}")
c(f"s_sub_u32 {sT[4]}, {sKH}, 1"); c(f"s_mov_b32 {sT[5]}, 0")
c(f"v_cndmask_b32 {GM[0][0]}, {GM[0][0]}, {ft[0]}, s[48:49]")
S.fq = gq.l
post(S, "H_cd")
S.fill(OPT["gpre"])
S.wait_tag("y1st"); flag(S, sF3)
prio(S, "pH")
V.release(PP[0], PP[1])
await_(S, GRP_H, "H_cd")
I(f"s_lshr_b32 {sB0}, {sW12}, 1"); I(f"s_add_u32 m0, {sB0}, {L_XT}")
for m in range(2): I(f"buffer_load_dwordx4 {vOA[m]}, {SX}, {sOB} offen offset:{m*1024} lds", tag="xt")
S.fill_flush()
prio(S, "pH2")
I(f"s_add_u32 {sGF}, {sGF}, 128")
I(LD_L1)
S.wait_tag("xt"); post(S, "H_xt")
LD_F3 = f"buffer_load_dword {pf1}, {vPF3}, {SWS}, 0 offen sc1"
reserve(S, "H_g3")
I(f"v_mov_b32 {vSY[1]}, {pf1}")
I(f"s_cmp_eq_u32 {sJ}, 29"); I("s_cbranch_scc1 L_sent3")
poll_check(S, [LD_L1], pf1)
S.label("L_sent3d")
F = side("L_sent3")
F.I(LD_F3)
poll_check(F, [LD_F3], pf1)
post(F, "H_g3", alias=True)
await_(F, GRP_H, "H_g3")
F.I(f"s_cmp_lg_u32 {sW}, 0"); F.I("s_cbranch_scc1 L_sent3d")
flag_mode(F, sGF)
F.I("s_branch L_sent3d")
stamp(S)
await_(S, GRP_G, "G_s01")
for g in range(4):
    I(f"s_lshl_b32 {sB0}, {sW}, 14"); I(f"s_add_u32 m0, {sB0}, {65536 + g*4096}")
    I(f"s_add_u32 {sB0}, {sY}, {g*32*4096}")
    for m in range(4): I(f"buffer_load_dwordx4 {vYD[m]}, {SWS}, {sB0} offen offset:{m*1024} sc1 lds", tag="yb")
S.wait_tag("yb"); post(S, "H_yb")
sac = [V.alloc(16), V.alloc(16)]
NY = 6
yf = [[V.alloc(4) for b in range(2)] for s in range(NY)]
vSW = V.alloc(); vSR = V.alloc()
I(f"v_add_u32 {vSW}, {sW12}, {vLX}"); I(f"v_xor_b32 {vSR}, 0x2000, {vSW}")
await_(S, GRP_H, "H_yb")
if "pHi" in OPT: prio(S, "pHi")
stamp(S)
def y_reads(k):
    kk = k if k < 8 else k + 8
    return [f"ds_read_b64_tr_b16 {yf[k%NY][b][2*j:2*j+2]}, {vYR[b]} offset:{kk*2048 + j*1024}" for b in (1, 0) for j in range(2)]
rd = []
for k in range(16): rd += [(k, l) for l in y_reads(k)]
for _ in range(12): I(rd.pop(0)[1])
for k in range(16):
    for b in (1, 0):
        I(f"v_mfma_f32_32x32x16_bf16 {sac[b]}, {GM[k]}, {yf[k%NY][b]}, {'0' if k == 0 else sac[b]}")
        n = 0
        while rd and n < 2 and rd[0][0] - NY < k: I(rd.pop(0)[1]); n += 1
for g in range(4): I(f"ds_write_b128 {vSR}, {sac[1][4*g:4*g+4]} offset:{g*1024}")
post(S, "H_sx")
await_(S, GRP_H, "H_sx")
for g in range(4): I(f"ds_read_b128 {sac[1][4*g:4*g+4]}, {vSW} offset:{g*1024}")
for g in range(4):
    for e in range(2): I(f"v_pk_add_f32 {sac[0][4*g+2*e:4*g+2*e+2]}, {sac[0][4*g+2*e:4*g+2*e+2]}, {sac[1][4*g+2*e:4*g+2*e+2]}")
    I(f"ds_write_b128 {vSW}, {sac[0][4*g:4*g+4]} offset:{g*1024}")
post(S, "H_done")
diag_out(S)
I("s_endpgm")

S = G; V = VG; I = G.I
G.label("L_G")
prio(S, "pGa")
I(f"s_lshl_b32 {sT[0]}, {sXCD}, 8"); I(f"s_lshl_b32 {sT[1]}, {sW}, 6"); I(f"s_add_u32 {sT[0]}, {sT[0]}, {sT[1]}"); I(f"s_add_u32 {sS0}, {sT[0]}, {sJ}")
I(f"s_lshl_b32 {sT[6]}, {sS0}, 10"); I(f"s_add_u32 {sT[7]}, {sT[6]}, 32768")
vW2R = V.alloc(4); vXR = V.alloc(4); vWR = V.alloc(4); vXR2 = V.alloc(4); vWR2 = V.alloc(4); ONES = V.alloc(4)
CQ = Q(); c = CQ.I
fq = V.alloc(); fh4 = V.alloc(); ang = V.alloc(4)
C1 = V.alloc(4); TWc = V.alloc(8); TWs = V.alloc(8)
C2 = [[V.alloc(4) for p in range(2)] for tt in range(2)]
CN = V.alloc(4); cs = V.alloc(8); kN = V.alloc()
vXNW = V.alloc(); vTR = V.alloc(); vGW = V.alloc(); vGR = V.alloc(); vGS = V.alloc()
sX1s = sBaseB
c(f"v_mov_b32 {kN}, {fl(-1/512)}")
c(f"s_lshr_b32 {sT[5]}, {sW12}, 1"); c(f"s_add_u32 {sT[5]}, {sT[5]}, {L_XN}")
c(f"v_add_u32 {vXNW}, {sT[5]}, {vL16}")
c(f"v_lshrrev_b32 {t[1]}, 2, {vL}"); c(f"v_lshlrev_b32 {t[2]}, 3, {vL3}")
c(f"v_lshl_add_u32 {t[1]}, {t[1]}, 6, {t[2]}"); c(f"v_add_u32 {vTR}, {sT[5]}, {t[1]}")
c(f"v_mul_u32_u24 {t[0]}, {GP}, {vL}")
c(f"s_lshl_b32 {sT[5]}, {sW}, 3"); c(f"s_add_u32 {sT[5]}, {sT[5]}, {L_GA}")
c(f"v_add_u32 {vGW}, {sT[5]}, {t[0]}")
c(f"v_cvt_f32_u32 {fq}, {vL15}")
c(f"v_lshlrev_b32 {t[0]}, 2, {vH}"); c(f"v_cvt_f32_u32 {fh4}, {t[0]}")
c(f"v_mul_f32 {t[1]}, {fl(1/16)}, {fq}")
c(f"v_mul_f32 {ang[0]}, {t[1]}, {fh4}")
for e in range(1, 4): c(f"v_add_f32 {ang[e]}, {ang[e-1]}, {t[1]}")
for e in range(4):
    c(f"v_cos_f32 {cs[e]}, {ang[e]}"); c(f"v_sin_f32 {cs[4+e]}, {ang[e]}")
c(f"v_mul_f32 {t[2]}, {fl(1/32)}, {fq}")
c(f"v_cvt_pk_bf16_f32 {C1[0]}, {cs[0]}, {cs[1]}"); c(f"v_cvt_pk_bf16_f32 {C1[1]}, {cs[2]}, {cs[3]}")
c(f"v_cvt_pk_bf16_f32 {C1[2]}, -{cs[4]}, -{cs[5]}"); c(f"v_cvt_pk_bf16_f32 {C1[3]}, -{cs[6]}, -{cs[7]}")
for r in range(4):
    c(f"v_mul_f32 {t[3]}, {fl(1/32)}, {ang[r]}")
    c(f"v_add_f32 {t[4]}, {t[3]}, {t[2]}")
    c(f"v_cos_f32 {TWc[r]}, {t[3]}"); c(f"v_sin_f32 {TWs[r]}, {t[3]}")
    c(f"v_cos_f32 {TWc[4+r]}, {t[4]}"); c(f"v_sin_f32 {TWs[4+r]}, {t[4]}")
f32_consts(c, C2, fq, fh4, t[0:3], cs[0:2])
for r in range(4): c(f"v_mov_b32 {CN[r]}, {'0x3f80' if r % 2 == 0 else '0xbf80'}")
misc_lane(c, t)
c(f"s_lshl_b32 {sT[0]}, {sXCD}, 5"); c(f"s_add_u32 {sT[0]}, {sT[0]}, {sJ}")
c(f"s_lshl_b32 {sX1s}, {sT[0]}, 7"); c(f"s_add_u32 {sX1s}, {sX1s}, {WS_X1}")
c(f"s_lshl_b32 {sIdx}, {sT[0]}, 5"); c(f"s_add_u32 {sIdx}, {sIdx}, {WS_WN}")
c(f"s_lshl_b32 {sBaseA}, {sT[0]}, 4"); c(f"s_add_u32 {sBaseA}, {sBaseA}, {WS_XCC}")
c(f"s_lshl_b32 {sF1}, {sW}, 8"); c(f"s_add_u32 {sF1}, {sF1}, {sT[0]}"); c(f"s_lshl_b32 {sF1}, {sF1}, 4"); c(f"s_add_u32 {sF1}, {sF1}, {WS_F1}")
c(f"s_lshl_b32 {sT[1]}, {sW}, 2"); c(f"v_add_u32 {t[1]}, {sT[1]}, {vH}")
c(f"v_mul_u32_u24 {t[3]}, {GP}, {t[1]}"); c(f"v_lshl_add_u32 {t[3]}, {vL15}, 4, {t[3]}"); c(f"v_add_u32 {vGR}, {L_GA}, {t[3]}")
c(f"v_lshlrev_b32 {t[4]}, 18, {t[1]}"); c(f"v_lshrrev_b32 {t[5]}, 3, {vL15}"); c(f"v_lshl_add_u32 {t[4]}, {t[5]}, 15, {t[4]}")
c(f"v_and_b32 {t[2]}, 7, {vL}"); c(f"v_lshl_add_u32 {vGS}, {t[2]}, 4, {t[4]}")
sWRr, sWF = sU0, sU1
c(f"s_and_b32 {sWRr}, {sW}, 1"); c(f"s_lshr_b32 {sWF}, {sW}, 1")
c(f"s_lshl_b32 {sT[0]}, {sWRr}, 13"); c(f"v_lshlrev_b32 {t[0]}, 7, {vL31}"); c(f"v_add_u32 {t[0]}, {sT[0]}, {t[0]}")
c(f"v_bfe_u32 {t[1]}, {vL}, 1, 3"); c(f"v_xor_b32 {t[1]}, {t[1]}, {vHH}")
c(f"s_lshl_b32 {sT[1]}, {sWRr}, 2"); c(f"v_xor_b32 {t[1]}, {sT[1]}, {t[1]}")
c(f"v_lshl_add_u32 {vXR[0]}, {t[1]}, 4, {t[0]}")
c(f"v_lshl_add_u32 {t[0]}, {vHH}, 3, {vRp}"); c(f"v_lshl_add_u32 {t[0]}, {t[0]}, 8, {vTRL}")
c(f"s_lshl_b32 {sT[1]}, {sWF}, 1"); c(f"v_xor_b32 {t[1]}, {sT[1]}, {vRp}")
c(f"v_lshl_add_u32 {t[0]}, {t[1]}, 6, {t[0]}")
c(f"s_add_u32 {sT[1]}, {sT[0]}, 16384"); c(f"s_sub_u32 {sT[2]}, 16384, {sT[0]}")
c(f"v_add_u32 {vWR[0]}, {sT[1]}, {t[0]}"); c(f"v_xor_b32 {vWR[1]}, 64, {vWR[0]}")
c(f"v_add_u32 {vWR[2]}, {sT[2]}, {t[0]}"); c(f"v_xor_b32 {vWR[3]}, 64, {vWR[2]}")
for k in range(1, 4): c(f"v_xor_b32 {vXR[k]}, {k*32}, {vXR[0]}")
c(f"v_and_b32 {t[0]}, 1, {vH}"); c(f"v_cmp_eq_u32 vcc, {t[0]}, {vL15}")
c(f"v_mov_b32 {t[1]}, 0x3f803f80")
for r in range(4): c(f"v_cndmask_b32 {ONES[r]}, 0, {t[1]}, vcc")
S.fq = CQ.l
S.fill(OPT.get("pre", 24))
S.wait_all(vm=False, force=True)
stamp(S)
srd(S, SX, 64, 65, 2048 * 1024)
xa = [V.alloc(4), V.alloc(4)]
I(f"buffer_load_dwordx4 {xa[0]}, {vL16}, {SX}, {sT[6]} offen")
I(f"buffer_load_dwordx4 {xa[1]}, {vL16}, {SX}, {sT[7]} offen")
srd(S, SWS, 80, 81, WS_SIZE)
I(f"buffer_load_dword {vE}, {vZ}, {SWS}, 0 offen sc1")
I("s_barrier")
srd(S, SW2, 74, 75, 1792 * 1024); srd(S, SOUT, 76, 77, 2048 * 1024)
if OPT.get("tlb"):
    sh = OPT["tlb"]
    I(f"v_lshlrev_b32 v254, {sh}, {vL}")
    I(f"s_lshl_b32 {sT[4]}, {sW}, {sh + 6}")
    I(f"buffer_load_dword v255, v254, {SWS}, {sT[4]} offen", nodef=True)
    I(f"buffer_load_dword v255, v254, {SW2}, {sT[4]} offen", nodef=True)
    I(f"buffer_load_dword v255, v254, {SOUT}, {sT[4]} offen", nodef=True)
S.fill_flush()
xf = [V.alloc(8), V.alloc(8)]
red = V.alloc(2)
for p in range(2):
    for e in range(4):
        I(f"v_lshlrev_b32 {xf[p][2*e]}, 16, {xa[p][e]}")
        I(f"v_and_b32 {xf[p][2*e+1]}, 0xffff0000, {xa[p][e]}")
stamp(S)
def tree(dst, src, tmp):
    I(f"v_pk_add_f32 {tmp[0:2]}, {src[0:2]}, {src[2:4]}"); I(f"v_pk_add_f32 {tmp[2:4]}, {src[4:6]}, {src[6:8]}")
    I(f"v_pk_add_f32 {tmp[0:2]}, {tmp[0:2]}, {tmp[2:4]}")
    I(f"v_add_f32 {dst}, {tmp[0]}, {tmp[1]}")
def wave_reduce(regs, sdst):
    for mod in ("row_shr:1 row_mask:0xf bank_mask:0xf bound_ctrl:0", "row_shr:2 row_mask:0xf bank_mask:0xf bound_ctrl:0",
                "row_shr:4 row_mask:0xf bank_mask:0xf bound_ctrl:0", "row_shr:8 row_mask:0xf bank_mask:0xf bound_ctrl:0",
                "row_bcast:15 row_mask:0xa bank_mask:0xf", "row_bcast:31 row_mask:0xc bank_mask:0xf"):
        for r in regs: I(f"v_add_f32_dpp {r}, {r}, {r} {mod}")
    for r, s in zip(regs, sdst): I(f"v_readlane_b32 {s}, {r}, 63")
tree(red[0], xf[0], t[0:4]); tree(red[1], xf[1], t[4:8])
wave_reduce([red[0], red[1]], [sT[0], sT[1]])
dv = V.alloc(8); nm = V.alloc(4)
for p in range(2): I(f"v_mul_f32 {nm[2*p]}, {sT[p]}, {kN}")
for p in range(2):
    for e in range(0, 8, 2): I(f"v_pk_add_f32 {dv[e:e+2]}, {xf[p][e:e+2]}, {nm[2*p:2*p+2]} op_sel_hi:[1,0]")
    I(f"v_pk_mul_f32 {t[2*p:2*p+2]}, {dv[0:2]}, {dv[0:2]}")
    for e in range(2, 8, 2): I(f"v_pk_fma_f32 {t[2*p:2*p+2]}, {dv[e:e+2]}, {dv[e:e+2]}, {t[2*p:2*p+2]}")
    I(f"v_add_f32 {red[p]}, {t[2*p]}, {t[2*p+1]}")
wave_reduce([red[0], red[1]], [sT[2], sT[3]])
stt = V.alloc(2); rs = V.alloc(4); mo = V.alloc(4)
seqs = []
for p in range(2):
    q = Q(); a, b = t[4*p], t[4*p+1]
    q.I(f"v_mul_f32 {a}, {sT[2+p]}, {kN}")
    q.I(f"v_cvt_pk_bf16_f32 {a}, -{a}, -{a}")
    q.I(f"v_lshlrev_b32 {a}, 16, {a}")
    q.I(f"v_add_f32 {a}, {fl(1e-5)}, {a}")
    q.I(f"v_cvt_pk_bf16_f32 {a}, {a}, {a}")
    q.I(f"v_lshlrev_b32 {a}, 16, {a}")
    q.I(f"v_sqrt_f32 {a}, {a}")
    q.I(f"v_cvt_pk_bf16_f32 {stt[p]}, {a}, -{nm[2*p]}")
    q.I(f"v_lshlrev_b32 {a}, 16, {stt[p]}")
    q.I(f"v_rcp_f32 {rs[2*p]}, {a}")
    q.I(f"v_and_b32 {b}, 0xffff0000, {stt[p]}")
    q.I(f"v_mul_f32 {mo[2*p]}, {b}, {rs[2*p]}")
    seqs.append(q.l)
for x, y in zip(*seqs): I(x[0]); I(y[0])
Aop = [[V.alloc(2) for tt in range(2)] for p in range(2)]
for p in range(2):
    for e in range(0, 8, 2):
        I(f"v_pk_fma_f32 {xf[p][e:e+2]}, {xf[p][e:e+2]}, {rs[2*p:2*p+2]}, {mo[2*p:2*p+2]} op_sel_hi:[1,0,0] neg_lo:[0,0,1] neg_hi:[0,0,1]")
    for e in range(4): I(f"v_cvt_pk_bf16_f32 {xa[p][e]}, {xf[p][2*e]}, {xf[p][2*e+1]}")
    I(f"ds_write_b128 {vXNW}, {xa[p]} offset:{p*1024}")
    for tt in range(2): I(f"ds_read_b64_tr_b16 {Aop[p][tt]}, {vTR} offset:{p*1024 + tt*32}")
V.release(xf[0], xf[1], dv, nm, rs, mo, red, cs, ang, kN, fq, fh4)
make_tag(S)
gr = V.alloc(2); vGa = V.alloc()
I(f"v_cmp_eq_u32 vcc, 0, {vL}")
I(f"v_mov_b32 {gr[1]}, {sTAG}")
I(f"v_lshlrev_b32 {vGa}, 8, {vL}")
I(f"v_cndmask_b32 {gr[0]}, {stt[1]}, {stt[0]}, vcc")
I(f"s_lshl_b32 {sT[6]}, {sS0}, 3"); I(f"s_add_u32 {sT[6]}, {sT[6]}, {WS_ST}")
D1 = [[[V.alloc(4) for c in range(2)] for tt in range(2)] for p in range(2)]
for p in range(2):
    for tt in range(2):
        for c in range(2): I(f"v_mfma_f32_16x16x16_bf16 {D1[p][tt][c]}, {Aop[p][tt]}, {C1[2*c:2*c+2]}, 0")
P = [[V.alloc(4) for tt in range(2)] for p in range(2)]
D2 = [[V.alloc(4) for c in range(3)] for p in range(2)]
for p in range(2):
    for tt in range(2):
        for r in range(4):
            cmul_tw(S, D1[p][tt][0][r], D1[p][tt][1][r], TWc[4*tt+r], TWs[4*tt+r], t[2*(r&1):2+2*(r&1)], P[p][tt][r])
    for c in range(3):
        for tt in range(2):
            B = C2[tt][c] if c < 2 else CN
            I(f"v_mfma_f32_16x16x32_bf16 {D2[p][c]}, {P[p][tt]}, {B}, {'0' if tt == 0 else D2[p][c]}")
O = V.alloc(8)
for k in range(4): I(f"v_add_u32 {vXR2[k]}, 0x10000, {vXR[k]}"); I(f"v_add_u32 {vWR2[k]}, 0x10000, {vWR[k]}")
for p in range(2):
    I(f"v_cndmask_b32 {D2[p][1][0]}, {D2[p][1][0]}, {D2[p][2][0]}, vcc")
    for r in range(4): I(f"v_cvt_pk_bf16_f32 {O[2*r+p]}, {D2[p][0][r]}, {D2[p][1][r]}")
for r in range(4): I(f"ds_write_b64 {vGW}, {O[2*r:2*r+2]} offset:{64*r}")
post(S, "G_ga")
aw_issue(S, GRP_G)
I(f"s_getreg_b32 {sT[3]}, hwreg(HW_REG_XCC_ID, 0, 4)"); I(f"s_add_u32 {sT[3]}, {sT[3]}, {sTAG}"); I(f"v_mov_b32 {t[0]}, {sT[3]}")
I("s_mov_b64 exec, 3")
I(f"buffer_store_dwordx2 {gr}, {vGa}, {SWS}, {sT[6]} offen sc1")
I("s_mov_b64 exec, 1")
I(f"s_cmp_lg_u32 {sW}, 0"); I("s_cbranch_scc1 L_noxcc")
I(f"buffer_store_dword {t[0]}, {vZ}, {SWS}, {sBaseA} offen sc1", counted=False)
S.label("L_noxcc")
I("s_mov_b64 exec, -1")
aw_check(S, GRP_G, "G_ga")
await_(S, GRP_H, "H_c0")
stamp(S)
V.release(xa[0], xa[1], stt, vXNW, gr, vGa, vTR, C1, TWc, TWs, CN, vGW, O)
for p in range(2):
    for c in range(3): V.release(D2[p][c])
    for tt in range(2): V.release(Aop[p][tt], P[p][tt], D1[p][tt][0], D1[p][tt][1], C2[p][tt])
acc = [[V.alloc(16) for b in range(2)] for a in range(2)]
csv = [V.alloc(4) for i in range(8)]; cst = [V.alloc(4) for i in range(8)]
def pub_reads(st):
    for m in range(4): st.I(f"ds_read_b128 {csv[m]}, {vGR} offset:{16*GP*m}")
    st.I(f"v_add_u32 {csv[5][0]}, {L_WN}, {vL16}")
    st.I(f"ds_read_b128 {csv[4]}, {csv[5][0]}")
def pub_wn(st):
    k = newlab()
    st.I(f"v_mov_b32 {csv[5][0]}, {csv[4][0]}")
    st.atomic += 1
    st.I(f"s_cmp_lg_u32 {sW}, 0"); st.I(f"s_cbranch_scc1 L_nown{k}")
    st.I("s_mov_b64 exec, 3")
    st.I(f"buffer_store_dwordx4 {csv[4]}, {vL16}, {SWS}, {sIdx} offen sc1", counted=False)
    st.I("s_mov_b64 exec, -1")
    st.label(f"L_nown{k}")
    st.atomic -= 1
def pub_store(st, m):
    st.I(f"buffer_store_dwordx4 {csv[m]}, {vGS}, {SWS}, {sX1s} offen sc1", tag="x1st")
    if m < 3: st.I(f"s_add_u32 {sX1s}, {sX1s}, 65536")
def w2r_setup(c):
    c(f"s_lshl_b32 {sT[0]}, {sWRr}, 6")
    c(f"v_xor_b32 {t[1]}, {sT[0]}, {vTRa}"); c(f"v_add_u32 {vW2R[0]}, {sW13}, {t[1]}"); c(f"v_xor_b32 {vW2R[1]}, 64, {vW2R[0]}")
    c(f"v_add_u32 {vW2R[2]}, 0x10000, {vW2R[0]}"); c(f"v_add_u32 {vW2R[3]}, 0x10000, {vW2R[1]}")
I(f"s_cmp_ge_u32 {sJ}, 28")
I("s_cbranch_scc1 L_free")
Ffree = S.fork()
prio(S, "pG1")
csa = [V.alloc(4) for a in range(2)]
NS = 3
fx = [[V.alloc(4) for b in range(2)] for s in range(NS)]
fw_ = [[V.alloc(4) for a in range(2)] for s in range(NS)]
def g1_reads(step):
    c, k = divmod(step, 4); s = step % NS
    sl = (c & 1) * 32768
    xr_, wr_ = (vXR2, vWR2) if c & 2 else (vXR, vWR)
    l = []
    def wr(a):
        for j in range(2):
            l.append(f"ds_read_b64_tr_b16 {fw_[s][a][2*j:2*j+2]}, {wr_[2*(k>>1)+a]} offset:{sl + k*4096 + j*1024}")
    def xr(b): l.append(f"ds_read_b128 {fx[s][b]}, {xr_[k]} offset:{sl + b*4096}")
    wr(0); xr(0); xr(1); wr(1)
    return l
for l in g1_reads(0): I(l)
pub_reads(S)
for l in g1_reads(1): I(l)
vCSW = V.alloc(); vCSR = V.alloc(); vMR = V.alloc(); mm = V.alloc(4)
sH0 = sU4
eq = Q(); c = eq.I
c(f"v_lshlrev_b32 {t[0]}, 6, {vL15}"); c(f"v_lshl_add_u32 {t[0]}, {vH}, 4, {t[0]}")
c(f"s_lshl_b32 {sT[0]}, {sW}, 8"); c(f"s_add_u32 {sT[1]}, {sT[0]}, {L_CS}"); c(f"v_add_u32 {vCSW}, {sT[1]}, {t[0]}")
c(f"s_add_u32 {sT[1]}, {sT[0]}, {L_MEAN}"); c(f"v_lshl_add_u32 {vMR}, {vL31}, 2, {sT[1]}")
c(f"s_lshl_b32 {sT[0]}, {sWF}, 9"); c(f"s_add_u32 {sT[0]}, {sT[0]}, {L_CS}")
c(f"v_lshlrev_b32 {t[0]}, 4, {vHH}"); c(f"v_add_u32 {vCSR}, {sT[0]}, {t[0]}")
h_base(c, sH0, sT[0])
c(f"s_lshl_b32 {sF2}, {sTT}, 9"); c(f"s_lshl_b32 {sT[1]}, {sFB}, 5"); c(f"s_add_u32 {sF2}, {sF2}, {sT[1]}")
c(f"s_lshl_b32 {sT[1]}, {sWF}, 4"); c(f"s_add_u32 {sF2}, {sF2}, {sT[1]}"); c(f"s_add_u32 {sF2}, {sF2}, {WS_F2}")
w2r_setup(c)
S.fq = [pub_wn, ("s_nop 0", {})] + sum([[(lambda st, m=m: pub_store(st, m)), ("s_nop 0", {})] for m in range(4)], []) + eq.l
for step in range(32):
    c_, k = divmod(step, 4); s = step % NS
    nxt = step + NS - 1
    mf = [f"v_mfma_f32_32x32x16_bf16 {acc[a][b]}, {fw_[s][a]}, {fx[s][b]}, {'0' if step == 0 else acc[a][b]}" for a, b in ((0, 0), (0, 1), (1, 0), (1, 1))]
    if k < 2:
        cm = [f"v_mfma_f32_16x16x32_bf16 {csa[a]}, {fw_[s][a]}, {ONES}, {'0' if step == 0 else csa[a]}" for a in range(2)]
        mf = [mf[0], mf[1], cm[0], mf[2], mf[3], cm[1]]
    rd = g1_reads(nxt) if nxt < 32 else []
    acts = []; post_after = []
    cn = nxt // 4
    if nxt < 32 and nxt % 4 == 0:
        acts.append(lambda cn=cn: aw_check(S, GRP_H, f"H_c{cn}"))
        if cn in (2, 4, 6, 7): acts.append(lambda: stamp(S, 1))
    if nxt < 28 and nxt % 4 == 3:
        post_after.append(lambda cn=cn: post(S, f"G_rel{cn}"))
        post_after.append(lambda: aw_issue(S, GRP_H))
    if step == OPT.get("f1at", 7): post_after.append(lambda: (S.wait_tag("x1st"), flag(S, sF1)))
    if step == 30:
        def csw():
            S.atomic += 1
            I("s_mov_b32 exec_lo, 0x00030003"); I("s_mov_b32 exec_hi, 0x00030003")
            for a in range(2): I(f"ds_write_b128 {vCSW}, {csa[a]} offset:{a*128}")
            I("s_mov_b64 exec, -1")
            S.atomic -= 1
            post(S, "G_cs")
            for b in range(2): I(f"ds_read_b32 {mm[2*b]}, {vMR} offset:{b*128}")
            I(f"ds_read_b32 {mm[1]}, {vMR} offset:1024")
        post_after.append(csw)
        post_after.append(lambda: aw_issue(S, GRP_G))
    if step == 31:
        def csr():
            aw_check(S, GRP_G, "G_cs")
            for i in range(8):
                I(f"ds_read_b128 {csv[i]}, {vCSR} offset:{(i>>2)*128 + (i&3)*32}")
                I(f"ds_read_b128 {cst[i]}, {vCSR} offset:{256 + (i>>2)*128 + (i&3)*32}")
        post_after.append(csr)
    for i, m in enumerate(mf):
        I(m)
        if i == 0:
            for a in acts: a()
        for _ in range(2):
            if rd: I(rd.pop(0))
        if not rd and post_after and i >= 2:
            for a in post_after: a()
            post_after = []
        S.fill(2)
stamp(S)
S.fill_flush()
prio(S, "pGe")
I(f"s_add_u32 {sT[1]}, {sH0}, 4096")
I(f"v_readfirstlane_b32 {sMODE}, {mm[1]}")
if OPT["hmode"] == 0: I(f"s_mov_b32 {sMODE}, 1")
for a in range(2):
    for kp in range(2):
        for gg in range(2):
            i = a * 4 + kp * 2 + gg
            for e in range(2): I(f"v_pk_add_f32 {csv[i][2*e:2*e+2]}, {csv[i][2*e:2*e+2]}, {cst[i][2*e:2*e+2]}")
        for b in range(2):
            for e in range(4):
                rr = 8 * kp + 2 * e; cv = csv[a * 4 + kp * 2 + (e >> 1)][2*(e&1):2*(e&1)+2]
                I(f"v_pk_fma_f32 {acc[a][b][rr:rr+2]}, {cv}, {mm[2*b:2*b+2]}, {acc[a][b][rr:rr+2]} op_sel_hi:[1,0,1] neg_lo:[1,0,0] neg_hi:[1,0,0]")
        sts = []
        for b in range(2):
            o = cst[a * 4 + kp * 2 + b]
            for e in range(4):
                rr = 8 * kp + 2 * e
                I(f"v_cvt_pk_bf16_f32 {o[e]}, {acc[a][b][rr]}, {acc[a][b][rr+1]}")
            for e in range(4): I(f"v_pk_max_i16 {o[e]}, {o[e]}, 0")
            sts.append(f"buffer_store_dwordx4 {o}, {vL16}, {SWS}, {sH0 if a == 0 else sT[1]} offen offset:{kp*2048 + b*1024}")
        if OPT["hmode"] < 2:
            for x in sts: I(x + " sc1", tag="hst")
            continue
        k = newlab()
        I(f"s_cmp_lg_u32 {sMODE}, 0"); I(f"s_cbranch_scc1 L_hs{k}")
        for x in sts: I(x, tag="hst")
        S.label(f"L_hd{k}")
        Fs = side(f"L_hs{k}")
        for x in sts: Fs.I(x + " sc1")
        Fs.I(f"s_branch L_hd{k}")
V.release(vGR, vGS, vXR, vWR, vXR2, vWR2, ONES, csa[0], csa[1], vCSW, vCSR, vMR, mm, *cst, *csv)
for s in range(NS): V.release(fx[s][0], fx[s][1], fw_[s][0], fw_[s][1])
S.nop(2)
S.label("L_join")
stamp(S)
F = Ffree; tail.append(F)
F.label("L_free")
F.I(f"s_lshl_b32 {sF2}, s2, 6"); F.I(f"s_add_u32 {sF2}, {sF2}, {WS_DUM}"); F.I(f"s_mov_b32 {sMODE}, 0")
pub_reads(F); pub_wn(F)
for m in range(4): pub_store(F, m)
post(F, "G_rel2", alias=True)
w2r_setup(F.I)
F.wait_all(force=True)
flag(F, sF1)
F.I(f"s_cmp_eq_u32 {sJ}, 29"); F.I("s_cbranch_scc1 L_sentG")
F.label("L_sentG_done")
Fz = side("L_sentG")
za = acc[0][0]
Fz.I(f"s_lshr_b32 {sT[0]}, {sXCD}, 1"); Fz.I(f"s_lshl_b32 {sT[0]}, {sT[0]}, 12"); Fz.I(f"s_lshr_b32 {sT[1]}, {sW12}, 2"); Fz.I(f"s_add_u32 {sT[0]}, {sT[0]}, {sT[1]}"); Fz.I(f"s_add_u32 {sT[0]}, {sT[0]}, {WS_F1}")
Fz.I(f"v_add_u32 {za[0]}, {sT[0]}, {vL16}")
Fz.I(f"s_lshl_b32 {sT[0]}, {sXCD}, 9"); Fz.I(f"s_add_u32 {sT[0]}, {sT[0]}, {WS_XCC}"); Fz.I(f"v_lshl_add_u32 {za[1]}, {vL31}, 4, {sT[0]}")
Fz.I(f"s_lshl_b32 {sT[2]}, {sXCD}, 8"); Fz.I(f"s_add_u32 {sT[2]}, {sT[2]}, {WS_GF}")
Fz.I(f"s_getreg_b32 {sT[3]}, hwreg(HW_REG_XCC_ID, 0, 4)"); Fz.I(f"s_add_u32 {sT[3]}, {sT[3]}, {sTAG}")
Fz.I(f"buffer_load_dword {za[4]}, {vZ}, {SWS}, {sT[2]} offen sc1")
Fz.I(f"buffer_load_dword {za[3]}, {za[1]}, {SWS}, 0 offen sc1")
if OPT.get("sentw", 1): await_(Fz, GRP_H, "H_c%d" % OPT.get("sentw", 4))
ZL = f"buffer_load_dword {za[2]}, {za[0]}, {SWS}, 0 offen sc1"
Fz.I(ZL)
poll_check(Fz, [ZL], za[2])
post(Fz, "G_rel3", alias=True)
await_(Fz, GRP_G, "G_rel3")
Fz.I(f"s_cmp_lg_u32 {sW}, 0"); Fz.I("s_cbranch_scc1 L_sentG_done")
Fz.I(f"v_cmp_ne_u32 vcc, {sT[3]}, {za[3]}")
Fz.I("s_mov_b64 exec, 1")
Fz.I("s_cbranch_vccnz L_sentG_s")
Fz.I(f"buffer_store_dword {vTAG}, {vZ}, {SWS}, {sT[2]} offen" + (" sc1" if OPT.get("forceslow") else ""))
Fz.I("s_mov_b64 exec, -1"); Fz.I("s_branch L_sentG_done")
Fz.label("L_sentG_s")
Fz.I(f"buffer_store_dword {vTAG}, {vZ}, {SWS}, {sT[2]} offen sc1")
Fz.I("s_mov_b64 exec, -1"); Fz.I("s_branch L_sentG_done")
post(F, "G_rel3", alias=True)
F.I(f"s_cmp_eq_u32 s2, 224"); F.I("s_cbranch_scc1 L_spG")
await_(F, GRP_H, "H_c6")
post(F, "G_rel5", alias=True)
await_(F, GRP_H, "H_c7")
F.label("L_spG_done")
post(F, "G_cs", alias=True)
Fg = side("L_spG")
ga = [acc[0][0], acc[0][1]]
sa = t; gk = acc[1][1][0]
Fg.I(f"s_lshl_b32 {sT[0]}, {sW}, 4"); Fg.I(f"v_lshl_add_u32 {gk}, {vH}, 8, {vL15}"); Fg.I(f"v_add_u32 {gk}, {sT[0]}, {gk}")
for k in range(8):
    c0 = 64 * (16 * (k >> 2) + (k & 3))
    for neg in range(2):
        if neg: Fg.I(f"v_sub_u32 {sa[0]}, {2048 - c0}, {gk}"); Fg.I(f"v_and_b32 {sa[0]}, 2047, {sa[0]}")
        else: Fg.I(f"v_add_u32 {sa[0]}, {c0}, {gk}")
        ks = sa[0]
        Fg.I(f"v_bfe_u32 {sa[1]}, {ks}, 4, 2"); Fg.I(f"v_lshrrev_b32 {sa[2]}, 9, {ks}"); Fg.I(f"v_lshl_add_u32 {sa[1]}, {sa[1]}, 2, {sa[2]}")
        Fg.I(f"v_and_b32 {sa[2]}, 15, {ks}"); Fg.I(f"v_lshl_add_u32 {sa[1]}, {sa[1]}, 4, {sa[2]}")
        Fg.I(f"v_bfe_u32 {sa[2]}, {ks}, 6, 3")
        Fg.I(f"v_lshlrev_b32 {sa[3]}, 2, {sa[2]}"); Fg.I(f"v_lshl_add_u32 {sa[3]}, {sa[1]}, 5, {sa[3]}"); Fg.I(f"v_add_u32 {ga[neg][8+k]}, {L_EX}, {sa[3]}")
        Fg.I(f"v_lshrrev_b32 {sa[3]}, 2, {sa[2]}"); Fg.I(f"v_bfe_u32 {sa[0]}, {sa[1]}, 2, 2"); Fg.I(f"v_xor_b32 {sa[3]}, {sa[3]}, {sa[0]}"); Fg.I(f"v_xor_b32 {sa[3]}, 2, {sa[3]}")
        Fg.I(f"v_and_b32 {sa[2]}, 3, {sa[2]}"); Fg.I(f"v_lshlrev_b32 {sa[2]}, 2, {sa[2]}"); Fg.I(f"v_lshl_add_u32 {sa[2]}, {sa[3]}, 4, {sa[2]}")
        Fg.I(f"v_lshl_add_u32 {sa[2]}, {sa[1]}, 6, {sa[2]}"); Fg.I(f"v_add_u32 {ga[neg][k]}, {L_XC}, {sa[2]}")
Fg.I(f"s_add_u32 {sT[0]}, {sW13}, {3*32768}"); Fg.I(f"v_add_u32 {gk}, {sT[0]}, {vL16}")
await_(Fg, GRP_H, "H_c6")
post(Fg, "G_rel5", alias=True)
await_(Fg, GRP_H, "H_xc")
for k in range(8):
    for r in (ga[0][k], ga[1][k], ga[0][8+k], ga[1][8+k]): Fg.I(f"ds_read_b32 {r}, {r}")
await_(Fg, GRP_H, "H_c7")
for k in range(8):
    o = acc[1][0][4*(k&3):4*(k&3)+4]
    a_, b_, c_, d_ = ga[0][k], ga[1][k], ga[0][8+k], ga[1][8+k]
    for i, r in enumerate((a_, b_, c_, d_)):
        Fg.I(f"v_lshlrev_b32 {t[2*i]}, 16, {r}"); Fg.I(f"v_and_b32 {t[2*i+1]}, 0xffff0000, {r}")
    Fg.I(f"v_add_f32 {t[0]}, {t[0]}, {t[2]}"); Fg.I(f"v_sub_f32 {t[1]}, {t[1]}, {t[3]}")
    Fg.I(f"v_add_f32 {t[4]}, {t[4]}, {t[6]}"); Fg.I(f"v_sub_f32 {t[5]}, {t[5]}, {t[7]}")
    Fg.I(f"v_add_f32 {o[0]}, {t[0]}, {t[4]}"); Fg.I(f"v_add_f32 {o[1]}, {t[1]}, {t[5]}")
    Fg.I(f"v_sub_f32 {o[2]}, {t[0]}, {t[4]}"); Fg.I(f"v_sub_f32 {o[3]}, {t[1]}, {t[5]}")
    for e in range(4): Fg.I(f"v_mul_f32 {o[e]}, {fl(0.125)}, {o[e]}")
    Fg.I(f"ds_write_b128 {gk}, {o} offset:{k*1024}")
post(Fg, "G_rel6", alias=True)
await_(Fg, GRP_H, "H_sp1")
Fg.wait_all(force=True)
Fg.I("s_branch L_spG_done")
F.wait_all(force=True)
F.nop(2)
F.I("s_branch L_join")
REGP = (2, 3, 1)
W2F = {(p, kl): [V.alloc(4) for a in range(2)] for p in REGP for kl in range(4)}
def w2_reads(p, kl, dst):
    sl = W2SLOT[p]
    return [f"ds_read_b64_tr_b16 {dst[a][2*j:2*j+2]}, {vW2R[2*(sl>>1)+a]} offset:{(sl&1)*32768 + kl*2048 + j*1024}" for a in range(2) for j in range(2)]
if OPT.get("p2first", 1): w2_dma(S, 2)
S.wait_tag("hst")
flag_mode(S, sF2)
prio(S, "pG2")
stamp(S)
w2_dma(S, 3)
for p in (1, 0):
    if p >= NWH: w2_dma(S, p)
sT2 = sTT; sH = sU4
vPF2 = vL15; pf2 = vTRL
I(f"s_lshl_b32 {sT2}, {sXCD}, 2"); I(f"s_add_u32 {sT2}, {sT2}, {sHQ}")
I(f"s_lshl_b32 {sT[0]}, {sT2}, 9"); I(f"s_mul_i32 {sT[1]}, {sW}, 112"); I(f"s_add_u32 {sT[0]}, {sT[0]}, {sT[1]}"); I(f"s_add_u32 {sT[0]}, {sT[0]}, {WS_F2}")
I(f"v_min_u32 {vPF2}, 6, {vL}"); I(f"v_lshlrev_b32 {vPF2}, 4, {vPF2}"); I(f"v_add_u32 {vPF2}, {sT[0]}, {vPF2}")
LD_F2 = f"buffer_load_dword {pf2}, {vPF2}, {SWS}, 0 offen sc1"
vOA = [vD8, vTRa]
out_addr(I, vOA, t)
vHb = [vRp, vL3]
I(f"s_lshl_b32 {sT[0]}, {sKH}, 10"); I(f"v_add_u32 {vHb[0]}, {sT[0]}, {vL16}"); I(f"v_xor_b32 {vHb[1]}, 0x400, {vHb[0]}")
I(f"s_mul_i32 {sH}, {sT2}, 229376"); I(f"s_mul_i32 {sT[0]}, {sW}, 57344"); I(f"s_add_u32 {sH}, {sH}, {sT[0]}"); I(f"s_add_u32 {sH}, {sH}, {WS_H}")
I(f"v_lshlrev_b32 {vRowOff}, 3, {vRowOff}")
for p in REGP:
    if p == 1 and NWH: await_(S, GRP_H, "H_ex")
    S.wait_tag(f"w2p{p}")
    for kl in range(4):
        for l in w2_reads(p, kl, W2F[p, kl]): I(l, tag=f"w2d{p}")
    if p == 2: I(LD_F2)
    if p == 3: post(S, "G_s01")
S.wait_tag("w2d1")
for g in groups_of(lambda st: w2_dma(st, 4)): S.bg_push(g)
if OPT.get("p4early", 1): S.bg_flush()
yac = acc
NB = OPT["nb"]
order = [1, 0, 4, 2, 3, 5, 6]
WB = 2
wb = [[V.alloc(4) for a in range(2)] for s in range(WB)]
vYW = vH; vRS = vE
hfree = []
while True:
    try: hfree.append([V.alloc(4), V.alloc(4)])
    except RuntimeError: break
sys.stderr.write("initial h buffers %d\n" % len(hfree))
hb = {}
nissued = [0]
def h_load():
    i = nissued[0]; nissued[0] += 1
    hb[i] = hfree.pop(0)
    p, kl = order[i // 4], i % 4
    if kl == 0:
        part_idx(S, sS0, p, sU0)
        I(f"s_lshl_b32 {sS0}, {sS0}, 13"); I(f"s_add_u32 {sS0}, {sS0}, {sH}")
    if kl == 2: I(f"s_add_u32 {sS0}, {sS0}, 4096")
    for b in range(2):
        I(f"buffer_load_dwordx4 {hb[i][b]}, {vHb[b]}, {SWS}, {sS0} offen offset:{(kl%2)*2048} sc1")
def h_top(done):
    while hfree and nissued[0] < 28 and nissued[0] - done < NB: h_load()
def wsrc(i):
    p, kl = order[i // 4], i % 4
    return W2F[p, kl] if p in REGP else wb[i % WB]
def wrd(i):
    p, kl = order[i // 4], i % 4
    return w2_reads(p, kl, wb[i % WB]) if p not in REGP else []
poll_check(S, [LD_F2], pf2)
stamp(S)
h_top(0)
I(f"buffer_load_dword {vRS}, {vRowOff}, {SWS}, {sT[3]} offen sc1")
vRd = [None] + [t[k] for k in (1, 2, 3)]
slots = {1: yac[1][0], 2: yac[0][1], 3: yac[1][1]}
soff = {1: 0, 2: 4096, 3: 32768}
def take(n):
    out = []
    while len(out) < n:
        pr = hfree.pop(); out += [pr[0], pr[1]]
    return out
for i in range(26):
    rd = wrd(i + 1)
    if rd and (i + 1) % 4 == 0:
        p = order[(i + 1) // 4]
        assert not any(it[1].get("tag") == f"w2p{p}" for g in S.bg for it in g)
        S.wait_tag(f"w2p{p}")
    for a, b in ((0, 0), (1, 0), (0, 1), (1, 1)):
        I(f"v_mfma_f32_32x32x16_bf16 {yac[a][b]}, {wsrc(i)[a]}, {hb[i][b]}, {'0' if i == 0 else yac[a][b]}")
        for _ in range(2):
            if rd: I(rd.pop(0))
        S.fill(3)
    if i in (8, 12):
        for g in groups_of(lambda st, i=i: w2_dma(st, 5 if i == 8 else 6)): S.bg_push(g)
    if i == 19: aw_issue(S, GRP_H)
    if i == 20: aw_check(S, GRP_H, "H_xt")
    hfree.append(hb[i])
    if order[i // 4] in REGP: hfree.append(wsrc(i))
    h_top(i + 1)
    S.bg_pop(2)
    if i == 20:
        assert nissued[0] == 28
        g4 = take(14)
        sv = g4[0:4]; xe = g4[4:8]; xv = g4[8:10]; ft = g4[10:12]; ex = g4[12]
        vXT, vXL, vSa = ex[0], ex[1], ex[2]
        q = Q(); c = q.I
        c(f"v_add_u32 {vYW}, {sW13}, {vL16}")
        for k in (1, 2, 3): c(f"v_xor_b32 {vRd[k]}, {k*8192}, {vYW}")
        c(f"s_lshr_b32 {sT[0]}, {sW12}, 1"); c(f"s_add_u32 {sT[0]}, {sT[0]}, {L_XT}")
        c(f"v_lshlrev_b32 {vXT}, 6, {vL31}"); c(f"v_lshl_add_u32 {vXT}, {vHH}, 3, {vXT}"); c(f"v_add_u32 {vXT}, {sT[0]}, {vXT}")
        c(f"v_add_u32 {vXL}, {sT[0]}, {vL16}")
        for g in range(4): c(f"ds_read_b64 {xv[g>>1][2*(g&1):2*(g&1)+2]}, {vXT} offset:{16*g}")
        c(f"s_add_u32 {sT[0]}, {sW12}, {L_SX}"); c(f"v_add_u32 {vSa}, {sT[0]}, {vL16}")
        c(f"v_lshlrev_b32 {vRS}, 16, {vRS}"); c(f"v_rcp_f32 {vRS}, {vRS}")
        for e in range(8):
            c(f"v_lshlrev_b32 {xe[e>>1][2*(e&1)]}, 16, {xv[e>>2][e&3]}"); c(f"v_and_b32 {xe[e>>1][2*(e&1)+1]}, 0xffff0000, {xv[e>>2][e&3]}")
        c(f"v_mul_f32 {ft[1][2]}, {fl(-1.4426950408889634)}, {vRS}"); c(f"v_mul_f32 {ft[1][0]}, {fl(2.0**-19)}, {vRS}")
        S.fq = q.l
for l in wrd(27): I(l)
S.fill_flush()
def ywr(k):
    for g in range(4): I(f"ds_write_b128 {vYW}, {slots[k][4*g:4*g+4]} offset:{soff[k] + g*1024}")
for n, (a, b) in enumerate([(1, 1), (0, 1), (1, 0), (0, 0)]):
    for i in (26, 27):
        I(f"v_mfma_f32_32x32x16_bf16 {yac[a][b]}, {wsrc(i)[a]}, {hb[i][b]}, {yac[a][b]}")
    if n >= 2: ywr(5 - n)
stamp(S)
ywr(1)
post(S, "G_y")
await_(S, GRP_G, "G_y")
stamp(S)
for g in range(4):
    for k in (1, 2, 3): I(f"ds_read_b128 {slots[k][4*g:4*g+4]}, {vRd[k]} offset:{soff[k] + g*1024}")
gv = yac[0][0]; f0 = ft[0]
aw_issue(S, GRP_H)
for g in range(4):
    for e in range(2):
        k = 4 * g + 2 * e
        I(f"v_pk_add_f32 {gv[k:k+2]}, {gv[k:k+2]}, {slots[1][k:k+2]}"); I(f"v_pk_add_f32 {slots[2][k:k+2]}, {slots[2][k:k+2]}, {slots[3][k:k+2]}")
    for e in range(2):
        k = 4 * g + 2 * e
        I(f"v_pk_add_f32 {gv[k:k+2]}, {gv[k:k+2]}, {slots[2][k:k+2]}")
    for e in range(2):
        k = 4 * g + 2 * e
        I(f"v_pk_mul_f32 {f0[2*e:2*e+2]}, {gv[k:k+2]}, {ft[1][2:4]} op_sel_hi:[1,0]")
    for e in range(4): I(f"v_exp_f32 {f0[e]}, {f0[e]}")
    for e in range(2):
        k = 4 * g + 2 * e
        I(f"v_pk_mul_f32 {gv[k:k+2]}, {gv[k:k+2]}, {ft[1][0:2]} op_sel_hi:[1,0]")
    for e in range(4): I(f"v_add_f32 {f0[e]}, 1.0, {f0[e]}")
    for e in range(4): I(f"v_rcp_f32 {f0[e]}, {f0[e]}")
    if g == 2:
        aw_check(S, GRP_H, "H_done")
        for gg in range(4): I(f"ds_read_b128 {sv[gg]}, {vSa} offset:{gg*1024}")
    for e in range(2):
        k = 4 * g + 2 * e
        I(f"v_pk_mul_f32 {gv[k:k+2]}, {gv[k:k+2]}, {f0[2*e:2*e+2]}")
for g in range(4):
    for e in range(2): I(f"v_pk_fma_f32 {xe[g][2*e:2*e+2]}, {gv[4*g+2*e:4*g+2*e+2]}, {sv[g][2*e:2*e+2]}, {xe[g][2*e:2*e+2]}")
    o2 = xv[g>>1][2*(g&1):2*(g&1)+2]
    for e in range(2): I(f"v_cvt_pk_bf16_f32 {o2[e]}, {xe[g][2*e]}, {xe[g][2*e+1]}")
    I(f"ds_write_b64 {vXT}, {o2} offset:{16*g}")
for m in range(2): I(f"ds_read_b128 {sv[m]}, {vXL} offset:{m*1024}")
for m in range(2): I(f"buffer_store_dwordx4 {sv[m]}, {vOA[m]}, {SOUT}, {sOB} offen offset:{m*1024}")
diag_out(S)
S.label("L_end")
I("s_endpgm")

hdr = open("cdna_kernels/%s.s.ref" % NAME).read().split("; Override launch")[0]
out = [hdr.rstrip(), f"; @launch grid=(256,1,1) block=(512,1,1) lds={LDS_TOTAL}",
       '.amdgcn_target "amdgcn-amd-amdhsa--gfx950"']
out += [f".set EP_{k}, {v}" for k, v in EP.items()]
out += [".text", f".globl {NAME}_kernel", ".p2align 8", f".type {NAME}_kernel,@function", f"{NAME}_kernel:"]
out += C.lines + H.lines[:Hstart_end] + ["  s_branch L_H2"] + G.lines + ["L_H2:"] + H.lines[Hstart_end:]
for f in tail: out += f.lines
out.append("L_code_end:")
out += ['.section .rodata,"a"', ".p2align 6", f".amdhsa_kernel {NAME}_kernel",
        "  .amdhsa_next_free_vgpr 256", "  .amdhsa_next_free_sgpr 102", "  .amdhsa_accum_offset 256",
        "  .amdhsa_group_segment_fixed_size 0", "  .amdhsa_kernarg_size 72", "  .amdhsa_user_sgpr_count 2",
        "  .amdhsa_user_sgpr_kernarg_segment_ptr 1", "  .amdhsa_system_sgpr_workgroup_id_x 1",
        "  .amdhsa_float_denorm_mode_32 3", ".end_amdhsa_kernel"]
print("\n".join(out))
sys.stderr.write("instrs G %d H %d, vgpr hw G %d H %d, stamps G %d H %d\nEP %s\n" % (G.ninstr, H.ninstr, VG.hw, VH.hw, G.nstamp, H.nstamp, EP))
```

```python
import sys, struct, copy
sys.path.insert(0, "dev")
from fw import *

NAME = "recurrent_scan__spectral_gfnet__dense_activation_relu__prompt"
DIAG = "--diag" in sys.argv
OPT = {"rot2": 2, "nb": 8, "asleep": 1, "psleep": 3, "gpre": 40, "hmode": 1, "pf": 1, "xat": 7,
       "pGa": 3, "pG1": 2, "pGe": 3, "pG2": 0, "pH": 1, "pHc": 1, "pH2": 3}
for a in sys.argv[1:]:
    if "=" in a:
        k, v = a.split("="); OPT[k] = int(v)

def f2u(x): return struct.unpack("<I", struct.pack("<f", x))[0]
def fl(x): return "0x%08x" % f2u(x)

WS_F1 = 0x4000; WS_F2 = 0x9000; WS_F3 = 0x10000; WS_ST = 0x18000; WS_XCC = 0x1c000; WS_GF = 0x1d000
WS_DIAG = 0x20000; WS_DUM = 0x40000; WS_WN = 0x50000
WS_X1 = 0x100000; WS_Y1 = 0x600000; WS_H = 0x800000; WS_SIZE = 0x1000000
S4 = 131072
L_XN = S4; L_GA = S4 + 8192; GP = 272
L_XC = S4; L_EX = S4 + 16384; L_SP = S4; L_SX = S4; L_XT = S4 + 16384
L_PROG = S4 + 25600; L_WN = L_PROG + 64; L_CS = S4 + 25856; L_MEAN = S4 + 26880
LDS_TOTAL = 163840

SX, SA, SB, SW2, SOUT, SWS = ("s[%d:%d]" % (b, b + 3) for b in (8, 12, 16, 24, 28, 32))
sXCD, sJ, sW, sTAG, sQ, sCB, sHQ, sSPIN = ("s%d" % i for i in range(36, 44))
sT = ["s%d" % i for i in range(44, 52)]
sB0, sIdx, sBaseA, sBaseB, sU0, sU1, sU2, sU3, sU4 = ("s%d" % i for i in range(52, 61))
sW12, sW13, sS0 = "s61", "s62", "s63"
sR2, sAa, sFB, sTT = "s20", "s21", "s22", "s23"
sF1, sF2, sMODE, sW2b, sW8 = "s4", "s5", "s6", "s7", "s3"

tail = []
EP = {}
class Q:
    def __init__(self): self.l = []
    def I(self, text, **kw): self.l.append((text, kw))
def groups_of(fn):
    cap = Q(); fn(cap); gs = []; grp = []
    for it in cap.l:
        grp.append(it)
        if it[0].startswith("buffer_load"):
            gs.append(grp); grp = []
    gs[-1] += grp
    return gs
def stamp(st, lvl=0):
    if DIAG and lvl <= OPT.get("fine", 1):
        k = st.nstamp; st.nstamp += 1
        assert k < 15
        st.I("%s s[%d:%d]" % ("s_memtime" if OPT.get("cyc") else "s_memrealtime", 100 - 2 * k, 101 - 2 * k), counted=False)
def prio(st, key): st.I("s_setprio %d" % OPT[key])
def srd(st, name, lo, hi, nbytes):
    b = int(name[2:name.index(":")])
    st.I(f"s_mov_b32 s{b}, s{lo}"); st.I(f"s_and_b32 s{b+1}, s{hi}, 0xffff")
    st.I(f"s_mov_b32 s{b+2}, {nbytes}"); st.I(f"s_mov_b32 s{b+3}, 0x20000")
nlab = [0]
def newlab():
    nlab[0] += 1; return nlab[0]
def side(label):
    F = Stream(); tail.append(F); F.label(label); return F

def poll_check(st, loads, reg):
    k = newlab()
    st.atomic += 1
    st.I(f"v_cmp_ne_u32 vcc, {sTAG}, {reg}")
    st.nop(1)
    st.I(f"s_cbranch_vccnz L_slow{k}")
    st.label(f"L_got{k}")
    st.atomic -= 1
    F = side(f"L_slow{k}")
    F.I(f"s_mov_b32 {sSPIN}, 0")
    F.label(f"L_spin{k}")
    F.I("s_mov_b64 exec, vcc")
    F.I("s_sleep %d" % OPT["psleep"])
    for l in loads: F.I(l)
    F.wait_all(vm=True, lg=False, force=True)
    F.I(f"v_cmp_ne_u32 vcc, {sTAG}, {reg}")
    F.I("s_mov_b64 exec, -1")
    F.I(f"s_cbranch_vccz L_got{k}")
    F.I(f"s_add_u32 {sSPIN}, {sSPIN}, 1")
    F.I(f"s_cmp_lt_u32 {sSPIN}, 200000")
    F.I(f"s_cbranch_scc1 L_spin{k}")
    F.I(f"s_branch L_got{k}")
def post(st, name, alias=False):
    if not alias:
        st.epoch += 1
        assert name not in EP
        EP[name] = st.epoch
    st.atomic += 1
    st.I(f"v_mov_b32 {vSY[1]}, EP_{name}")
    st.I("s_mov_b64 exec, 1")
    st.I(f"ds_write_b32 {vPME}, {vSY[1]}")
    st.I("s_mov_b64 exec, -1")
    st.atomic -= 1
def reserve(st, name):
    st.epoch += 1; EP[name] = st.epoch
def aw_issue(st, grp): st.I(f"ds_read_b32 {vSY[0]}, {vPG} offset:{16*grp}")
def aw_check(st, grp, name):
    k = newlab()
    st.atomic += 1
    st.I(f"v_cmp_gt_u32 vcc, EP_{name}, {vSY[0]}")
    st.nop(1)
    st.I(f"s_cbranch_vccnz L_aslow{k}")
    st.label(f"L_agot{k}")
    st.atomic -= 1
    F = side(f"L_aslow{k}")
    F.I(f"s_mov_b32 {sSPIN}, 0")
    F.label(f"L_aspin{k}")
    if OPT["asleep"]: F.I("s_sleep %d" % OPT["asleep"])
    F.I(f"ds_read_b32 {vSY[0]}, {vPG} offset:{16*grp}")
    F.wait_all(vm=False, lg=True, force=True)
    F.I(f"v_cmp_gt_u32 vcc, EP_{name}, {vSY[0]}")
    F.nop(1)
    F.I(f"s_cbranch_vccz L_agot{k}")
    F.I(f"s_add_u32 {sSPIN}, {sSPIN}, 1")
    F.I(f"s_cmp_lt_u32 {sSPIN}, 0x400000")
    F.I(f"s_cbranch_scc1 L_aspin{k}")
    F.I(f"s_branch L_agot{k}")
def await_(st, grp, name):
    aw_issue(st, grp); aw_check(st, grp, name)
GRP_G, GRP_H = 0, 1
def flag(st, soff, counted=True):
    st.atomic += 1
    st.I("s_mov_b64 exec, 1")
    st.I(f"buffer_store_dword {vTAG}, {vZ}, {SWS}, {soff} offen sc1", counted=counted)
    st.I("s_mov_b64 exec, -1")
    st.atomic -= 1
def flag_mode(st, soff):
    k = newlab()
    st.atomic += 1
    st.I("s_mov_b64 exec, 1")
    st.I(f"s_cmp_lg_u32 {sMODE}, 0"); st.I(f"s_cbranch_scc1 L_fm{k}")
    st.I(f"buffer_store_dword {vTAG}, {vZ}, {SWS}, {soff} offen")
    st.label(f"L_fmd{k}")
    st.I("s_mov_b64 exec, -1")
    st.atomic -= 1
    F = side(f"L_fm{k}")
    F.I(f"buffer_store_dword {vTAG}, {vZ}, {SWS}, {soff} offen sc1"); F.I(f"s_branch L_fmd{k}")
def cmul_tw(st, re, im, c, s, t0, out):
    st.I(f"v_mul_f32 {t0[0]}, {re}, {c}")
    st.I(f"v_mul_f32 {t0[1]}, {im}, {c}")
    st.I(f"v_fmac_f32 {t0[0]}, {im}, {s}")
    st.I(f"v_fma_f32 {t0[1]}, -{re}, {s}, {t0[1]}")
    st.I(f"v_cvt_pk_bf16_f32 {out}, {t0[0]}, {t0[1]}")
def make_tag(st):
    st.I(f"v_readfirstlane_b32 {sT[4]}, {vE}")
    st.I(f"s_mul_i32 {sTAG}, {sT[4]}, 0x9E3779B1"); st.I(f"s_add_u32 {sTAG}, {sTAG}, 0x7F4A7C15")
    st.I(f"v_mov_b32 {vTAG}, {sTAG}")
def part_idx(st, dst, p, tmp):
    if p == 0: st.I(f"s_mov_b32 {dst}, {sR2}"); return
    st.I(f"s_add_u32 {dst}, {sR2}, {p}"); st.I(f"s_sub_u32 {tmp}, {dst}, 7"); st.I(f"s_cmp_ge_u32 {dst}, 7"); st.I(f"s_cselect_b32 {dst}, {tmp}, {dst}")
W2SLOT = [0, 1, 2, 3, 0, 1, 2]
def w2_dma(st, p):
    for g in range(2):
        if g == 0:
            part_idx(st, sB0, p, "m0")
            st.I(f"s_lshl_b32 {sB0}, {sB0}, 16"); st.I(f"s_add_u32 {sB0}, {sB0}, {sW2b}")
        else:
            st.I(f"s_add_u32 {sB0}, {sB0}, 32768")
        st.I(f"s_add_u32 m0, {sW13}, {W2SLOT[p] * 32768 + g * 4096}")
        for m in range(4):
            st.I(f"buffer_load_dwordx4 {vW2D[m]}, {SW2}, {sB0} offen offset:{m*1024} lds", tag=f"w2p{p}")
def misc_lane(c, t):
    c(f"v_and_b32 {t[0]}, 1, {vH}"); c(f"v_lshlrev_b32 {t[1]}, 5, {t[0]}"); c(f"v_lshl_add_u32 {vTRL}, {vL3}, 3, {t[1]}")
    c(f"v_lshrrev_b32 {t[1]}, 3, {vL31}"); c(f"v_lshlrev_b32 {t[1]}, 5, {t[1]}")
    c(f"v_bfe_u32 {t[2]}, {vL}, 2, 1"); c(f"v_lshl_add_u32 {t[1]}, {t[2]}, 4, {t[1]}"); c(f"v_add_u32 {vRowOff}, {t[1]}, {vL3}")
    c(f"v_lshlrev_b32 {t[1]}, 2, {t[0]}"); c(f"v_and_b32 {t[2]}, 7, {vL}"); c(f"v_xor_b32 {t[1]}, {t[1]}, {t[2]}")
    c(f"v_lshlrev_b32 {vD8}, 4, {t[1]}"); c(f"v_lshrrev_b32 {t[2]}, 3, {vL}")
    c(f"v_lshl_add_u32 {vW2D[0]}, {t[2]}, 10, {vD8}")
    for m in range(1, 4): c(f"v_add_u32 {vW2D[m]}, {m*(8192-1024)}, {vW2D[0]}")
    c(f"v_lshl_add_u32 {t[1]}, {vHH}, 2, {vRp}"); c(f"v_lshl_add_u32 {t[1]}, {t[1]}, 7, {vTRL}")
    c(f"v_lshrrev_b32 {t[2]}, 1, {vRp}"); c(f"v_lshl_add_u32 {vTRa}, {t[2]}, 6, {t[1]}")
    c(f"s_mul_i32 {sW2b}, {sW}, {448*1024}"); c(f"s_lshl_b32 {sR2}, {sCB}, 7"); c(f"s_add_u32 {sW2b}, {sW2b}, {sR2}")
    if OPT["rot2"] == 3: c(f"s_add_u32 {sR2}, {sXCD}, {sCB}")
    elif OPT["rot2"] == 2: c(f"s_mov_b32 {sR2}, {sXCD}")
    else: c(f"s_mov_b32 {sR2}, 0")
    c(f"s_mul_i32 {sTT}, {sR2}, 37"); c(f"s_lshr_b32 {sTT}, {sTT}, 8"); c(f"s_mul_i32 {sTT}, {sTT}, 7"); c(f"s_sub_u32 {sR2}, {sR2}, {sTT}")
def h_base(c, dst, tmp):
    c(f"s_lshl_b32 {tmp}, {sAa}, 1"); c(f"s_and_b32 {sTT}, {sW}, 1"); c(f"s_add_u32 {tmp}, {tmp}, {sTT}")
    c(f"s_lshl_b32 {sTT}, {sXCD}, 2"); c(f"s_add_u32 {sTT}, {sTT}, {tmp}")
    c(f"s_mul_i32 {dst}, {sTT}, 229376"); c(f"s_lshl_b32 {tmp}, {sFB}, 14"); c(f"s_add_u32 {dst}, {dst}, {tmp}")
    c(f"s_lshr_b32 {tmp}, {sW}, 1"); c(f"s_lshl_b32 {tmp}, {tmp}, 13"); c(f"s_add_u32 {dst}, {dst}, {tmp}"); c(f"s_add_u32 {dst}, {dst}, {WS_H}")
def f32_consts(c, F, fq, fh4, tt, cs):
    c(f"v_mul_f32 {tt[0]}, {fl(1/32)}, {fq}"); c(f"v_mul_f32 {tt[1]}, {tt[0]}, {fh4}")
    c(f"v_and_b32 {tt[2]}, 1, {vL}"); c(f"v_mul_u32_u24 {tt[2]}, 0x8000, {tt[2]}"); c(f"v_lshl_or_b32 {tt[2]}, {tt[2]}, 16, {tt[2]}")
    for r in range(4):
        c(f"v_cos_f32 {cs[0]}, {tt[1]}"); c(f"v_sin_f32 {cs[1]}, {tt[1]}")
        if r < 3: c(f"v_add_f32 {tt[1]}, {tt[1]}, {tt[0]}")
        c(f"v_cvt_pk_bf16_f32 {F[0][0][r]}, {cs[0]}, {cs[1]}")
        c(f"v_cvt_pk_bf16_f32 {F[0][1][r]}, -{cs[1]}, {cs[0]}")
        for p in range(2): c(f"v_xor_b32 {F[1][p][r]}, {tt[2]}, {F[0][p][r]}")
sAD, sKH, sOB = sU2, sU3, sBaseA
def out_addr(c, vOA, tmp):
    c(f"s_and_b32 {sAD}, {sW}, 1"); c(f"s_lshr_b32 {sKH}, {sW}, 1")
    c(f"v_lshlrev_b32 {tmp[0]}, 5, {vHH}"); c(f"v_and_b32 {tmp[1]}, 1, {vH}"); c(f"v_lshl_add_u32 {tmp[0]}, {tmp[1]}, 4, {tmp[0]}"); c(f"v_add_u32 {tmp[0]}, {tmp[0]}, {vRp}")
    c(f"v_lshlrev_b32 {tmp[1]}, 4, {vL3}"); c(f"v_lshl_add_u32 {vOA[0]}, {tmp[0]}, 10, {tmp[1]}")
    c(f"v_add_u32 {vOA[1]}, {65536-1024}, {vOA[0]}")
    c(f"s_lshl_b32 {sOB}, {sXCD}, 8"); c(f"s_lshl_b32 {sT[0]}, {sKH}, 7"); c(f"s_add_u32 {sOB}, {sOB}, {sT[0]}"); c(f"s_lshl_b32 {sT[0]}, {sHQ}, 2"); c(f"s_add_u32 {sOB}, {sOB}, {sT[0]}")
    c(f"s_lshl_b32 {sT[3]}, {sOB}, 3"); c(f"s_add_u32 {sT[3]}, {sT[3]}, {WS_ST}")
    c(f"s_lshl_b32 {sOB}, {sOB}, 10"); c(f"s_lshl_b32 {sT[0]}, {sCB}, 7"); c(f"s_add_u32 {sOB}, {sOB}, {sT[0]}"); c(f"s_lshl_b32 {sT[0]}, {sAD}, 6"); c(f"s_add_u32 {sOB}, {sOB}, {sT[0]}")
def diag_out(st):
    if not DIAG: return
    st.wait_all(force=True)
    stamp(st)
    st.wait_all(force=True)
    st.I(f"s_lshl_b32 {sT[0]}, s2, 3"); st.I(f"s_add_u32 {sT[0]}, {sT[0]}, {sW8}"); st.I(f"s_lshl_b32 {sT[0]}, {sT[0]}, 6"); st.I(f"s_add_u32 {sT[0]}, {sT[0]}, {WS_DIAG}")
    st.I("s_mov_b64 exec, 1")
    for k in range(st.nstamp):
        st.I(f"v_mov_b32 {t[0]}, s{100-2*k}")
        st.I(f"buffer_store_dword {t[0]}, {vZ}, {SWS}, {sT[0]} offen offset:{4*k}")

C = Stream(); C.nstamp = 0
V = Pool("v", 1, 255)
I = C.I
I("s_cmp_ge_u32 s2, 256")
I("s_cbranch_scc1 L_end")
stamp(C)
I("s_load_dwordx16 s[64:79], s[0:1], 0")
I("s_load_dwordx2 s[80:81], s[0:1], 64")
vL = V.alloc(); vSY = V.alloc(2); t = V.alloc(8); vW2D = V.alloc(4)
vL15 = V.alloc(); vH = V.alloc(); vL16 = V.alloc(); vZ = V.alloc(); vTAG = V.alloc()
vHH = V.alloc(); vL31 = V.alloc(); vRp = V.alloc(); vTRL = V.alloc(); vRowOff = V.alloc(); vL3 = V.alloc()
vPG = V.alloc(); vPME = V.alloc(); vE = V.alloc(); vD8 = V.alloc(); vTRa = V.alloc()
I(f"v_lshrrev_b32 {t[0]}, 6, v0"); I(f"v_and_b32 {vL3}, 3, v0")
I(f"v_and_b32 {vL}, 63, v0")
I(f"v_readfirstlane_b32 {sW8}, {t[0]}")
I(f"v_mov_b32 {vZ}, 0")
I(f"v_lshlrev_b32 {vL16}, 4, {vL}")
I(f"v_lshlrev_b32 {vPME}, 2, {t[0]}"); I(f"v_add_u32 {vPME}, {L_PROG}, {vPME}")
I(f"ds_write_b32 {vPME}, {vZ}")
I(f"s_lshr_b32 {sJ}, s2, 3"); I(f"s_and_b32 {sXCD}, s2, 7")
I("s_getpc_b64 s[4:5]")
C.label("L_pc")
I("s_and_b32 s5, s5, 0xffff")
I("s_mov_b32 s6, L_code_end-L_pc"); I("s_mov_b32 s7, 0x20000")
I(f"s_lshl_b32 {sT[0]}, {sJ}, 11"); I(f"s_lshl_b32 {sT[1]}, {sW8}, 8"); I(f"s_add_u32 {sT[0]}, {sT[0]}, {sT[1]}")
I(f"v_lshlrev_b32 {t[1]}, 7, {vL}")
I("s_mov_b64 exec, 3")
I(f"buffer_load_dword v255, {t[1]}, s[4:7], {sT[0]} offen", nodef=True)
I("s_mov_b64 exec, -1")
I(f"s_and_b32 {sW}, {sW8}, 3")
I(f"s_lshr_b32 {sCB}, {sJ}, 2"); I(f"s_and_b32 {sHQ}, {sJ}, 3")
I(f"s_lshl_b32 {sW12}, {sW}, 12"); I(f"s_lshl_b32 {sW13}, {sW}, 13")
I(f"s_and_b32 {sAa}, {sJ}, 1"); I(f"s_lshr_b32 {sFB}, {sJ}, 1")
I(f"v_and_b32 {vL15}, 15, v0")
I(f"v_lshrrev_b32 {vH}, 4, {vL}")
I(f"v_lshrrev_b32 {vHH}, 5, {vL}"); I(f"v_and_b32 {vL31}, 31, {vL}"); I(f"v_bfe_u32 {vRp}, {vL}, 2, 2")
I(f"v_lshlrev_b32 {vPG}, 2, {vL3}"); I(f"v_add_u32 {vPG}, {L_PROG}, {vPG}")
I(f"s_cmp_lt_u32 {sW8}, 4")
I("s_cbranch_scc1 L_G")
VG = copy.deepcopy(V); VH = copy.deepcopy(V)
G = C.fork(); G.nstamp = C.nstamp; G.epoch = 0
H = C.fork(); H.nstamp = C.nstamp; H.epoch = 0

S = H; V = VH; I = H.I
prio(S, "pH")
vXD = V.alloc(4); vW1D = V.alloc(4)
I(f"v_lshlrev_b32 {t[0]}, 14, {vHH}")
I(f"v_bfe_u32 {t[1]}, {vL}, 3, 2"); I(f"v_lshl_add_u32 {t[0]}, {t[1]}, 10, {t[0]}")
I(f"v_and_b32 {t[3]}, 7, {vL}"); I(f"v_xor_b32 {t[1]}, {t[3]}, {vH}")
I(f"v_lshl_add_u32 {vXD[0]}, {t[1]}, 4, {t[0]}")
I(f"v_xor_b32 {t[2]}, 64, {vXD[0]}")
I(f"v_add_u32 {vXD[1]}, {31744}, {t[2]}"); I(f"v_add_u32 {vXD[2]}, {2*31744}, {vXD[0]}"); I(f"v_add_u32 {vXD[3]}, {3*31744}, {t[2]}")
I(f"v_mul_u32_u24 {t[0]}, 3584, {vH}")
I(f"v_xor_b32 {t[1]}, {vRp}, {vH}")
I(f"v_lshl_add_u32 {t[0]}, {t[1]}, 6, {t[0]}")
I(f"v_lshl_add_u32 {vW1D[0]}, {vL3}, 4, {t[0]}")
for m in range(1, 4): I(f"v_add_u32 {vW1D[m]}, {m*(4*3584-1024)}, {vW1D[0]}")
I(f"s_lshl_b32 {sBaseA}, {sXCD}, 8"); I(f"s_and_b32 {sT[0]}, {sW}, 1"); I(f"s_lshl_b32 {sT[0]}, {sT[0]}, 7"); I(f"s_add_u32 {sBaseA}, {sBaseA}, {sT[0]}")
I(f"s_lshl_b32 {sT[0]}, {sAa}, 3"); I(f"s_add_u32 {sBaseA}, {sBaseA}, {sT[0]}")
I(f"s_lshr_b32 {sT[0]}, {sW}, 1"); I(f"s_lshl_b32 {sT[0]}, {sT[0]}, 2"); I(f"s_add_u32 {sBaseA}, {sBaseA}, {sT[0]}")
I(f"s_lshl_b32 {sBaseA}, {sBaseA}, 10")
I(f"s_mul_i32 {sBaseB}, {sW}, {16*3584}"); I(f"s_lshl_b32 {sT[0]}, {sFB}, 8"); I(f"s_add_u32 {sBaseB}, {sBaseB}, {sT[0]}")
I(f"s_mov_b32 {sIdx}, {sXCD}")
I(f"s_lshr_b32 {sT[0]}, {sXCD}, 1"); I(f"s_lshl_b32 {sT[0]}, {sT[0]}, 4"); I(f"s_and_b32 {sT[1]}, {sJ}, 15"); I(f"s_add_u32 {sT[0]}, {sT[0]}, {sT[1]}")
I(f"s_and_b32 {sT[1]}, {sXCD}, 1"); I(f"s_lshl_b32 {sT[1]}, {sT[1]}, 1"); I(f"s_lshr_b32 {sT[2]}, {sJ}, 4"); I(f"s_add_u32 {sT[1]}, {sT[1]}, {sT[2]}")
I(f"s_lshl_b32 {sT[1]}, {sT[1]}, 9"); I(f"s_add_u32 {sT[0]}, {sT[0]}, {sT[1]}"); I(f"s_lshl_b32 {sT[1]}, {sW}, 7"); I(f"s_add_u32 {sT[0]}, {sT[0]}, {sT[1]}")
I(f"s_mul_i32 {sT[6]}, {sT[0]}, 514"); I(f"s_add_u32 {sT[7]}, {sT[6]}, {64*514}")
wq = V.alloc(8); wn = V.alloc(2); wo = V.alloc(8); vL8 = V.alloc(); vWN = V.alloc(); vWG = V.alloc(); vPs = V.alloc(2)
I(f"v_lshlrev_b32 {vL8}, 3, {vL}")
I(f"v_and_b32 {t[0]}, 1, {vL}"); I(f"v_mul_u32_u24 {vWN}, {64*514}, {t[0]}")
S.wait_all(vm=False, force=True)
stamp(S)
srd(S, SA, 64, 65, 2048 * 1024); srd(S, SB, 72, 73, 512 * 3584)
I(f"s_cmp_lt_u32 {sJ}, 28"); I("s_cselect_b32 s14, s14, 0"); I("s_cselect_b32 s18, s18, 0")
srd(S, SX, 66, 67, 2048 * 514); srd(S, SOUT, 68, 69, 2048 * 514)
srd(S, SWS, 80, 81, WS_SIZE)
I("s_barrier")
def g1_dma(st, c, between=None):
    for which, (vD, sr, base, cm) in enumerate(((vW1D, SB, sBaseB, 64 * 3584), (vXD, SA, sBaseA, 128))):
        st.I(f"s_mul_i32 {sB0}, {sIdx}, {cm}"); st.I(f"s_add_u32 {sB0}, {sB0}, {base}")
        st.I(f"s_add_u32 m0, {sW12}, {(c & 3) * 32768 + (1 - which) * 16384}")
        for m in range(4):
            st.I(f"buffer_load_dwordx4 {vD[m]}, {sr}, {sB0} offen offset:{m*1024} lds", tag=f"g1c{c}")
            if between: between()
    st.I(f"s_add_u32 {sIdx}, {sIdx}, 1"); st.I(f"s_and_b32 {sIdx}, {sIdx}, 7")
I(f"buffer_load_dword {vE}, {vZ}, {SWS}, 0 offen sc1")
def w_loads():
    for rho in range(2):
        I(f"buffer_load_dwordx2 {wq[4*rho:4*rho+2]}, {vL8}, {SX}, {sT[6+rho]} offen")
        I(f"buffer_load_dwordx2 {wq[4*rho+2:4*rho+4]}, {vL8}, {SOUT}, {sT[6+rho]} offen")
    I("s_mov_b64 exec, 3")
    I(f"buffer_load_ushort {wn[0]}, {vWN}, {SX}, {sT[6]} offen offset:512")
    I(f"buffer_load_ushort {wn[1]}, {vWN}, {SOUT}, {sT[6]} offen offset:512")
    I("s_mov_b64 exec, -1")
if OPT.get("wfirst", 0): w_loads()
g1_dma(S, 0)
if not OPT.get("wfirst", 0): w_loads()
g1_dma(S, 1)
Hstart_end = len(S.lines)
srd(S, SX, 64, 65, 2048 * 1024); srd(S, SW2, 74, 75, 1792 * 1024)
fq = V.alloc(); fh4 = V.alloc()
F32 = [[[V.alloc(4) for p in range(2)] for tt in range(2)] for tau in range(2)]
F64 = [[V.alloc(4) for p in range(2)] for u in range(4)]
TFc = V.alloc(8); TFs = V.alloc(8); TIc = V.alloc(8); TIs = V.alloc(8)
ft = V.alloc(8); vXCa = V.alloc(4); mm = V.alloc(4)
vXCr = V.alloc(); vKs = V.alloc(); vWr = V.alloc(); vST = V.alloc(); vMW = V.alloc(); vPXC = V.alloc(); vPF = V.alloc(); pf1 = V.alloc()
sXC0, sPFb, sGF, sHP = sU0, sU1, sU4, sU3
q = Q(); c = q.I
c(f"v_lshrrev_b32 {ft[0]}, 2, {vL}"); c(f"v_lshl_add_u32 {ft[0]}, {vL3}, 4, {ft[0]}"); c(f"v_mul_u32_u24 {ft[0]}, {GP}, {ft[0]}")
c(f"s_lshl_b32 {sT[1]}, {sW}, 3"); c(f"s_add_u32 {sT[1]}, {sT[1]}, {L_GA + 32}"); c(f"v_add_u32 {vWG}, {sT[1]}, {ft[0]}")
c(f"v_mov_b32 {vPs[0]}, 0x05040100"); c(f"v_mov_b32 {vPs[1]}, 0x07060302")
misc_lane(c, ft)
c(f"s_add_u32 {sQ}, {sJ}, 4"); c(f"s_and_b32 {sQ}, {sQ}, 31")
c(f"s_lshl_b32 {sT[0]}, {sXCD}, 5"); c(f"s_add_u32 {sQ}, {sQ}, {sT[0]}")
c(f"s_lshr_b32 {sPFb}, {sJ}, 3"); c(f"s_mul_i32 {sPFb}, {sPFb}, {448*1024}"); c(f"s_and_b32 {sT[0]}, {sJ}, 7"); c(f"s_lshl_b32 {sT[0]}, {sT[0]}, 13")
c(f"s_add_u32 {sPFb}, {sPFb}, {sT[0]}"); c(f"s_lshr_b32 {sT[0]}, {sW12}, 1"); c(f"s_add_u32 {sPFb}, {sPFb}, {sT[0]}")
c(f"v_lshlrev_b32 {vPF}, 7, {vL}")
h_base(c, sHP, sT[0])
c(f"s_lshl_b32 {sGF}, {sXCD}, 8"); c(f"s_add_u32 {sGF}, {sGF}, {WS_GF}")
n_addr1 = len(q.l)
fk, a0, fw16 = ft[5], ft[6], ft[7]
c(f"v_lshrrev_b32 {ft[0]}, 2, {vL}"); c(f"v_xor_b32 {ft[1]}, {vH}, {vL3}")
c(f"v_lshlrev_b32 {ft[0]}, 7, {ft[0]}"); c(f"v_lshl_add_u32 {vXCa[0]}, {ft[1]}, 4, {ft[0]}")
for m in range(1, 4): c(f"v_add_u32 {vXCa[m]}, {m*1024}, {vXCa[0]}")
c(f"s_lshr_b32 {sXC0}, {sQ}, 1"); c(f"s_lshl_b32 {sXC0}, {sXC0}, 15"); c(f"s_and_b32 {sT[0]}, {sQ}, 1"); c(f"s_lshl_b32 {sT[0]}, {sT[0]}, 6")
c(f"s_add_u32 {sXC0}, {sXC0}, {sT[0]}"); c(f"s_add_u32 {sXC0}, {sXC0}, {sW13}"); c(f"s_add_u32 {sXC0}, {sXC0}, {WS_X1}")
c(f"v_and_b32 {ft[1]}, 1, {vH}"); c(f"v_xor_b32 {ft[0]}, {vRp}, {ft[1]}")
c(f"v_lshlrev_b32 {ft[1]}, 6, {vL15}"); c(f"v_lshl_add_u32 {ft[1]}, {ft[0]}, 4, {ft[1]}"); c(f"v_add_u32 {ft[1]}, {L_XC}, {ft[1]}")
c(f"v_lshl_add_u32 {vXCr}, {vHH}, 11, {ft[1]}")
c(f"v_xor_b32 {ft[1]}, 32, {ft[1]}"); c(f"v_lshl_add_u32 {ft[1]}, {vHH}, 10, {ft[1]}"); c(f"v_add_u32 {vWr}, {sW12}, {ft[1]}")
c(f"s_lshl_b32 {sT[0]}, {sW}, 4")
c(f"v_lshl_add_u32 {vKs}, {vH}, 8, {vL15}"); c(f"v_add_u32 {vKs}, {sT[0]}, {vKs}")
c(f"v_cvt_f32_u32 {fw16}, {sT[0]}")
c(f"s_and_b32 {sT[0]}, {sTT}, 3"); c(f"s_lshl_b32 {sT[0]}, {sT[0]}, 2"); c(f"s_lshl_b32 {sT[1]}, {sXCD}, 8"); c(f"s_add_u32 {sT[0]}, {sT[0]}, {sT[1]}")
c(f"s_lshl_b32 {sT[0]}, {sT[0]}, 3"); c(f"s_add_u32 {sT[0]}, {sT[0]}, {WS_ST}")
c(f"v_lshlrev_b32 {ft[0]}, 3, {vRowOff}"); c(f"v_lshl_add_u32 {ft[0]}, {vHH}, 10, {ft[0]}"); c(f"v_add_u32 {vST}, {sT[0]}, {ft[0]}")
c(f"s_lshl_b32 {sT[0]}, {sW}, 8"); c(f"s_add_u32 {sT[0]}, {sT[0]}, {L_MEAN}"); c(f"v_lshl_add_u32 {vMW}, {vL}, 2, {sT[0]}")
c(f"s_lshl_b32 {sT[0]}, {sXCD}, 9"); c(f"s_add_u32 {sT[0]}, {sT[0]}, {WS_XCC}"); c(f"v_lshl_add_u32 {vPXC}, {vL31}, 4, {sT[0]}")
c(f"v_cvt_f32_u32 {fq}, {vL15}"); c(f"v_lshlrev_b32 {ft[0]}, 2, {vH}"); c(f"v_cvt_f32_u32 {fh4}, {ft[0]}")
f32_consts(c, F32[0], fq, fh4, ft[0:3], ft[3:5])
for tt in range(2):
    for p in range(2):
        for r in range(4):
            if r % 2 == 0: c(f"v_mov_b32 {F32[1][tt][p][r]}, {F32[0][tt][p][r]}")
            else: c(f"v_xor_b32 {F32[1][tt][p][r]}, 0x80008000, {F32[0][tt][p][r]}")
c(f"v_add_f32 {fk}, {fw16}, {fq}"); c(f"v_mul_f32 {fk}, {fl(1/64)}, {fk}")
c(f"v_mul_f32 {a0}, {fk}, {fh4}")
for u in range(4):
    for r in range(4):
        c(f"v_fmamk_f32 {ft[0]}, {fk}, {fl(16*u+r)}, {a0}")
        c(f"v_cos_f32 {ft[1]}, {ft[0]}"); c(f"v_sin_f32 {ft[2]}, {ft[0]}")
        c(f"v_mul_f32 {ft[3]}, {fl(1/32)}, {ft[0]}")
        c(f"v_cvt_pk_bf16_f32 {F64[u][0][r]}, {ft[1]}, {ft[2]}")
        c(f"v_cvt_pk_bf16_f32 {F64[u][1][r]}, -{ft[2]}, {ft[1]}")
        if u < 2:
            c(f"v_cos_f32 {TFc[4*u+r]}, {ft[3]}"); c(f"v_sin_f32 {TFs[4*u+r]}, {ft[3]}")
c(f"v_add_f32 {ft[4]}, {fw16}, {fh4}")
for tt in range(2):
    c(f"v_add_f32 {ft[5]}, {fl(16.0*tt)}, {fq}"); c(f"v_mul_f32 {ft[5]}, {fl(1/2048)}, {ft[5]}")
    c(f"v_mul_f32 {ft[6]}, {ft[5]}, {ft[4]}")
    for r in range(4):
        c(f"v_fmamk_f32 {ft[0]}, {ft[5]}, {fl(r)}, {ft[6]}")
        c(f"v_cos_f32 {TIc[4*tt+r]}, {ft[0]}"); c(f"v_sin_f32 {TIs[4*tt+r]}, {ft[0]}")
S.fq = q.l
S.fill(8)
stamp(S, 2)
fb = lambda: S.fill(OPT.get("hf", 5))
make_tag(S)
for rho in range(2):
    for cc in range(4):
        I(f"v_perm_b32 {wo[2*cc+rho]}, {wq[4*rho+2+(cc>>1)]}, {wq[4*rho+(cc>>1)]}, {vPs[cc&1]}")
for cc in range(4): I(f"ds_write_b64 {vWG}, {wo[2*cc:2*cc+2]} offset:{64*cc}")
I(f"v_lshl_or_b32 {wn[0]}, {wn[1]}, 16, {wn[0]}")
I(f"s_lshl_b32 {sT[3]}, {sW}, 3"); I(f"s_add_u32 {sT[3]}, {sT[3]}, {L_WN}"); I(f"v_lshl_add_u32 {t[1]}, {vL}, 2, {sT[3]}")
I("s_mov_b64 exec, 3")
I(f"ds_write_b32 {t[1]}, {wn[0]}")
I("s_mov_b64 exec, -1")
V.release(wq, wn, wo, vL8, vWN, vWG, vPs)
stamp(S, 2)
S.wait_tag("g1c0")
post(S, "H_c0")
stamp(S, 2)
g1_dma(S, 2, fb)
S.wait_tag("g1c1"); post(S, "H_c1")
g1_dma(S, 3, fb)
stamp(S)
npf = [0]
def pf(n):
    for _ in range(n):
        if OPT["pf"] and npf[0] < 7:
            I(f"s_add_u32 {sS0}, {sXCD}, {npf[0]}"); I(f"s_sub_u32 {sB0}, {sS0}, 7"); I(f"s_cmp_ge_u32 {sS0}, 7"); I(f"s_cselect_b32 {sS0}, {sB0}, {sS0}")
            I(f"s_lshl_b32 {sS0}, {sS0}, 16"); I(f"s_add_u32 {sS0}, {sS0}, {sPFb}")
            I("s_mov_b64 exec, 0xffff")
            I(f"buffer_load_dword v255, {vPF}, {SW2}, {sS0} offen", nodef=True)
            I("s_mov_b64 exec, -1")
            npf[0] += 1
S.wait_tag("g1c2"); post(S, "H_c2")
S.fill(max(0, n_addr1 - 8 - 16 * OPT.get("hf", 5)))
pf(OPT.get("pfa", 0))
if OPT.get("pt"):
    I(f"s_lshl_b32 {sS0}, s2, 2"); I(f"s_add_u32 {sS0}, {sS0}, {sW}"); I(f"s_mul_i32 {sS0}, {sS0}, {14*128}")
    I("s_mov_b64 exec, 0x3fff")
    I(f"buffer_load_dword v255, {vPF}, {SW2}, {sS0} offen", nodef=True)
    I("s_mov_b64 exec, -1")
stamp(S)
LD_L1 = f"buffer_load_dword {pf1}, {vZ}, {SWS}, {sGF} offen sc1"
LD_ST = f"buffer_load_dwordx2 {mm[0:2]}, {vST}, {SWS}, 0 offen sc1"
LD_XC = f"buffer_load_dword {mm[2]}, {vPXC}, {SWS}, 0 offen sc1"
def chunk(cc):
    await_(S, GRP_G, f"G_rel{cc-4}")
    g1_dma(S, cc, fb)
    pf(OPT.get("pfb", 2))
    if cc == 4 and OPT["hmode"] == 2: I(f"buffer_load_dword v255, {vPF}, {SWS}, {sHP} offen", nodef=True)
    S.wait_tag(f"g1c{cc-1}"); post(S, f"H_c{cc-1}")
chunk(4)
I(LD_ST); I(LD_XC)
chunk(5)
poll_check(S, [LD_ST], mm[1])
I(f"v_and_b32 {mm[0]}, 0xffff0000, {mm[0]}")
I(f"ds_write_b32 {vMW}, {mm[0]}")
k = newlab()
I(f"s_getreg_b32 {sT[3]}, hwreg(HW_REG_XCC_ID, 0, 4)")
I(f"s_mov_b32 {sSPIN}, 0")
I(f"v_mov_b32 {mm[3]}, {mm[2]}")
S.label(f"L_xc{k}")
I(f"v_subrev_u32 {mm[3]}, {sTAG}, {mm[2]}")
I(f"v_cmp_lt_u32 vcc, 15, {mm[3]}")
S.nop(1)
I(f"s_cbranch_vccnz L_xcslow{k}")
S.label(f"L_xcgo{k}")
Fx = side(f"L_xcslow{k}")
Fx.I("s_sleep 8"); Fx.I(LD_XC); Fx.wait_all(force=True)
Fx.I(f"s_add_u32 {sSPIN}, {sSPIN}, 1"); Fx.I(f"s_cmp_lt_u32 {sSPIN}, 100000"); Fx.I(f"s_cbranch_scc1 L_xc{k}"); Fx.I(f"s_branch L_xcgo{k}")
I(f"v_cmp_ne_u32 vcc, {sT[3]}, {mm[3]}")
S.nop(1)
I(f"s_cmp_lg_u64 vcc, 0"); I(f"s_cselect_b32 {sMODE}, 1, {OPT.get('forceslow', 0)}")
I(f"v_mov_b32 {mm[3]}, {sMODE}")
I(f"ds_write_b32 {vMW}, {mm[3]} offset:1024")
XAT = 7
NWH = OPT.get("nwh", 3)
def h_w2(p):
    await_(S, GRP_G, f"G_rel{4+p}")
    w2_dma(S, p)
chunk(6)
chunk(7)
S.fill_flush()
h_w2(0)
S.wait_tag("g1c7"); post(S, "H_c7")
I(LD_L1)
XO = OPT.get("xo", 0)
if XO == 0: h_w2(1)
stamp(S)
poll_check(S, [LD_L1], pf1)
I(f"s_cmp_lg_u32 {sQ}, 0"); I("s_cbranch_scc1 L_nown2")
I(f"s_lshr_b32 {sB0}, {sW12}, 1"); I(f"s_add_u32 m0, {sB0}, {L_EX}"); I(f"s_add_u32 {sB0}, {sB0}, {WS_WN}")
for m in range(2): I(f"buffer_load_dwordx4 {vL16}, {SWS}, {sB0} offen offset:{m*1024} sc1 lds", counted=False)
S.label("L_nown2")
I(f"s_add_u32 m0, {sW12}, {L_XC}")
for m in range(4): I(f"buffer_load_dwordx4 {vXCa[m]}, {SWS}, {sXC0} offen offset:{m*1024} sc1 lds", tag="xc")
stamp(S)
pf(7)
if XO == 0: h_w2(2)
if XO == 1: h_w2(1)
S.wait_tag("xc")
post(S, "H_xc")
stamp(S)
V.release(vXD, vW1D, vXCa, mm, vST, vMW, vPXC, vPF)
FR = [[V.alloc(4) for u in range(4)] for tt in range(2)]
DD = [[V.alloc(4) for p in range(2)] for tt in range(2)]
PP = [V.alloc(4) for tt in range(2)]
Wv = V.alloc(8); vLX = V.alloc()
I(f"v_add_u32 {vLX}, {S4}, {vL16}")
await_(S, GRP_H, "H_xc")
prio(S, "pHc")
def big_step(base, mid=None):
    for u in range(4):
        for tt in range(2):
            if base == L_XC: I(f"ds_read_b128 {FR[tt][u]}, {vXCr} offset:{u*4096 + tt*1024}")
            else: I(f"ds_read_b128 {FR[tt][u]}, {vLX} offset:{base - S4 + (tt*4+u)*1024}")
    if mid: mid()
    for u in range(4):
        for tt in range(2):
            for p in range(2):
                I(f"v_mfma_f32_16x16x32_bf16 {DD[tt][p]}, {FR[tt][u]}, {F64[u][p]}, {'0' if u == 0 else DD[tt][p]}")
def mid1():
    I(f"s_or_b32 {sT[0]}, s2, {sW}"); I(f"s_cmp_lg_u32 {sT[0]}, 0"); I("s_cbranch_scc1 L_noepoch")
    flag(S, "0", counted=False)
    S.label("L_noepoch")
    for tau in range(2): I(f"ds_read_b128 {Wv[4*tau:4*tau+4]}, {vWr} offset:{tau*2048}")
big_step(L_XC, mid1)
if XO == 0: S.wait_tag("w2p2"); post(S, "H_w2")
if XO == 2: h_w2(1)
if XO: h_w2(2)
for tt in range(2):
    for r in range(4): cmul_tw(S, DD[tt][0][r], DD[tt][1][r], TFc[4*tt+r], TFs[4*tt+r], t[2*(r&1):2*(r&1)+2], PP[tt][r])
for tau in range(2):
    for p in range(2):
        for tt in range(2):
            I(f"v_mfma_f32_16x16x32_bf16 {DD[tau][p]}, {F32[tau][tt][p]}, {PP[tt]}, {'0' if tt == 0 else DD[tau][p]}")
stamp(S, 1)
reserve(S, "H_fr"); reserve(S, "H_sp1")
I(f"s_cmp_eq_u32 {sQ}, 0")
I("s_cbranch_scc1 L_special")
F = S.fork(); tail.append(F)
for tau in range(2):
    for r in range(4):
        wr_, wi_ = t[4+2*(r&1)], t[5+2*(r&1)]; o = t[2*(r&1):2*(r&1)+2]
        ur, ui = DD[tau][0][r], DD[tau][1][r]
        I(f"v_lshlrev_b32 {wr_}, 16, {Wv[4*tau+r]}"); I(f"v_and_b32 {wi_}, 0xffff0000, {Wv[4*tau+r]}")
        I(f"v_mul_f32 {o[0]}, {ur}, {wr_}"); I(f"v_mul_f32 {o[1]}, {ur}, {wi_}")
        I(f"v_fma_f32 {o[0]}, -{ui}, {wi_}, {o[0]}"); I(f"v_fmac_f32 {o[1]}, {ui}, {wr_}")
        I(f"v_cvt_pk_bf16_f32 {PP[tau][r]}, {o[0]}, -{o[1]}")
S.label("L_special_done")
F.label("L_special")
sa = ft
svp = [TFc[2*k:2*k+2] if k < 4 else TFs[2*k-8:2*k-6] for k in range(8)]
PQ = [FR[k>>2][k&3] for k in range(8)]
post(F, "H_fr", alias=True)
F.I(f"v_lshlrev_b32 {sa[0]}, 3, {vKs}"); F.I(f"v_add_u32 {sa[0]}, {L_SP}, {sa[0]}")
F.I(f"s_add_u32 {sT[0]}, {sW13}, {3*32768}"); F.I(f"v_add_u32 {sa[1]}, {sT[0]}, {vL16}")
await_(F, GRP_G, "G_cs")
for k in range(8): F.I(f"ds_read_b128 {PQ[k]}, {sa[1]} offset:{k*1024}")
await_(F, GRP_H, "H_fr")
for tau in range(2):
    for r in range(4):
        F.I(f"ds_write2_b32 {sa[0]}, {DD[tau][0][r]}, {DD[tau][1][r]} offset0:0 offset1:1")
        if not (tau == 1 and r == 3): F.I(f"v_add_u32 {sa[0]}, {512 if r < 3 else 13*512}, {sa[0]}")
post(F, "H_sp1", alias=True)
for k in range(8):
    F.I(f"v_sub_u32 {Wv[k]}, {2048 - 64*(16*(k>>2)+(k&3))}, {vKs}"); F.I(f"v_and_b32 {Wv[k]}, 2047, {Wv[k]}")
    F.I(f"v_lshlrev_b32 {Wv[k]}, 3, {Wv[k]}"); F.I(f"v_add_u32 {Wv[k]}, {L_SP}, {Wv[k]}")
await_(F, GRP_H, "H_sp1")
for k in range(8): F.I(f"ds_read_b64 {svp[k]}, {Wv[k]}")
for k in range(8):
    ur, ui = DD[k>>2][0][k&3], DD[k>>2][1][k&3]; pr, pi = PQ[k][0], PQ[k][1]
    F.I(f"v_mul_f32 {Wv[k]}, {pr}, {ur}"); F.I(f"v_fma_f32 {Wv[k]}, -{pi}, {ui}, {Wv[k]}")
    F.I(f"v_mul_f32 {ur}, {pi}, {ur}"); F.I(f"v_fmac_f32 {ur}, {pr}, {ui}")
for k in range(8):
    yi = DD[k>>2][0][k&3]; vr, vi = svp[k][0], svp[k][1]; qr, qi = PQ[k][2], PQ[k][3]
    F.I(f"v_fmac_f32 {Wv[k]}, {qr}, {vr}"); F.I(f"v_fmac_f32 {Wv[k]}, {qi}, {vi}")
    F.I(f"v_fmac_f32 {yi}, {qi}, {vr}"); F.I(f"v_fma_f32 {yi}, -{qr}, {vi}, {yi}")
    F.I(f"v_cvt_pk_bf16_f32 {PP[k>>2][k&3]}, {Wv[k]}, -{yi}")
F.wait_all(vm=False, force=True)
F.nop(2)
F.I("s_branch L_special_done")
for tt in range(2):
    for p in range(2):
        for tau in range(2):
            I(f"v_mfma_f32_16x16x32_bf16 {DD[tt][p]}, {PP[tau]}, {F32[tt][tau][p]}, {'0' if tau == 0 else DD[tt][p]}")
if XO: S.wait_tag("w2p2"); post(S, "H_w2")
P3 = [FR[0][0], FR[0][1]]
I(f"s_lshr_b32 {sT[0]}, {sW12}, 2"); I(f"v_add_u32 {t[6]}, {sT[0]}, {vLX}")
for tt in range(2):
    for r in range(4): cmul_tw(S, DD[tt][0][r], DD[tt][1][r], TIc[4*tt+r], TIs[4*tt+r], t[2*(r&1):2*(r&1)+2], P3[tt][r])
    I(f"ds_write_b128 {t[6]}, {P3[tt]} offset:{L_EX - S4 + tt*4096}")
post(S, "H_ex")
aw_issue(S, GRP_H)
I(f"s_lshl_b32 {sT[0]}, {sQ}, 13"); I(f"s_lshr_b32 {sT[1]}, {sW12}, 2"); I(f"s_add_u32 {sT[0]}, {sT[0]}, {sT[1]}"); I(f"s_add_u32 {sT[0]}, {sT[0]}, {WS_Y1}")
I(f"s_add_u32 {sT[1]}, {sT[0]}, 4096")
sF3 = sF1
I(f"s_lshl_b32 {sF3}, {sW}, 8"); I(f"s_add_u32 {sF3}, {sF3}, {sQ}"); I(f"s_lshl_b32 {sF3}, {sF3}, 4"); I(f"s_add_u32 {sF3}, {sF3}, {WS_F3}")
aw_check(S, GRP_H, "H_ex")
big_step(L_EX)
prio(S, "pH2")
for p in range(2):
    for tt in range(2):
        for e in range(2): I(f"v_cvt_pk_bf16_f32 {PP[p][2*tt+e]}, {DD[tt][p][2*e]}, {DD[tt][p][2*e+1]}")
    I(f"buffer_store_dwordx4 {PP[p]}, {vL16}, {SWS}, {sT[p]} offen sc1", tag="y1st")
stamp(S)
V.release(TFc, TFs, TIc, TIs, Wv, vKs, vWr, fq, fh4, vXCr)
for u in range(4): V.release(F64[u][0], F64[u][1], FR[0][u], FR[1][u])
for a in range(2):
    for b in range(2): V.release(DD[a][b], F32[a][b][0], F32[a][b][1])
sY = sBaseB
GM = [V.alloc(4) for k in range(16)]
vYD = V.alloc(4); vOA = V.alloc(2); vYR = V.alloc(2); vPF3 = V.alloc()
gq = Q(); c = gq.I
out_addr(c, vOA, ft)
fd, ab, vSel, vMsk = ft[4], ft[5], ft[6], ft[7]
c(f"s_lshr_b32 {sT[0]}, {sXCD}, 1"); c(f"s_lshl_b32 {sT[1]}, {sT[0]}, 12"); c(f"s_lshl_b32 {sT[2]}, {sKH}, 10"); c(f"s_add_u32 {sT[1]}, {sT[1]}, {sT[2]}"); c(f"s_lshl_b32 {sT[2]}, {sAD}, 8"); c(f"s_add_u32 {sT[1]}, {sT[1]}, {sT[2]}"); c(f"s_add_u32 {sT[1]}, {sT[1]}, {WS_F3}")
c(f"v_and_b32 {ft[0]}, 1, {vH}"); c(f"v_lshlrev_b32 {ft[0]}, 9, {ft[0]}"); c(f"v_lshl_add_u32 {ft[0]}, {vHH}, 11, {ft[0]}"); c(f"v_lshl_add_u32 {ft[0]}, {vL15}, 4, {ft[0]}")
c(f"v_add_u32 {vPF3}, {sT[1]}, {ft[0]}")
c(f"s_lshl_b32 {sY}, {sT[0]}, 10"); c(f"s_lshl_b32 {sT[2]}, {sHQ}, 8"); c(f"s_add_u32 {sY}, {sY}, {sT[2]}")
c(f"s_and_b32 {sT[2]}, {sXCD}, 1"); c(f"s_lshl_b32 {sT[2]}, {sT[2]}, 7"); c(f"s_add_u32 {sY}, {sY}, {sT[2]}")
c(f"s_lshl_b32 {sU0}, {sKH}, 2"); c(f"s_add_u32 {sU0}, {sU0}, {sAD}"); c(f"s_lshl_b32 {sT[2]}, {sU0}, 17"); c(f"s_lshl_b32 {sU0}, {sU0}, 12"); c(f"s_add_u32 {sU0}, {sU0}, 65536")
c(f"s_add_u32 {sY}, {sY}, {sT[2]}"); c(f"s_add_u32 {sY}, {sY}, {WS_Y1}")
c(f"v_lshrrev_b32 {ft[0]}, 3, {vL}"); c(f"v_lshl_add_u32 {vYD[0]}, {ft[0]}, 12, {vD8}")
for m in range(1, 4): c(f"v_add_u32 {vYD[m]}, {m*(32768-1024)}, {vYD[0]}")
c(f"s_lshl_b32 {sT[0]}, {sKH}, 14"); c(f"s_add_u32 {sT[0]}, {sT[0]}, 65536"); c(f"s_lshl_b32 {sT[1]}, {sKH}, 6")
c(f"v_xor_b32 {ft[0]}, {sT[1]}, {vTRa}"); c(f"v_add_u32 {vYR[0]}, {sT[0]}, {ft[0]}"); c(f"v_xor_b32 {vYR[1]}, 64, {vYR[0]}")
c(f"s_lshl_b32 {sT[0]}, {sCB}, 6"); c(f"s_lshl_b32 {sT[2]}, {sAD}, 5"); c(f"s_add_u32 {sT[0]}, {sT[0]}, {sT[2]}")
c(f"v_add_u32 {ft[0]}, {sT[0]}, {vL31}"); c(f"v_cvt_f32_u32 {fd}, {ft[0]}"); c(f"v_mul_f32 {fd}, {fl(1/512)}, {fd}")
c(f"v_lshl_add_u32 {ft[1]}, {vHH}, 1, {sT[1]}"); c(f"v_cvt_f32_u32 {ft[1]}, {ft[1]}"); c(f"v_mul_f32 {ab}, {fd}, {ft[1]}")
c(f"v_and_b32 {ft[0]}, 1, {vL}"); c(f"v_mul_u32_u24 {ft[1]}, 0x0202, {ft[0]}"); c(f"v_lshl_or_b32 {ft[1]}, {ft[1]}, 16, {ft[1]}"); c(f"v_xor_b32 {vSel}, 0x03020100, {ft[1]}")
c(f"v_bfe_u32 {ft[1]}, {vL}, 1, 1"); c(f"v_xor_b32 {ft[2]}, {ft[1]}, {ft[0]}"); c(f"v_lshlrev_b32 {ft[1]}, 31, {ft[1]}"); c(f"v_lshl_or_b32 {vMsk}, {ft[2]}, 15, {ft[1]}")
for kl in range(8):
    for rho in range(4):
        c(f"v_fmamk_f32 {ft[0]}, {fd}, {fl(8*kl + 4*(rho>>1) + (rho&1))}, {ab}")
        c(f"v_cos_f32 {ft[1]}, {ft[0]}"); c(f"v_sin_f32 {ft[2]}, {ft[0]}")
        if not (kl == 0 and rho == 0):
            pk, pr = (kl, rho - 1) if rho else (kl - 1, 3)
            c(f"v_perm_b32 {ft[3]}, {GM[pk][pr]}, {GM[pk][pr]}, {vSel}")
            c(f"v_cvt_pk_bf16_f32 {GM[kl][rho]}, {ft[1]}, {ft[2]}")
            c(f"v_xor_b32 {GM[8+pk][pr]}, {vMsk}, {ft[3]}")
        else:
            c(f"v_cvt_pk_bf16_f32 {GM[kl][rho]}, {ft[1]}, {ft[2]}")
c(f"v_perm_b32 {ft[3]}, {GM[7][3]}, {GM[7][3]}, {vSel}"); c(f"v_xor_b32 {GM[15][3]}, {vMsk}, {ft[3]}")
c(f"v_and_b32 {ft[0]}, 1, {vL}"); c(f"v_lshlrev_b32 {ft[0]}, 31, {ft[0]}"); c(f"v_xor_b32 {ft[0]}, 0xbf803f80, {ft[0]}")
c(f"s_sub_u32 {sT[4]}, {sKH}, 1"); c(f"s_mov_b32 {sT[5]}, 0")
c(f"v_cndmask_b32 {GM[0][0]}, {GM[0][0]}, {ft[0]}, s[48:49]")
S.fq = gq.l
post(S, "H_cd")
S.fill(OPT["gpre"])
S.wait_tag("y1st"); flag(S, sF3)
prio(S, "pH")
V.release(PP[0], PP[1])
await_(S, GRP_H, "H_cd")
I(f"s_lshr_b32 {sB0}, {sW12}, 1"); I(f"s_add_u32 m0, {sB0}, {L_XT}")
for m in range(2): I(f"buffer_load_dwordx4 {vOA[m]}, {SX}, {sOB} offen offset:{m*1024} lds", tag="xt")
S.fill_flush()
prio(S, "pH2")
I(f"s_add_u32 {sGF}, {sGF}, 128")
S.wait_tag("xt"); post(S, "H_xt")
if OPT.get("hcut"):
    post(S, "H_done", alias=True); I("s_endpgm")
LD_F3 = f"buffer_load_dword {pf1}, {vPF3}, {SWS}, 0 offen sc1"
await_(S, GRP_G, "G_t3")
I(LD_F3)
await_(S, GRP_G, "G_s01")
poll_check(S, [LD_F3], pf1)
stamp(S)
for g in range(4):
    kap = 4 * (g & 1) + 16 * (g >> 1)
    I(f"s_add_u32 m0, {sU0}, {kap*2048}")
    I(f"s_add_u32 {sB0}, {sY}, {kap*16*4096}")
    for m in range(4): I(f"buffer_load_dwordx4 {vYD[m]}, {SWS}, {sB0} offen offset:{m*1024} sc1 lds", tag=f"yb{g}")
sac = [V.alloc(16), V.alloc(16)]
NY = 8
yf = [[V.alloc(4) for b in range(2)] for s in range(NY)]
vSW = V.alloc(); vSR = V.alloc()
I(f"v_add_u32 {vSW}, {sW12}, {vLX}"); I(f"v_add_u32 {vSR}, {sU0}, {vL16}")
def y_reads(k):
    kk = k if k < 8 else k + 8
    return [f"ds_read_b64_tr_b16 {yf[k%NY][b][2*j:2*j+2]}, {vYR[b]} offset:{kk*2048 + j*1024}" for b in (1, 0) for j in range(2)]
S.wait_tag("yb0"); post(S, "H_y0")
await_(S, GRP_H, "H_y0")
if "pHi" in OPT: prio(S, "pHi")
stamp(S)
for k in range(4):
    for l in y_reads(k): I(l)
for g in range(4):
    rd = []
    if g < 3:
        S.wait_tag(f"yb{g+1}"); post(S, f"H_y{g+1}"); aw_issue(S, GRP_H)
        rd = sum([y_reads(k) for k in range(4 * g + 4, 4 * g + 8)], [])
    for k in range(4 * g, 4 * g + 4):
        for b in (1, 0):
            I(f"v_mfma_f32_32x32x16_bf16 {sac[b]}, {GM[k]}, {yf[k%NY][b]}, {'0' if k == 0 else sac[b]}")
            if g < 3 and k == 4 * g + 1 and b == 0: aw_check(S, GRP_H, f"H_y{g+1}")
            if k >= 4 * g + 2 or (k == 4 * g + 1 and b == 0):
                for _ in range(4):
                    if rd: I(rd.pop(0))
for g in range(4): I(f"ds_write_b128 {vSR}, {sac[1][4*g:4*g+4]} offset:{g*1024}")
for g in range(4): I(f"ds_write_b128 {vSW}, {sac[0][4*g:4*g+4]} offset:{g*1024}")
post(S, "H_done")
diag_out(S)
I("s_endpgm")

S = G; V = VG; I = G.I
G.label("L_G")
prio(S, "pGa")
I(f"s_lshl_b32 {sT[0]}, {sXCD}, 8"); I(f"s_lshl_b32 {sT[1]}, {sW}, 6"); I(f"s_add_u32 {sT[0]}, {sT[0]}, {sT[1]}"); I(f"s_add_u32 {sS0}, {sT[0]}, {sJ}")
I(f"s_lshl_b32 {sT[6]}, {sS0}, 10"); I(f"s_add_u32 {sT[7]}, {sT[6]}, 32768")
vW2R = V.alloc(4); vXR = V.alloc(4); vWR = V.alloc(4); vXR2 = V.alloc(4); vWR2 = V.alloc(4); ONES = V.alloc(4)
CQ = Q(); c = CQ.I
fq = V.alloc(); fh4 = V.alloc(); ang = V.alloc(4)
C1 = V.alloc(4); TWc = V.alloc(8); TWs = V.alloc(8)
C2 = [[V.alloc(4) for p in range(2)] for tt in range(2)]
CN = V.alloc(4); cs = V.alloc(8); kN = V.alloc()
vXNW = V.alloc(); vTR = V.alloc(); vGW = V.alloc(); vGR = V.alloc(); vGS = V.alloc()
sX1s = sBaseB
c(f"v_mov_b32 {kN}, {fl(-1/512)}")
c(f"s_lshr_b32 {sT[5]}, {sW12}, 1"); c(f"s_add_u32 {sT[5]}, {sT[5]}, {L_XN}")
c(f"v_add_u32 {vXNW}, {sT[5]}, {vL16}")
c(f"v_lshrrev_b32 {t[1]}, 2, {vL}"); c(f"v_lshlrev_b32 {t[2]}, 3, {vL3}")
c(f"v_lshl_add_u32 {t[1]}, {t[1]}, 6, {t[2]}"); c(f"v_add_u32 {vTR}, {sT[5]}, {t[1]}")
c(f"v_mul_u32_u24 {t[0]}, {GP}, {vL}")
c(f"s_lshl_b32 {sT[5]}, {sW}, 3"); c(f"s_add_u32 {sT[5]}, {sT[5]}, {L_GA}")
c(f"v_add_u32 {vGW}, {sT[5]}, {t[0]}")
c(f"v_cvt_f32_u32 {fq}, {vL15}")
c(f"v_lshlrev_b32 {t[0]}, 2, {vH}"); c(f"v_cvt_f32_u32 {fh4}, {t[0]}")
c(f"v_mul_f32 {t[1]}, {fl(1/16)}, {fq}")
c(f"v_mul_f32 {ang[0]}, {t[1]}, {fh4}")
for e in range(1, 4): c(f"v_add_f32 {ang[e]}, {ang[e-1]}, {t[1]}")
for e in range(4):
    c(f"v_cos_f32 {cs[e]}, {ang[e]}"); c(f"v_sin_f32 {cs[4+e]}, {ang[e]}")
c(f"v_mul_f32 {t[2]}, {fl(1/32)}, {fq}")
c(f"v_cvt_pk_bf16_f32 {C1[0]}, {cs[0]}, {cs[1]}"); c(f"v_cvt_pk_bf16_f32 {C1[1]}, {cs[2]}, {cs[3]}")
c(f"v_cvt_pk_bf16_f32 {C1[2]}, -{cs[4]}, -{cs[5]}"); c(f"v_cvt_pk_bf16_f32 {C1[3]}, -{cs[6]}, -{cs[7]}")
for r in range(4):
    c(f"v_mul_f32 {t[3]}, {fl(1/32)}, {ang[r]}")
    c(f"v_add_f32 {t[4]}, {t[3]}, {t[2]}")
    c(f"v_cos_f32 {TWc[r]}, {t[3]}"); c(f"v_sin_f32 {TWs[r]}, {t[3]}")
    c(f"v_cos_f32 {TWc[4+r]}, {t[4]}"); c(f"v_sin_f32 {TWs[4+r]}, {t[4]}")
f32_consts(c, C2, fq, fh4, t[0:3], cs[0:2])
for r in range(4): c(f"v_mov_b32 {CN[r]}, {'0x3f80' if r % 2 == 0 else '0xbf80'}")
misc_lane(c, t)
c(f"s_lshl_b32 {sT[0]}, {sXCD}, 5"); c(f"s_add_u32 {sT[0]}, {sT[0]}, {sJ}")
c(f"s_lshl_b32 {sX1s}, {sT[0]}, 7"); c(f"s_add_u32 {sX1s}, {sX1s}, {WS_X1}")
c(f"s_lshl_b32 {sIdx}, {sT[0]}, 5"); c(f"s_add_u32 {sIdx}, {sIdx}, {WS_WN}")
c(f"s_lshl_b32 {sBaseA}, {sT[0]}, 4"); c(f"s_add_u32 {sBaseA}, {sBaseA}, {WS_XCC}")
c(f"s_lshl_b32 {sF1}, {sW}, 8"); c(f"s_add_u32 {sF1}, {sF1}, {sT[0]}"); c(f"s_lshl_b32 {sF1}, {sF1}, 4"); c(f"s_add_u32 {sF1}, {sF1}, {WS_F1}")
c(f"s_lshl_b32 {sT[1]}, {sW}, 2"); c(f"v_add_u32 {t[1]}, {sT[1]}, {vH}")
c(f"v_mul_u32_u24 {t[3]}, {GP}, {t[1]}"); c(f"v_lshl_add_u32 {t[3]}, {vL15}, 4, {t[3]}"); c(f"v_add_u32 {vGR}, {L_GA}, {t[3]}")
c(f"v_lshlrev_b32 {t[4]}, 18, {t[1]}"); c(f"v_lshrrev_b32 {t[5]}, 3, {vL15}"); c(f"v_lshl_add_u32 {t[4]}, {t[5]}, 15, {t[4]}")
c(f"v_and_b32 {t[2]}, 7, {vL}"); c(f"v_lshl_add_u32 {vGS}, {t[2]}, 4, {t[4]}")
sWRr, sWF = sU0, sU1
c(f"s_and_b32 {sWRr}, {sW}, 1"); c(f"s_lshr_b32 {sWF}, {sW}, 1")
c(f"s_lshl_b32 {sT[0]}, {sWRr}, 13"); c(f"v_lshlrev_b32 {t[0]}, 7, {vL31}"); c(f"v_add_u32 {t[0]}, {sT[0]}, {t[0]}")
c(f"v_bfe_u32 {t[1]}, {vL}, 1, 3"); c(f"v_xor_b32 {t[1]}, {t[1]}, {vHH}")
c(f"s_lshl_b32 {sT[1]}, {sWRr}, 2"); c(f"v_xor_b32 {t[1]}, {sT[1]}, {t[1]}")
c(f"v_lshl_add_u32 {vXR[0]}, {t[1]}, 4, {t[0]}")
c(f"v_lshl_add_u32 {t[0]}, {vHH}, 3, {vRp}"); c(f"v_lshl_add_u32 {t[0]}, {t[0]}, 8, {vTRL}")
c(f"s_lshl_b32 {sT[1]}, {sWF}, 1"); c(f"v_xor_b32 {t[1]}, {sT[1]}, {vRp}")
c(f"v_lshl_add_u32 {t[0]}, {t[1]}, 6, {t[0]}")
c(f"s_add_u32 {sT[1]}, {sT[0]}, 16384"); c(f"s_sub_u32 {sT[2]}, 16384, {sT[0]}")
c(f"v_add_u32 {vWR[0]}, {sT[1]}, {t[0]}"); c(f"v_xor_b32 {vWR[1]}, 64, {vWR[0]}")
c(f"v_add_u32 {vWR[2]}, {sT[2]}, {t[0]}"); c(f"v_xor_b32 {vWR[3]}, 64, {vWR[2]}")
for k in range(1, 4): c(f"v_xor_b32 {vXR[k]}, {k*32}, {vXR[0]}")
c(f"v_and_b32 {t[0]}, 1, {vH}"); c(f"v_cmp_eq_u32 vcc, {t[0]}, {vL15}")
c(f"v_mov_b32 {t[1]}, 0x3f803f80")
for r in range(4): c(f"v_cndmask_b32 {ONES[r]}, 0, {t[1]}, vcc")
S.fq = CQ.l
S.fill(OPT.get("pre", 24))
S.wait_all(vm=False, force=True)
stamp(S)
srd(S, SX, 64, 65, 2048 * 1024)
xa = [V.alloc(4), V.alloc(4)]
I(f"buffer_load_dwordx4 {xa[0]}, {vL16}, {SX}, {sT[6]} offen")
I(f"buffer_load_dwordx4 {xa[1]}, {vL16}, {SX}, {sT[7]} offen")
srd(S, SWS, 80, 81, WS_SIZE)
I(f"buffer_load_dword {vE}, {vZ}, {SWS}, 0 offen sc1")
I("s_barrier")
srd(S, SW2, 74, 75, 1792 * 1024); srd(S, SOUT, 76, 77, 2048 * 1024)
S.fill_flush()
xf = [V.alloc(8), V.alloc(8)]
red = V.alloc(2)
for p in range(2):
    for e in range(4):
        I(f"v_lshlrev_b32 {xf[p][2*e]}, 16, {xa[p][e]}")
        I(f"v_and_b32 {xf[p][2*e+1]}, 0xffff0000, {xa[p][e]}")
stamp(S)
def tree(dst, src, tmp):
    I(f"v_pk_add_f32 {tmp[0:2]}, {src[0:2]}, {src[2:4]}"); I(f"v_pk_add_f32 {tmp[2:4]}, {src[4:6]}, {src[6:8]}")
    I(f"v_pk_add_f32 {tmp[0:2]}, {tmp[0:2]}, {tmp[2:4]}")
    I(f"v_add_f32 {dst}, {tmp[0]}, {tmp[1]}")
def wave_reduce(regs, sdst):
    for mod in ("row_shr:1 row_mask:0xf bank_mask:0xf bound_ctrl:0", "row_shr:2 row_mask:0xf bank_mask:0xf bound_ctrl:0",
                "row_shr:4 row_mask:0xf bank_mask:0xf bound_ctrl:0", "row_shr:8 row_mask:0xf bank_mask:0xf bound_ctrl:0",
                "row_bcast:15 row_mask:0xa bank_mask:0xf", "row_bcast:31 row_mask:0xc bank_mask:0xf"):
        for r in regs: I(f"v_add_f32_dpp {r}, {r}, {r} {mod}")
    for r, s in zip(regs, sdst): I(f"v_readlane_b32 {s}, {r}, 63")
tree(red[0], xf[0], t[0:4]); tree(red[1], xf[1], t[4:8])
wave_reduce([red[0], red[1]], [sT[0], sT[1]])
dv = V.alloc(8); nm = V.alloc(4)
for p in range(2): I(f"v_mul_f32 {nm[2*p]}, {sT[p]}, {kN}")
for p in range(2):
    for e in range(0, 8, 2): I(f"v_pk_add_f32 {dv[e:e+2]}, {xf[p][e:e+2]}, {nm[2*p:2*p+2]} op_sel_hi:[1,0]")
    I(f"v_pk_mul_f32 {t[2*p:2*p+2]}, {dv[0:2]}, {dv[0:2]}")
    for e in range(2, 8, 2): I(f"v_pk_fma_f32 {t[2*p:2*p+2]}, {dv[e:e+2]}, {dv[e:e+2]}, {t[2*p:2*p+2]}")
    I(f"v_add_f32 {red[p]}, {t[2*p]}, {t[2*p+1]}")
wave_reduce([red[0], red[1]], [sT[2], sT[3]])
stt = V.alloc(2); rs = V.alloc(4); mo = V.alloc(4)
seqs = []
for p in range(2):
    q = Q(); a, b = t[4*p], t[4*p+1]
    q.I(f"v_mul_f32 {a}, {sT[2+p]}, {kN}")
    q.I(f"v_cvt_pk_bf16_f32 {a}, -{a}, -{a}")
    q.I(f"v_lshlrev_b32 {a}, 16, {a}")
    q.I(f"v_add_f32 {a}, {fl(1e-5)}, {a}")
    q.I(f"v_cvt_pk_bf16_f32 {a}, {a}, {a}")
    q.I(f"v_lshlrev_b32 {a}, 16, {a}")
    q.I(f"v_sqrt_f32 {a}, {a}")
    q.I(f"v_cvt_pk_bf16_f32 {stt[p]}, {a}, -{nm[2*p]}")
    q.I(f"v_lshlrev_b32 {a}, 16, {stt[p]}")
    q.I(f"v_rcp_f32 {rs[2*p]}, {a}")
    q.I(f"v_and_b32 {b}, 0xffff0000, {stt[p]}")
    q.I(f"v_mul_f32 {mo[2*p]}, {b}, {rs[2*p]}")
    seqs.append(q.l)
for x, y in zip(*seqs): I(x[0]); I(y[0])
Aop = [[V.alloc(2) for tt in range(2)] for p in range(2)]
for p in range(2):
    for e in range(0, 8, 2):
        I(f"v_pk_fma_f32 {xf[p][e:e+2]}, {xf[p][e:e+2]}, {rs[2*p:2*p+2]}, {mo[2*p:2*p+2]} op_sel_hi:[1,0,0] neg_lo:[0,0,1] neg_hi:[0,0,1]")
    for e in range(4): I(f"v_cvt_pk_bf16_f32 {xa[p][e]}, {xf[p][2*e]}, {xf[p][2*e+1]}")
    I(f"ds_write_b128 {vXNW}, {xa[p]} offset:{p*1024}")
    for tt in range(2): I(f"ds_read_b64_tr_b16 {Aop[p][tt]}, {vTR} offset:{p*1024 + tt*32}")
V.release(xf[0], xf[1], dv, nm, rs, mo, red, cs, ang, kN, fq, fh4)
make_tag(S)
gr = V.alloc(2); vGa = V.alloc()
I(f"v_cmp_eq_u32 vcc, 0, {vL}")
I(f"v_mov_b32 {gr[1]}, {sTAG}")
I(f"v_lshlrev_b32 {vGa}, 8, {vL}")
I(f"v_cndmask_b32 {gr[0]}, {stt[1]}, {stt[0]}, vcc")
I(f"s_lshl_b32 {sT[6]}, {sS0}, 3"); I(f"s_add_u32 {sT[6]}, {sT[6]}, {WS_ST}")
D1 = [[[V.alloc(4) for c in range(2)] for tt in range(2)] for p in range(2)]
for p in range(2):
    for tt in range(2):
        for c in range(2): I(f"v_mfma_f32_16x16x16_bf16 {D1[p][tt][c]}, {Aop[p][tt]}, {C1[2*c:2*c+2]}, 0")
P = [[V.alloc(4) for tt in range(2)] for p in range(2)]
D2 = [[V.alloc(4) for c in range(3)] for p in range(2)]
for p in range(2):
    for tt in range(2):
        for r in range(4):
            cmul_tw(S, D1[p][tt][0][r], D1[p][tt][1][r], TWc[4*tt+r], TWs[4*tt+r], t[2*(r&1):2+2*(r&1)], P[p][tt][r])
    for c in range(3):
        for tt in range(2):
            B = C2[tt][c] if c < 2 else CN
            I(f"v_mfma_f32_16x16x32_bf16 {D2[p][c]}, {P[p][tt]}, {B}, {'0' if tt == 0 else D2[p][c]}")
O = V.alloc(8)
for k in range(4): I(f"v_add_u32 {vXR2[k]}, 0x10000, {vXR[k]}"); I(f"v_add_u32 {vWR2[k]}, 0x10000, {vWR[k]}")
for p in range(2):
    I(f"v_cndmask_b32 {D2[p][1][0]}, {D2[p][1][0]}, {D2[p][2][0]}, vcc")
    for r in range(4): I(f"v_cvt_pk_bf16_f32 {O[2*r+p]}, {D2[p][0][r]}, {D2[p][1][r]}")
for r in range(4): I(f"ds_write_b64 {vGW}, {O[2*r:2*r+2]} offset:{64*r}")
post(S, "G_ga")
aw_issue(S, GRP_G)
I(f"s_getreg_b32 {sT[3]}, hwreg(HW_REG_XCC_ID, 0, 4)"); I(f"s_add_u32 {sT[3]}, {sT[3]}, {sTAG}"); I(f"v_mov_b32 {t[0]}, {sT[3]}")
I("s_mov_b64 exec, 3")
I(f"buffer_store_dwordx2 {gr}, {vGa}, {SWS}, {sT[6]} offen sc1")
I("s_mov_b64 exec, 1")
I(f"s_cmp_lg_u32 {sW}, 0"); I("s_cbranch_scc1 L_noxcc")
I(f"buffer_store_dword {t[0]}, {vZ}, {SWS}, {sBaseA} offen sc1", counted=False)
S.label("L_noxcc")
I("s_mov_b64 exec, -1")
aw_check(S, GRP_G, "G_ga")
await_(S, GRP_H, "H_c0")
stamp(S)
V.release(xa[0], xa[1], stt, vXNW, gr, vGa, vTR, C1, TWc, TWs, CN, vGW, O)
for p in range(2):
    for c in range(3): V.release(D2[p][c])
    for tt in range(2): V.release(Aop[p][tt], P[p][tt], D1[p][tt][0], D1[p][tt][1], C2[p][tt])
acc = [[V.alloc(16) for b in range(2)] for a in range(2)]
csv = [V.alloc(4) for i in range(8)]; cst = [V.alloc(4) for i in range(8)]
def pub_reads(st):
    for m in range(4): st.I(f"ds_read_b128 {csv[m]}, {vGR} offset:{16*GP*m}")
    st.I(f"v_add_u32 {csv[5][0]}, {L_WN}, {vL16}")
    st.I(f"ds_read_b128 {csv[4]}, {csv[5][0]}")
def pub_wn(st):
    k = newlab()
    st.I(f"v_mov_b32 {csv[5][0]}, {csv[4][0]}")
    st.atomic += 1
    st.I(f"s_cmp_lg_u32 {sW}, 0"); st.I(f"s_cbranch_scc1 L_nown{k}")
    st.I("s_mov_b64 exec, 3")
    st.I(f"buffer_store_dwordx4 {csv[4]}, {vL16}, {SWS}, {sIdx} offen sc1", counted=False)
    st.I("s_mov_b64 exec, -1")
    st.label(f"L_nown{k}")
    st.atomic -= 1
def pub_store(st, m):
    st.I(f"buffer_store_dwordx4 {csv[m]}, {vGS}, {SWS}, {sX1s} offen sc1", tag="x1st")
    if m < 3: st.I(f"s_add_u32 {sX1s}, {sX1s}, 65536")
def w2r_setup(c):
    c(f"s_lshl_b32 {sT[0]}, {sWRr}, 6")
    c(f"v_xor_b32 {t[1]}, {sT[0]}, {vTRa}"); c(f"v_add_u32 {vW2R[0]}, {sW13}, {t[1]}"); c(f"v_xor_b32 {vW2R[1]}, 64, {vW2R[0]}")
    c(f"v_add_u32 {vW2R[2]}, 0x10000, {vW2R[0]}"); c(f"v_add_u32 {vW2R[3]}, 0x10000, {vW2R[1]}")
I(f"s_cmp_ge_u32 {sJ}, 28")
I("s_cbranch_scc1 L_free")
Ffree = S.fork()
prio(S, "pG1")
csa = [V.alloc(4) for a in range(2)]
NS = 3
fx = [[V.alloc(4) for b in range(2)] for s in range(NS)]
fw_ = [[V.alloc(4) for a in range(2)] for s in range(NS)]
def g1_reads(step):
    c, k = divmod(step, 4); s = step % NS
    sl = (c & 1) * 32768
    xr_, wr_ = (vXR2, vWR2) if c & 2 else (vXR, vWR)
    l = []
    def wr(a):
        for j in range(2):
            l.append(f"ds_read_b64_tr_b16 {fw_[s][a][2*j:2*j+2]}, {wr_[2*(k>>1)+a]} offset:{sl + k*4096 + j*1024}")
    def xr(b): l.append(f"ds_read_b128 {fx[s][b]}, {xr_[k]} offset:{sl + b*4096}")
    wr(0); xr(0); xr(1); wr(1)
    return l
for l in g1_reads(0): I(l)
pub_reads(S)
for l in g1_reads(1): I(l)
vCSW = V.alloc(); vCSR = V.alloc(); vMR = V.alloc(); mm = V.alloc(4)
sH0 = sU4
eq = Q(); c = eq.I
c(f"v_lshlrev_b32 {t[0]}, 6, {vL15}"); c(f"v_lshl_add_u32 {t[0]}, {vH}, 4, {t[0]}")
c(f"s_lshl_b32 {sT[0]}, {sW}, 8"); c(f"s_add_u32 {sT[1]}, {sT[0]}, {L_CS}"); c(f"v_add_u32 {vCSW}, {sT[1]}, {t[0]}")
c(f"s_add_u32 {sT[1]}, {sT[0]}, {L_MEAN}"); c(f"v_lshl_add_u32 {vMR}, {vL31}, 2, {sT[1]}")
c(f"s_lshl_b32 {sT[0]}, {sWF}, 9"); c(f"s_add_u32 {sT[0]}, {sT[0]}, {L_CS}")
c(f"v_lshlrev_b32 {t[0]}, 4, {vHH}"); c(f"v_add_u32 {vCSR}, {sT[0]}, {t[0]}")
h_base(c, sH0, sT[0])
c(f"s_lshl_b32 {sF2}, {sTT}, 9"); c(f"s_lshl_b32 {sT[1]}, {sFB}, 5"); c(f"s_add_u32 {sF2}, {sF2}, {sT[1]}")
c(f"s_lshl_b32 {sT[1]}, {sWF}, 4"); c(f"s_add_u32 {sF2}, {sF2}, {sT[1]}"); c(f"s_add_u32 {sF2}, {sF2}, {WS_F2}")
w2r_setup(c)
S.fq = [pub_wn, ("s_nop 0", {})] + sum([[(lambda st, m=m: pub_store(st, m)), ("s_nop 0", {})] for m in range(4)], []) + eq.l
for step in range(32):
    c_, k = divmod(step, 4); s = step % NS
    nxt = step + NS - 1
    mf = [f"v_mfma_f32_32x32x16_bf16 {acc[a][b]}, {fw_[s][a]}, {fx[s][b]}, {'0' if step == 0 else acc[a][b]}" for a, b in ((0, 0), (0, 1), (1, 0), (1, 1))]
    if k < 2:
        cm = [f"v_mfma_f32_16x16x32_bf16 {csa[a]}, {fw_[s][a]}, {ONES}, {'0' if step == 0 else csa[a]}" for a in range(2)]
        mf = [mf[0], mf[1], cm[0], mf[2], mf[3], cm[1]]
    rd = g1_reads(nxt) if nxt < 32 else []
    acts = []; post_after = []
    cn = nxt // 4
    if nxt < 32 and nxt % 4 == 0:
        acts.append(lambda cn=cn: aw_check(S, GRP_H, f"H_c{cn}"))
        if cn in (2, 4, 6, 7): acts.append(lambda: stamp(S, 1))
    if nxt < 28 and nxt % 4 == 3:
        post_after.append(lambda cn=cn: post(S, f"G_rel{cn}"))
        post_after.append(lambda: aw_issue(S, GRP_H))
    if step == OPT.get("f1at", 7): post_after.append(lambda: (S.wait_tag("x1st"), flag(S, sF1)))
    if step == 30:
        def csw():
            S.atomic += 1
            I("s_mov_b32 exec_lo, 0x00030003"); I("s_mov_b32 exec_hi, 0x00030003")
            for a in range(2): I(f"ds_write_b128 {vCSW}, {csa[a]} offset:{a*128}")
            I("s_mov_b64 exec, -1")
            S.atomic -= 1
            post(S, "G_cs")
            for b in range(2): I(f"ds_read_b32 {mm[2*b]}, {vMR} offset:{b*128}")
            I(f"ds_read_b32 {mm[1]}, {vMR} offset:1024")
        post_after.append(csw)
        post_after.append(lambda: aw_issue(S, GRP_G))
    if step == 31:
        def csr():
            aw_check(S, GRP_G, "G_cs")
            for i in range(8):
                I(f"ds_read_b128 {csv[i]}, {vCSR} offset:{(i>>2)*128 + (i&3)*32}")
                I(f"ds_read_b128 {cst[i]}, {vCSR} offset:{256 + (i>>2)*128 + (i&3)*32}")
        post_after.append(csr)
    for i, m in enumerate(mf):
        I(m)
        if i == 0:
            for a in acts: a()
        for _ in range(2):
            if rd: I(rd.pop(0))
        if not rd and post_after and i >= 2:
            for a in post_after: a()
            post_after = []
        S.fill(2)
stamp(S)
S.fill_flush()
prio(S, "pGe")
I(f"s_add_u32 {sT[1]}, {sH0}, 4096")
I(f"v_readfirstlane_b32 {sMODE}, {mm[1]}")
if OPT["hmode"] == 0: I(f"s_mov_b32 {sMODE}, 1")
for a in range(2):
    for kp in range(2):
        for gg in range(2):
            i = a * 4 + kp * 2 + gg
            for e in range(2): I(f"v_pk_add_f32 {csv[i][2*e:2*e+2]}, {csv[i][2*e:2*e+2]}, {cst[i][2*e:2*e+2]}")
        for b in range(2):
            for e in range(4):
                rr = 8 * kp + 2 * e; cv = csv[a * 4 + kp * 2 + (e >> 1)][2*(e&1):2*(e&1)+2]
                I(f"v_pk_fma_f32 {acc[a][b][rr:rr+2]}, {cv}, {mm[2*b:2*b+2]}, {acc[a][b][rr:rr+2]} op_sel_hi:[1,0,1] neg_lo:[1,0,0] neg_hi:[1,0,0]")
        sts = []
        for b in range(2):
            o = cst[a * 4 + kp * 2 + b]
            for e in range(4):
                rr = 8 * kp + 2 * e
                I(f"v_cvt_pk_bf16_f32 {o[e]}, {acc[a][b][rr]}, {acc[a][b][rr+1]}")
            for e in range(4): I(f"v_pk_max_i16 {o[e]}, {o[e]}, 0")
            sts.append(f"buffer_store_dwordx4 {o}, {vL16}, {SWS}, {sH0 if a == 0 else sT[1]} offen offset:{kp*2048 + b*1024}")
        if OPT["hmode"] < 2:
            for x in sts: I(x + " sc1", tag="hst")
            continue
        k = newlab()
        I(f"s_cmp_lg_u32 {sMODE}, 0"); I(f"s_cbranch_scc1 L_hs{k}")
        for x in sts: I(x, tag="hst")
        S.label(f"L_hd{k}")
        Fs = side(f"L_hs{k}")
        for x in sts: Fs.I(x + " sc1")
        Fs.I(f"s_branch L_hd{k}")
V.release(vGR, vGS, vXR, vWR, vXR2, vWR2, ONES, csa[0], csa[1], vCSW, vCSR, vMR, mm, *cst, *csv)
for s in range(NS): V.release(fx[s][0], fx[s][1], fw_[s][0], fw_[s][1])
S.nop(2)
S.label("L_join")
stamp(S)
F = Ffree; tail.append(F)
F.label("L_free")
F.I(f"s_lshl_b32 {sF2}, s2, 6"); F.I(f"s_add_u32 {sF2}, {sF2}, {WS_DUM}"); F.I(f"s_mov_b32 {sMODE}, 0")
pub_reads(F); pub_wn(F)
for m in range(4): pub_store(F, m)
post(F, "G_rel2", alias=True)
w2r_setup(F.I)
F.wait_all(force=True)
flag(F, sF1)
F.I(f"s_cmp_eq_u32 {sJ}, 29"); F.I("s_cbranch_scc1 L_sentG")
F.label("L_sentG_done")
Fz = side("L_sentG")
za = acc[0][0]
Fz.I(f"s_lshr_b32 {sT[0]}, {sXCD}, 1"); Fz.I(f"s_lshl_b32 {sT[0]}, {sT[0]}, 12"); Fz.I(f"s_lshr_b32 {sT[1]}, {sW12}, 2"); Fz.I(f"s_add_u32 {sT[0]}, {sT[0]}, {sT[1]}"); Fz.I(f"s_add_u32 {sT[0]}, {sT[0]}, {WS_F1}")
Fz.I(f"v_add_u32 {za[0]}, {sT[0]}, {vL16}")
Fz.I(f"s_lshl_b32 {sT[0]}, {sXCD}, 9"); Fz.I(f"s_add_u32 {sT[0]}, {sT[0]}, {WS_XCC}"); Fz.I(f"v_lshl_add_u32 {za[1]}, {vL31}, 4, {sT[0]}")
Fz.I(f"s_lshl_b32 {sT[2]}, {sXCD}, 8"); Fz.I(f"s_add_u32 {sT[2]}, {sT[2]}, {WS_GF}")
Fz.I(f"s_getreg_b32 {sT[3]}, hwreg(HW_REG_XCC_ID, 0, 4)"); Fz.I(f"s_add_u32 {sT[3]}, {sT[3]}, {sTAG}")
Fz.I(f"buffer_load_dword {za[4]}, {vZ}, {SWS}, {sT[2]} offen sc1")
Fz.I(f"buffer_load_dword {za[3]}, {za[1]}, {SWS}, 0 offen sc1")
if OPT.get("sentw", 1): await_(Fz, GRP_H, "H_c%d" % OPT.get("sentw", 4))
ZL = f"buffer_load_dword {za[2]}, {za[0]}, {SWS}, 0 offen sc1"
Fz.I(ZL)
poll_check(Fz, [ZL], za[2])
post(Fz, "G_rel3", alias=True)
await_(Fz, GRP_G, "G_rel3")
Fz.I(f"s_cmp_lg_u32 {sW}, 0"); Fz.I("s_cbranch_scc1 L_sentG_done")
Fz.I(f"v_cmp_ne_u32 vcc, {sT[3]}, {za[3]}")
Fz.I("s_mov_b64 exec, 1")
Fz.I("s_cbranch_vccnz L_sentG_s")
Fz.I(f"buffer_store_dword {vTAG}, {vZ}, {SWS}, {sT[2]} offen" + (" sc1" if OPT.get("forceslow") else ""))
Fz.I("s_mov_b64 exec, -1"); Fz.I("s_branch L_sentG_done")
Fz.label("L_sentG_s")
Fz.I(f"buffer_store_dword {vTAG}, {vZ}, {SWS}, {sT[2]} offen sc1")
Fz.I("s_mov_b64 exec, -1"); Fz.I("s_branch L_sentG_done")
post(F, "G_rel3", alias=True)
F.I(f"s_cmp_eq_u32 s2, 224"); F.I("s_cbranch_scc1 L_spG")
await_(F, GRP_H, "H_c6")
post(F, "G_rel6", alias=True)
await_(F, GRP_H, "H_c7")
F.label("L_spG_done")
post(F, "G_cs", alias=True)
Fg = side("L_spG")
ga = [acc[0][0], acc[0][1]]
sa = t; gk = acc[1][1][0]
Fg.I(f"s_lshl_b32 {sT[0]}, {sW}, 4"); Fg.I(f"v_lshl_add_u32 {gk}, {vH}, 8, {vL15}"); Fg.I(f"v_add_u32 {gk}, {sT[0]}, {gk}")
for k in range(8):
    c0 = 64 * (16 * (k >> 2) + (k & 3))
    for neg in range(2):
        if neg: Fg.I(f"v_sub_u32 {sa[0]}, {2048 - c0}, {gk}"); Fg.I(f"v_and_b32 {sa[0]}, 2047, {sa[0]}")
        else: Fg.I(f"v_add_u32 {sa[0]}, {c0}, {gk}")
        ks = sa[0]
        Fg.I(f"v_bfe_u32 {sa[1]}, {ks}, 4, 2"); Fg.I(f"v_lshrrev_b32 {sa[2]}, 9, {ks}"); Fg.I(f"v_lshl_add_u32 {sa[1]}, {sa[1]}, 2, {sa[2]}")
        Fg.I(f"v_and_b32 {sa[2]}, 15, {ks}"); Fg.I(f"v_lshl_add_u32 {sa[1]}, {sa[1]}, 4, {sa[2]}")
        Fg.I(f"v_bfe_u32 {sa[2]}, {ks}, 6, 3")
        Fg.I(f"v_lshlrev_b32 {sa[3]}, 2, {sa[2]}"); Fg.I(f"v_lshl_add_u32 {sa[3]}, {sa[1]}, 5, {sa[3]}"); Fg.I(f"v_add_u32 {ga[neg][8+k]}, {L_EX}, {sa[3]}")
        Fg.I(f"v_lshrrev_b32 {sa[3]}, 2, {sa[2]}"); Fg.I(f"v_bfe_u32 {sa[0]}, {sa[1]}, 2, 2"); Fg.I(f"v_xor_b32 {sa[3]}, {sa[3]}, {sa[0]}"); Fg.I(f"v_xor_b32 {sa[3]}, 2, {sa[3]}")
        Fg.I(f"v_and_b32 {sa[2]}, 3, {sa[2]}"); Fg.I(f"v_lshlrev_b32 {sa[2]}, 2, {sa[2]}"); Fg.I(f"v_lshl_add_u32 {sa[2]}, {sa[3]}, 4, {sa[2]}")
        Fg.I(f"v_lshl_add_u32 {sa[2]}, {sa[1]}, 6, {sa[2]}"); Fg.I(f"v_add_u32 {ga[neg][k]}, {L_XC}, {sa[2]}")
Fg.I(f"s_add_u32 {sT[0]}, {sW13}, {3*32768}"); Fg.I(f"v_add_u32 {gk}, {sT[0]}, {vL16}")
await_(Fg, GRP_H, "H_c6")
post(Fg, "G_rel6", alias=True)
await_(Fg, GRP_H, "H_xc")
for k in range(8):
    for r in (ga[0][k], ga[1][k], ga[0][8+k], ga[1][8+k]): Fg.I(f"ds_read_b32 {r}, {r}")
await_(Fg, GRP_H, "H_c7")
for k in range(8):
    o = acc[1][0][4*(k&3):4*(k&3)+4]
    a_, b_, c_, d_ = ga[0][k], ga[1][k], ga[0][8+k], ga[1][8+k]
    for i, r in enumerate((a_, b_, c_, d_)):
        Fg.I(f"v_lshlrev_b32 {t[2*i]}, 16, {r}"); Fg.I(f"v_and_b32 {t[2*i+1]}, 0xffff0000, {r}")
    Fg.I(f"v_add_f32 {t[0]}, {t[0]}, {t[2]}"); Fg.I(f"v_sub_f32 {t[1]}, {t[1]}, {t[3]}")
    Fg.I(f"v_add_f32 {t[4]}, {t[4]}, {t[6]}"); Fg.I(f"v_sub_f32 {t[5]}, {t[5]}, {t[7]}")
    Fg.I(f"v_add_f32 {o[0]}, {t[0]}, {t[4]}"); Fg.I(f"v_add_f32 {o[1]}, {t[1]}, {t[5]}")
    Fg.I(f"v_sub_f32 {o[2]}, {t[0]}, {t[4]}"); Fg.I(f"v_sub_f32 {o[3]}, {t[1]}, {t[5]}")
    for e in range(4): Fg.I(f"v_mul_f32 {o[e]}, {fl(0.125)}, {o[e]}")
    Fg.I(f"ds_write_b128 {gk}, {o} offset:{k*1024}")
post(Fg, "G_cs", alias=True)
await_(Fg, GRP_H, "H_sp1")
Fg.wait_all(force=True)
Fg.I("s_branch L_spG_done")
F.wait_all(force=True)
F.nop(2)
F.I("s_branch L_join")
REGP = (0, 1, 2)
W2F = {(p, kl): [V.alloc(4) for a in range(2)] for p in REGP for kl in range(4)}
def w2_reads(p, kl, dst):
    sl = W2SLOT[p]
    return [f"ds_read_b64_tr_b16 {dst[a][2*j:2*j+2]}, {vW2R[2*(sl>>1)+a]} offset:{(sl&1)*32768 + kl*2048 + j*1024}" for a in range(2) for j in range(2)]
assert NWH == 3
w2_dma(S, 3)
def drain(p):
    for kl in range(4):
        for l in w2_reads(p, kl, W2F[p, kl]): I(l, tag=f"w2d{p}")
S.wait_tag("hst")
flag_mode(S, sF2)
prio(S, "pG2")
stamp(S)
await_(S, GRP_H, "H_xc")
drain(0)
if XO == 0: drain(1)
S.wait_tag("w2d0")
w2_dma(S, 4)
await_(S, GRP_H, "H_w2")
if XO: drain(1)
drain(2)
S.wait_tag("w2d1")
w2_dma(S, 5)
sT2 = sTT; sH = sU4
vPF2 = vL15; pf2 = vTRL
I(f"s_lshl_b32 {sT2}, {sXCD}, 2"); I(f"s_add_u32 {sT2}, {sT2}, {sHQ}")
I(f"s_lshl_b32 {sT[0]}, {sT2}, 9"); I(f"s_mul_i32 {sT[1]}, {sW}, 112"); I(f"s_add_u32 {sT[0]}, {sT[0]}, {sT[1]}"); I(f"s_add_u32 {sT[0]}, {sT[0]}, {WS_F2}")
I(f"v_min_u32 {vPF2}, 6, {vL}"); I(f"v_lshlrev_b32 {vPF2}, 4, {vPF2}"); I(f"v_add_u32 {vPF2}, {sT[0]}, {vPF2}")
LD_F2 = f"buffer_load_dword {pf2}, {vPF2}, {SWS}, 0 offen sc1"
vOA = [vD8, vTRa]
out_addr(I, vOA, t)
vHb = [vRp, vL3]
I(f"s_lshl_b32 {sT[0]}, {sKH}, 10"); I(f"v_add_u32 {vHb[0]}, {sT[0]}, {vL16}"); I(f"v_xor_b32 {vHb[1]}, 0x400, {vHb[0]}")
I(f"s_mul_i32 {sH}, {sT2}, 229376"); I(f"s_mul_i32 {sT[0]}, {sW}, 57344"); I(f"s_add_u32 {sH}, {sH}, {sT[0]}"); I(f"s_add_u32 {sH}, {sH}, {WS_H}")
I(f"v_lshlrev_b32 {vRowOff}, 3, {vRowOff}")
S.wait_all(vm=False)
I(LD_F2)
w2_dma(S, 6)
yac = acc
NB = OPT["nb"]
order = [[0, 3, 6, 4, 5, 1, 2], [0, 1, 3, 6, 4, 5, 2], [0, 3, 4, 6, 5, 1, 2]][OPT.get('ord', 0)]
WB = OPT.get('wb', 3)
wb = [[V.alloc(4) for a in range(2)] for s in range(WB)]
vYW = vH; vRS = vE
hfree = []
while True:
    try: hfree.append([V.alloc(4), V.alloc(4)])
    except RuntimeError: break
sys.stderr.write("initial h buffers %d\n" % len(hfree))
hb = {}
nissued = [0]
def h_load():
    i = nissued[0]; nissued[0] += 1
    hb[i] = hfree.pop(0)
    p, kl = order[i // 4], i % 4
    if kl == 0:
        part_idx(S, sS0, p, sU0)
        I(f"s_lshl_b32 {sS0}, {sS0}, 13"); I(f"s_add_u32 {sS0}, {sS0}, {sH}")
    if kl == 2: I(f"s_add_u32 {sS0}, {sS0}, 4096")
    for b in range(2):
        I(f"buffer_load_dwordx4 {hb[i][b]}, {vHb[b]}, {SWS}, {sS0} offen offset:{(kl%2)*2048} sc1")
def h_top(done):
    while hfree and nissued[0] < 28 and nissued[0] - done < NB: h_load()
def wsrc(i):
    p, kl = order[i // 4], i % 4
    return W2F[p, kl] if p in REGP else wb[i % WB]
def wrd(i):
    p, kl = order[i // 4], i % 4
    return w2_reads(p, kl, wb[i % WB]) if p not in REGP else []
poll_check(S, [LD_F2], pf2)
stamp(S)
h_top(0)
I(f"buffer_load_dword {vRS}, {vRowOff}, {SWS}, {sT[3]} offen sc1")
vRd = [None] + [t[k] for k in (1, 2, 3)]
slots = {1: yac[1][0], 2: yac[0][1], 3: yac[1][1]}
soff = {1: 0, 2: 4096, 3: 32768}
def take(n):
    out = []
    while len(out) < n:
        pr = hfree.pop(); out += [pr[0], pr[1]]
    return out
LA = WB - 1
for i in range(26):
    rd = wrd(i + LA) if i + LA < 28 else []
    if rd and (i + LA) % 4 == 0:
        p = order[(i + LA) // 4]
        assert not any(it[1].get("tag") == f"w2p{p}" for g in S.bg for it in g)
        S.wait_tag(f"w2p{p}")
    for n_, (a, b) in enumerate(((0, 0), (1, 0), (0, 1), (1, 1))):
        I(f"v_mfma_f32_32x32x16_bf16 {yac[a][b]}, {wsrc(i)[a]}, {hb[i][b]}, {'0' if i == 0 else yac[a][b]}")
        if rd: I(rd.pop(0))
        if n_ == 0: h_top(i)
        if n_ in (1, 2): S.bg_pop(1)
        S.fill(3)
    if i == 4 * order.index(6) + 3 - LA: post(S, "G_s01")
    if i == OPT.get("t3", 12): post(S, "G_t3")
    if i == 19: aw_issue(S, GRP_H)
    if i == 20: aw_check(S, GRP_H, "H_xt")
    hfree.append(hb[i])
    if order[i // 4] in REGP: hfree.append(wsrc(i))
    if i == 23:
        assert nissued[0] == 28
        g4 = take(14) if len(hfree) >= 7 else take(2 * len(hfree)) + [x for pr in wb for x in pr]
        sv = g4[0:4]; xe = g4[4:8]; xv = g4[8:10]; ft = g4[10:12]; ex = g4[12]
        vXT, vXL, vSa, vSb = ex[0], ex[1], ex[2], ex[3]
        q = Q(); c = q.I
        c(f"v_add_u32 {vYW}, {sW13}, {vL16}")
        for k in (1, 2, 3): c(f"v_xor_b32 {vRd[k]}, {k*8192}, {vYW}")
        c(f"s_lshr_b32 {sT[0]}, {sW12}, 1"); c(f"s_add_u32 {sT[0]}, {sT[0]}, {L_XT}")
        c(f"v_lshlrev_b32 {vXT}, 6, {vL31}"); c(f"v_lshl_add_u32 {vXT}, {vHH}, 3, {vXT}"); c(f"v_add_u32 {vXT}, {sT[0]}, {vXT}")
        c(f"v_add_u32 {vXL}, {sT[0]}, {vL16}")
        for g in range(4): c(f"ds_read_b64 {xv[g>>1][2*(g&1):2*(g&1)+2]}, {vXT} offset:{16*g}")
        c(f"s_add_u32 {sT[0]}, {sW12}, {L_SX}"); c(f"v_add_u32 {vSa}, {sT[0]}, {vL16}")
        c(f"s_xor_b32 {sT[0]}, {sKH}, 1"); c(f"s_lshl_b32 {sT[0]}, {sT[0]}, 2"); c(f"s_add_u32 {sT[0]}, {sT[0]}, {sAD}"); c(f"s_lshl_b32 {sT[0]}, {sT[0]}, 12"); c(f"s_add_u32 {sT[0]}, {sT[0]}, 65536")
        c(f"v_add_u32 {vSb}, {sT[0]}, {vL16}")
        c(f"v_lshlrev_b32 {vRS}, 16, {vRS}"); c(f"v_rcp_f32 {vRS}, {vRS}")
        for e in range(8):
            c(f"v_lshlrev_b32 {xe[e>>1][2*(e&1)]}, 16, {xv[e>>2][e&3]}"); c(f"v_and_b32 {xe[e>>1][2*(e&1)+1]}, 0xffff0000, {xv[e>>2][e&3]}")
        c(f"v_mul_f32 {ft[1][2]}, {fl(-1.4426950408889634)}, {vRS}"); c(f"v_mul_f32 {ft[1][0]}, {fl(2.0**-19)}, {vRS}")
        S.fq = q.l
if LA < 2:
    for l in wrd(27): I(l)
S.fill_flush()
def ywr(k):
    for g in range(4): I(f"ds_write_b128 {vYW}, {slots[k][4*g:4*g+4]} offset:{soff[k] + g*1024}")
for n, (a, b) in enumerate([(1, 1), (0, 1), (1, 0), (0, 0)]):
    for i in (26, 27):
        I(f"v_mfma_f32_32x32x16_bf16 {yac[a][b]}, {wsrc(i)[a]}, {hb[i][b]}, {yac[a][b]}")
    if n >= 2: ywr(5 - n)
stamp(S)
ywr(1)
post(S, "G_y")
await_(S, GRP_G, "G_y")
stamp(S)
for g in range(4):
    for k in (1, 2, 3): I(f"ds_read_b128 {slots[k][4*g:4*g+4]}, {vRd[k]} offset:{soff[k] + g*1024}")
gv = yac[0][0]; f0 = ft[0]
for g in range(4):
    for e in range(2):
        k = 4 * g + 2 * e
        I(f"v_pk_add_f32 {gv[k:k+2]}, {gv[k:k+2]}, {slots[1][k:k+2]}"); I(f"v_pk_add_f32 {slots[2][k:k+2]}, {slots[2][k:k+2]}, {slots[3][k:k+2]}")
    for e in range(2):
        k = 4 * g + 2 * e
        I(f"v_pk_add_f32 {gv[k:k+2]}, {gv[k:k+2]}, {slots[2][k:k+2]}")
    for e in range(2):
        k = 4 * g + 2 * e
        I(f"v_pk_mul_f32 {f0[2*e:2*e+2]}, {gv[k:k+2]}, {ft[1][2:4]} op_sel_hi:[1,0]")
    for e in range(4): I(f"v_exp_f32 {f0[e]}, {f0[e]}")
    for e in range(2):
        k = 4 * g + 2 * e
        I(f"v_pk_mul_f32 {gv[k:k+2]}, {gv[k:k+2]}, {ft[1][0:2]} op_sel_hi:[1,0]")
    for e in range(4): I(f"v_add_f32 {f0[e]}, 1.0, {f0[e]}")
    for e in range(4): I(f"v_rcp_f32 {f0[e]}, {f0[e]}")
    if g == 2: aw_issue(S, GRP_H)
    if g == 3:
        aw_check(S, GRP_H, "H_done")
        for gg in range(4):
            I(f"ds_read_b128 {sv[gg]}, {vSa} offset:{gg*1024}")
            I(f"ds_read_b128 {slots[1][4*gg:4*gg+4]}, {vSb} offset:{gg*1024}")
    for e in range(2):
        k = 4 * g + 2 * e
        I(f"v_pk_mul_f32 {gv[k:k+2]}, {gv[k:k+2]}, {f0[2*e:2*e+2]}")
for g in range(4):
    for e in range(2): I(f"v_pk_fma_f32 {xe[g][2*e:2*e+2]}, {gv[4*g+2*e:4*g+2*e+2]}, {sv[g][2*e:2*e+2]}, {xe[g][2*e:2*e+2]}")
    for e in range(2): I(f"v_pk_fma_f32 {xe[g][2*e:2*e+2]}, {gv[4*g+2*e:4*g+2*e+2]}, {slots[1][4*g+2*e:4*g+2*e+2]}, {xe[g][2*e:2*e+2]}")
    o2 = xv[g>>1][2*(g&1):2*(g&1)+2]
    for e in range(2): I(f"v_cvt_pk_bf16_f32 {o2[e]}, {xe[g][2*e]}, {xe[g][2*e+1]}")
    I(f"ds_write_b64 {vXT}, {o2} offset:{16*g}")
for m in range(2): I(f"ds_read_b128 {sv[m]}, {vXL} offset:{m*1024}")
for m in range(2): I(f"buffer_store_dwordx4 {sv[m]}, {vOA[m]}, {SOUT}, {sOB} offen offset:{m*1024}")
diag_out(S)
S.label("L_end")
I("s_endpgm")

hdr = open("cdna_kernels/%s.s.ref" % NAME).read().split("; Override launch")[0]
out = [hdr.rstrip(), f"; @launch grid=(256,1,1) block=(512,1,1) lds={LDS_TOTAL}",
       '.amdgcn_target "amdgcn-amd-amdhsa--gfx950"']
out += [f".set EP_{k}, {v}" for k, v in EP.items()]
out += [".text", f".globl {NAME}_kernel", ".p2align 8", f".type {NAME}_kernel,@function", f"{NAME}_kernel:"]
out += C.lines + H.lines[:Hstart_end] + ["  s_branch L_H2"] + G.lines + ["L_H2:"] + H.lines[Hstart_end:]
for f in tail: out += f.lines
out.append("L_code_end:")
out += ['.section .rodata,"a"', ".p2align 6", f".amdhsa_kernel {NAME}_kernel",
        "  .amdhsa_next_free_vgpr 256", "  .amdhsa_next_free_sgpr 102", "  .amdhsa_accum_offset 256",
        "  .amdhsa_group_segment_fixed_size 0", "  .amdhsa_kernarg_size 72", "  .amdhsa_user_sgpr_count 2",
        "  .amdhsa_user_sgpr_kernarg_segment_ptr 1", "  .amdhsa_system_sgpr_workgroup_id_x 1",
        "  .amdhsa_float_denorm_mode_32 3", ".end_amdhsa_kernel"]
print("\n".join(out))
sys.stderr.write("instrs G %d H %d, vgpr hw G %d H %d, stamps G %d H %d\nEP %s\n" % (G.ninstr, H.ninstr, VG.hw, VH.hw, G.nstamp, H.nstamp, EP))
```
